```python
import torch

def _softmax(x, axis=-1):
    return torch.softmax(x, dim=axis)
def _gelu(x):
    return torch.nn.functional.gelu(x, approximate="tanh")
def _silu(x):
    return torch.nn.functional.silu(x)
def _sigmoid(x):
    return torch.sigmoid(x)
def _layernorm(x, axis=-1, eps=1e-5):
    m = x.mean(dim=axis, keepdim=True)
    v = x.var(dim=axis, keepdim=True, unbiased=False)
    return (x - m) / torch.sqrt(v + eps)
def _scatter_add(tgt, idx, src, axis=0):
    return tgt.clone().index_add_(axis, idx, src)
def _segment_sum(src, seg, n):
    out = torch.zeros((n,) + src.shape[1:], dtype=src.dtype)
    return out.index_add_(0, seg, src)
def _pad(x, pw):
    flat = tuple(v for pair in reversed(pw) for v in pair)
    return torch.nn.functional.pad(x, flat)

kernel_name = 'recurrent_scan__linear_attn_block__dense_activation_silu__prompt'

def setup_inputs():

    _w = (lambda a: (lambda t: t.to(torch.bfloat16) if t.is_floating_point() else t)(torch.as_tensor(a)))
    def _A_setup():
        B, S, D = 1, 2048, 512
        return {
            "x": _w((lambda *s: torch.randn(*s, dtype=torch.bfloat16) * 0.05)(B, S, D)),
            "wqkv": _w((lambda *s: torch.randn(*s, dtype=torch.bfloat16) * 0.2)(D, 3 * D)),
            "wo": _w((lambda *s: torch.randn(*s, dtype=torch.bfloat16) * 0.2)(D, D)),
        }
    _A_in = _A_setup()

    def _B_setup():
        B, S, D, F = 1, 2048, 512, 1792
        return {
            "x": _w((lambda *s: torch.randn(*s, dtype=torch.bfloat16) * 0.05)(B, S, D)),
            "w1": _w((lambda *s: torch.randn(*s, dtype=torch.bfloat16) * 0.8)(D, F) * (D ** -0.5)),
            "w2": _w((lambda *s: torch.randn(*s, dtype=torch.bfloat16) * 0.1)(F, D) * (F ** -0.5)),
        }
    _B_in = _B_setup()

    return {
        "A_x": _A_in["x"],
        "A_wqkv": _A_in["wqkv"],
        "A_wo": _A_in["wo"],
        "B_x": _B_in["x"],
        "B_w1": _B_in["w1"],
        "B_w2": _B_in["w2"],
    }

def reference(A_x, A_wqkv, A_wo, B_x, B_w1, B_w2):
    def _A_ref(x, wqkv, wo):
        B, S, D = x.shape
        H = 32; Dh = D // H
        qkv = (lambda x, *d: x.permute(*d))((x @ wqkv).reshape(B, S, 3, H, Dh), 2, 0, 3, 1, 4)
        q, k, v = qkv[0], qkv[1], qkv[2]
        phi = lambda t: torch.where(t > 0, t + 1, torch.exp(t)) + 1e-6
        pq, pk = phi(q), phi(k)
        kv = torch.einsum("bhsd,bhse->bhde", pk, v)
        z = torch.einsum("bhsd->bhd", pk)
        num = torch.einsum("bhqd,bhde->bhqe", pq, kv)
        den = torch.einsum("bhqd,bhd->bhq", pq, z)[..., None] + 1e-6
        o = num / den
        return (lambda x, *d: x.permute(*d))(o, 0, 2, 1, 3).reshape(B, S, D) @ wo

    def _B_ref(x, w1, w2):
        h = torch.einsum("bsd,df->bsf", x, w1)
        h = _silu(h)
        out = torch.einsum("bsf,fd->bsd", h, w2)
        return out

    x = A_x
    xn = _layernorm(x, axis=-1)
    s = _A_ref(xn, A_wqkv, A_wo)
    g = _silu(_B_ref(xn, B_w1, B_w2))
    return x + s * g
```

```python
from prog import *

LOG2E = 1.4426950408889634
LN2 = 0.6931471805599453
def f2u(x):
    import struct
    return struct.unpack("<I", struct.pack("<f", x))[0]
def fhex(x): return "0x%08x" % f2u(x)

WS_FLAGS = 0x0
WS_KVZ   = 0x10000
WS_H     = 0x100000
WS_O     = 0x900000
WS_PQ    = 0xB00000
WS_SIZE  = 0x1000000

SLOT = 32768
L_P2 = 98304
L_MISC = 155648
L_RS   = L_MISC
L_NMR  = L_MISC + 512
L_CSA  = L_MISC + 1024
L_CSB  = L_MISC + 1536
LDS_BYTES = 163840

S_X, S_W, S_WS, S_W2, S_WO, S_OUT, S_DBG = 4, 8, 12, 16, 20, 24, 28
sW8  = 32
sW4  = 33
sI   = 34
sJ   = 35
sROLE= 36
sR0  = 37
sRS  = 38
sT0, sT1, sT2, sT3, sT4, sT5 = 40, 41, 42, 43, 44, 45
sXB  = 46
sWB_ = 47
sLX  = 48
sLW  = 49
sXK  = 50
sWK  = 51
sWBB = 52
sLWB = 53
sK64 = 54
sHB  = 55
sMASKH = 56
sCOLA = 58
sCOLB = 59
sTMP = 60
sLN2 = 70
sCEPS = 71

def srd(p, dst, lo, nbytes):
    p(f"s_mov_b32 s{dst}, s{lo}\ns_mov_b32 s{dst+1}, s{lo+1}\ns_mov_b32 s{dst+2}, {nbytes}\ns_mov_b32 s{dst+3}, 0x20000")

def prologue(p, code_bytes_label=None, nwg=256):
    p(f"s_cmp_ge_u32 s2, {nwg}")
    p("s_cbranch_scc1 L_end")
    p("s_load_dwordx4 s[72:75], s[0:1], 0")
    p("s_load_dwordx2 s[76:77], s[0:1], 16")
    p("s_load_dwordx4 s[80:83], s[0:1], 32")
    p("s_load_dwordx4 s[84:87], s[0:1], 48")
    p("s_load_dwordx2 s[88:89], s[0:1], 64")
    p("v_and_b32 v1, 63, v0")
    p("v_lshrrev_b32 v2, 6, v0")
    p(f"v_readfirstlane_b32 s{sW8}, v2")
    p(f"s_and_b32 s{sT0}, s2, 7\ns_lshr_b32 s{sT1}, s2, 3")
    p(f"s_and_b32 s{sT2}, s{sT0}, 1\ns_lshl_b32 s{sT2}, s{sT2}, 3\ns_and_b32 s{sT3}, s{sT1}, 7\ns_add_u32 s{sI}, s{sT2}, s{sT3}")
    p(f"s_lshr_b32 s{sT3}, s{sT1}, 3")
    p(f"s_lshr_b32 s{sROLE}, s{sT3}, 1")
    p(f"s_lshr_b32 s{sT2}, s{sT0}, 1\ns_lshl_b32 s{sT2}, s{sT2}, 1\ns_and_b32 s{sT4}, s{sT3}, 1\ns_add_u32 s{sJ}, s{sT2}, s{sT4}")
    p(f"s_lshl_b32 s{sT4}, s{sT3}, 1\ns_add_u32 s{sR0}, s{sI}, s{sT4}\ns_and_b32 s{sR0}, s{sR0}, 7")
    p(f"s_and_b32 s{sW4}, s{sW8}, 3")
    p("s_waitcnt lgkmcnt(0)")
    srd(p, S_X, 72, 2097152)
    srd(p, S_WS, 88, WS_SIZE)
    srd(p, S_W2, 82, 1835008)
    srd(p, S_WO, 76, 524288)
    srd(p, S_OUT, 84, 2097152)
    srd(p, S_DBG, 86, 256)

def role_setup(p):
    p(f"s_cmp_eq_u32 s{sROLE}, 0")
    p("s_cbranch_scc0 L_rs_q")
    srd(p, S_W, 80, 1835008)
    p(f"s_mov_b32 s{sRS}, 3584")
    p(f"s_mul_i32 s{sT0}, s{sJ}, 224\ns_and_b32 s{sT1}, s{sJ}, 1\ns_mul_i32 s{sT2}, s{sT1}, 96\ns_add_u32 s{sCOLA}, s{sT0}, s{sT2}")
    p(f"s_xor_b32 s{sT1}, s{sT1}, 1\ns_lshl_b32 s{sT1}, s{sT1}, 7\ns_add_u32 s{sCOLB}, s{sT0}, s{sT1}")
    p("s_branch L_rs_done")
    p("L_rs_q:")
    srd(p, S_W, 74, 1572864)
    p(f"s_mov_b32 s{sRS}, 3072")
    p(f"s_lshl_b32 s{sT0}, s{sJ}, 6\ns_add_u32 s{sCOLA}, s{sT0}, 512\ns_mov_b32 s{sCOLB}, s{sT0}")
    p("L_rs_done:")
    p(f"s_lshl_b32 s{sK64}, s{sRS}, 6")

class BR:
    ACC = 16
    WF  = 64
    CS  = 88
    SEL = 92
    SUM0, SUM1, SQ0, SQ1 = 96, 97, 98, 99
    T = 100
    XOFF0, XOFF1, WOFF = 104, 105, 106
    WBOFF = 107
    XR = 110
    WBL = 114
    WBC = 117
    RS, NMR = 120, 121
    TA = 122
    X = 128

def make_sel(p, base, t0, t1):
    p(f"v_and_b32 v{t0}, 15, v1\nv_lshrrev_b32 v{t1}, 4, v1\nv_and_b32 v{t1}, 1, v{t1}")
    p(f"v_cmp_eq_u32 vcc, v{t0}, v{t1}")
    p(f"v_mov_b32 v{t0}, 0x3f803f80")
    p(f"v_cndmask_b32 v{base}, 0, v{t0}, vcc")
    for k in range(1, 4): p(f"v_mov_b32 v{base+k}, v{base}")

def wb_slot(t):
    return {0: 2, 1: 0, 2: 1, 3: 2}[t // 2] * SLOT + (t & 1) * 16384

def groupB_setup(p, role):
    B = BR
    p(f"v_lshrrev_b32 v2, 3, v1\nv_lshlrev_b32 v2, 10, v2")
    p(f"v_and_b32 v3, 7, v1\nv_lshrrev_b32 v4, 4, v1\nv_xor_b32 v3, v3, v4\nv_lshlrev_b32 v3, 4, v3")
    p(f"v_add_u32 v{B.XOFF0}, v2, v3\nv_xor_b32 v{B.XOFF1}, 64, v{B.XOFF0}")
    p(f"v_lshrrev_b32 v2, 3, v1\nv_mul_lo_u32 v2, v2, s{sRS}")
    p(f"v_and_b32 v3, 7, v1\nv_lshrrev_b32 v4, 4, v1\nv_and_b32 v4, 1, v4\nv_lshlrev_b32 v4, 2, v4\nv_xor_b32 v3, v3, v4\nv_lshlrev_b32 v3, 4, v3")
    p(f"v_add_u32 v{B.WOFF}, v2, v3")
    p(f"s_lshl_b32 s{sT0}, s{sI}, 7\ns_lshl_b32 s{sT1}, s{sW4}, 5\ns_add_u32 s{sT0}, s{sT0}, s{sT1}\ns_lshl_b32 s{sXB}, s{sT0}, 10")
    p(f"s_lshl_b32 s{sLX}, s{sW4}, 12")
    p(f"s_lshr_b32 s{sT0}, s{sW4}, 1\ns_and_b32 s{sT1}, s{sW4}, 1")
    p(f"s_lshl_b32 s{sT2}, s{sT1}, 5\ns_mul_i32 s{sT2}, s{sT2}, s{sRS}")
    if role == 0:
        p(f"s_lshl_b32 s{sT3}, s{sCOLA}, 1\ns_lshl_b32 s{sT4}, s{sT0}, 7\ns_add_u32 s{sT3}, s{sT3}, s{sT4}")
    else:
        p(f"s_lshl_b32 s{sT3}, s{sCOLA}, 1\ns_lshl_b32 s{sT4}, s{sT0}, 10\ns_add_u32 s{sT3}, s{sT3}, s{sT4}")
    p(f"s_add_u32 s{sWB_}, s{sT2}, s{sT3}")
    p(f"s_lshl_b32 s{sT2}, s{sT0}, 13\ns_lshl_b32 s{sT3}, s{sT1}, 12\ns_add_u32 s{sLW}, s{sT2}, s{sT3}\ns_add_u32 s{sLW}, s{sLW}, 16384")

def groupB_setup2(p, role):
    B = BR
    p(f"v_and_b32 v2, 31, v1\nv_lshrrev_b32 v3, 5, v1")
    p(f"v_lshrrev_b32 v4, 1, v2\nv_and_b32 v4, 7, v4\nv_xor_b32 v4, v4, v3\nv_lshlrev_b32 v4, 4, v4")
    p(f"v_lshlrev_b32 v5, 7, v2\nv_add_u32 v4, v4, v5\nv_add_u32 v4, s{sLX}, v4")
    for pp in range(4):
        p(f"v_xor_b32 v{B.XR+pp}, {pp*32}, v4")
    if role == 0:
        for t in range(3):
            p(f"v_add_u32 v2, {64*t}, v1\ns_mov_b32 s{sT0}, 43691\nv_mul_lo_u32 v3, v2, s{sT0}\nv_lshrrev_b32 v3, 19, v3")
            p(f"v_mul_u32_u24 v4, 12, v3\nv_sub_u32 v4, v2, v4\nv_lshlrev_b32 v4, 4, v4\nv_mul_lo_u32 v3, v3, s{sRS}\nv_add_u32 v{B.WBOFF+t}, v3, v4")
        p(f"s_lshl_b32 s{sT0}, s{sW4}, 4\ns_mul_i32 s{sT0}, s{sT0}, s{sRS}\ns_lshl_b32 s{sT1}, s{sCOLB}, 1\ns_add_u32 s{sWBB}, s{sT0}, s{sT1}")
        p(f"s_mul_i32 s{sLWB}, s{sW4}, 3072")
        p(f"v_lshrrev_b32 v2, 5, v1\nv_lshlrev_b32 v2, 3, v2\nv_and_b32 v3, 15, v1\nv_lshrrev_b32 v4, 2, v3\nv_add_u32 v2, v2, v4\nv_mul_u32_u24 v2, 192, v2")
        p(f"v_lshrrev_b32 v4, 4, v1\nv_and_b32 v4, 1, v4\nv_lshlrev_b32 v4, 5, v4\nv_add_u32 v2, v2, v4\nv_and_b32 v4, 3, v3\nv_lshlrev_b32 v4, 3, v4\nv_add_u32 v2, v2, v4")
        for be in range(3):
            p(f"s_add_u32 s{sT0}, s{sW4}, {be}\ns_cmp_ge_u32 s{sT0}, 3\ns_cselect_b32 s{sT1}, 3, 0\ns_sub_u32 s{sT0}, s{sT0}, s{sT1}")
            p(f"s_cmp_ge_u32 s{sT0}, 3\ns_cselect_b32 s{sT1}, 3, 0\ns_sub_u32 s{sT0}, s{sT0}, s{sT1}\ns_lshl_b32 s{sT0}, s{sT0}, 6")
            p(f"v_add_u32 v{B.WBL+be}, s{sT0}, v2")
    else:
        p(f"s_lshl_b32 s{sT0}, s{sW4}, 4\ns_mul_i32 s{sT0}, s{sT0}, s{sRS}\ns_lshl_b32 s{sT1}, s{sCOLB}, 1\ns_add_u32 s{sWBB}, s{sT0}, s{sT1}")
        p(f"s_lshl_b32 s{sLWB}, s{sW4}, 11")
        p(f"v_lshrrev_b32 v2, 5, v1\nv_lshlrev_b32 v2, 3, v2\nv_and_b32 v3, 15, v1\nv_lshrrev_b32 v4, 2, v3\nv_add_u32 v2, v2, v4\nv_lshlrev_b32 v2, 7, v2")
        p(f"v_lshrrev_b32 v4, 3, v3\nv_lshlrev_b32 v4, 6, v4\nv_add_u32 v2, v2, v4")
        p(f"v_lshrrev_b32 v4, 4, v1\nv_and_b32 v4, 1, v4\nv_lshlrev_b32 v4, 5, v4\nv_add_u32 v2, v2, v4\nv_and_b32 v4, 3, v3\nv_lshlrev_b32 v4, 3, v4\nv_add_u32 v2, v2, v4")
        p(f"s_and_b32 s{sT0}, s{sW4}, 1\ns_lshl_b32 s{sT0}, s{sT0}, 6\nv_xor_b32 v{B.WBL}, s{sT0}, v2\nv_xor_b32 v{B.WBL+1}, 64, v{B.WBL}")
    make_sel(p, B.SEL, 2, 3)
    for r in (B.SUM0, B.SUM1, B.SQ0, B.SQ1): p(f"v_mov_b32 v{r}, 0")

def dma_stage_list(stage):
    B = BR
    slot = (stage % 3) * SLOT
    pre = (f"s_add_u32 s{sT0}, s{sR0}, {stage}\ns_and_b32 s{sT0}, s{sT0}, 7\n"
           f"s_lshl_b32 s{sT1}, s{sT0}, 7\ns_add_u32 s{sXK}, s{sXB}, s{sT1}\n"
           f"s_mul_i32 s{sT1}, s{sT0}, s{sK64}\ns_add_u32 s{sWK}, s{sWB_}, s{sT1}\n"
           f"s_lshl_b32 s{sT5}, s{sRS}, 3")
    g = []
    for t in range(4):
        s = (f"s_add_u32 m0, s{sLX}, {slot + t*1024}\n"
             f"buffer_load_dwordx4 v{B.XOFF0 + (t&1)}, s[{S_X}:{S_X+3}], s{sXK} offen lds\n"
             f"s_add_u32 s{sXK}, s{sXK}, 8192")
        g.append(s)
        s = (f"s_add_u32 m0, s{sLW}, {slot + t*1024}\n"
             f"buffer_load_dwordx4 v{B.WOFF}, s[{S_W}:{S_W+3}], s{sWK} offen lds\n"
             f"s_add_u32 s{sWK}, s{sWK}, s{sT5}")
        g.append(s)
    g[0] = pre + "\n" + g[0]
    return g

def dma_wb_list(t, role):
    B = BR
    base = wb_slot(t)
    pre = (f"s_add_u32 s{sT0}, s{sR0}, {t}\ns_and_b32 s{sT0}, s{sT0}, 7\n"
           f"s_mul_i32 s{sT1}, s{sT0}, s{sK64}\ns_add_u32 s{sWK}, s{sWBB}, s{sT1}\n"
           f"s_lshl_b32 s{sT5}, s{sRS}, 3")
    g = []
    if role == 0:
        for u in range(3):
            g.append(f"s_add_u32 m0, s{sLWB}, {base + u*1024}\nbuffer_load_dwordx4 v{B.WBOFF+u}, s[{S_W}:{S_W+3}], s{sWK} offen lds")
    else:
        for u in range(2):
            g.append(f"s_add_u32 m0, s{sLWB}, {base + u*1024}\nbuffer_load_dwordx4 v{B.WOFF}, s[{S_W}:{S_W+3}], s{sWK} offen lds\ns_add_u32 s{sWK}, s{sWK}, s{sT5}")
    g[0] = pre + "\n" + g[0]
    return g

def interleave(p, main, fill):
    n = len(main); m = len(fill)
    k = 0
    for i, s in enumerate(main):
        while k < m and k * n <= i * m:
            p(fill[k]); k += 1
        p(s)
    while k < m:
        p(fill[k]); k += 1

def groupB_phaseA(p, role):
    B = BR
    nb = 3 if role == 0 else 2
    for s in (0, 1):
        for g in dma_stage_list(s): p(g)
    groupB_setup2(p, role)
    for s in range(8):
        n = 8 if s <= 6 else 2 * nb
        p(f"s_waitcnt vmcnt({n})")
        p("s_barrier")
        if s <= 5: fill = dma_stage_list(s + 2)
        elif s == 6: fill = dma_wb_list(0, role) + dma_wb_list(1, role)
        else: fill = dma_wb_list(2, role) + dma_wb_list(3, role)
        slot = (s % 3) * SLOT
        main = []
        rd = ""
        for pp in range(4):
            k = 4 * s + pp
            rd += f"v_add_u32 v{B.TA+pp}, {slot}, v{B.XR+pp}\nds_read_b128 v[{B.X+4*k}:{B.X+4*k+3}], v{B.TA+pp}\n"
        main.append(rd)
        for pp in range(4):
            k = 4 * s + pp
            for d in range(4):
                x = B.X + 4 * k + d
                w = f"s_waitcnt lgkmcnt({3-pp})\n" if d == 0 else ""
                t0, t1 = B.T + 2*(d&1), B.T + 2*(d&1) + 1
                main.append(w + f"v_lshlrev_b32 v{t0}, 16, v{x}\nv_and_b32 v{t1}, 0xffff0000, v{x}\n"
                            f"v_add_f32 v{B.SUM0}, v{B.SUM0}, v{t0}\nv_add_f32 v{B.SUM1}, v{B.SUM1}, v{t1}\n"
                            f"v_fmac_f32 v{B.SQ0}, v{t0}, v{t0}\nv_fmac_f32 v{B.SQ1}, v{t1}, v{t1}")
        interleave(p, main, fill)
    p(f"v_add_f32 v{B.SUM0}, v{B.SUM0}, v{B.SUM1}\nv_add_f32 v{B.SQ0}, v{B.SQ0}, v{B.SQ1}")
    p(f"v_mov_b32 v{B.T}, v{B.SUM0}\nv_mov_b32 v{B.T+1}, v{B.SQ0}")
    p(f"v_permlane32_swap_b32 v{B.T}, v{B.SUM0}")
    p(f"v_permlane32_swap_b32 v{B.T+1}, v{B.SQ0}")
    p(f"v_add_f32 v{B.SUM0}, v{B.SUM0}, v{B.T}\nv_add_f32 v{B.SQ0}, v{B.SQ0}, v{B.T+1}")
    p(f"v_mul_f32 v{B.SUM0}, {fhex(1.0/512)}, v{B.SUM0}")
    p(f"v_mul_f32 v{B.SQ0}, {fhex(1.0/512)}, v{B.SQ0}")
    p(f"v_fma_f32 v{B.SQ0}, -v{B.SUM0}, v{B.SUM0}, v{B.SQ0}")
    p(f"v_max_f32 v{B.SQ0}, 0, v{B.SQ0}")
    p(f"v_add_f32 v{B.SQ0}, {fhex(1e-5)}, v{B.SQ0}")
    p(f"v_rsq_f32 v{B.SQ0}, v{B.SQ0}")
    p(f"v_mul_f32 v{B.RS}, {fhex(LOG2E)}, v{B.SQ0}")
    p(f"v_mul_f32 v{B.NMR}, v{B.RS}, v{B.SUM0}\nv_sub_f32 v{B.NMR}, 0, v{B.NMR}")
    p(f"v_and_b32 v{B.T}, 31, v1\nv_lshlrev_b32 v{B.T}, 2, v{B.T}\ns_lshl_b32 s{sT0}, s{sW4}, 7\nv_add_u32 v{B.T}, s{sT0}, v{B.T}")
    p(f"v_add_u32 v{B.T}, {L_RS}, v{B.T}")
    p(f"ds_write_b32 v{B.T}, v{B.RS}\nds_write_b32 v{B.T}, v{B.NMR} offset:512")

def groupB_phaseB(p, role):
    B = BR
    nb = 3 if role == 0 else 2
    kstride = 3072 if role == 0 else 2048
    ustride = 768 if role == 0 else 512
    waits = [3*nb, 4*nb, 3*nb, 4*nb, 3*nb, 2*nb, nb, 0]
    def reads(k):
        t, pp = k // 4, k % 4
        buf = B.WF + (k & 1) * 12
        s = []
        for be in range(nb):
            for u in range(2):
                off = (t & 1) * 16384 + pp * kstride + u * ustride
                s.append(f"ds_read_b64_tr_b16 v[{buf+4*be+2*u}:{buf+4*be+2*u+1}], v{B.WBC+be} offset:{off}")
        return s
    def setaddr(t):
        base = wb_slot(t & ~1)
        return "\n".join(f"v_add_u32 v{B.WBC+be}, {base}, v{B.WBL+be}" for be in range(nb))
    def mfmas(k, first):
        buf = B.WF + (k & 1) * 12
        x = B.X + 4 * k
        s = []
        for be in range(nb):
            c = "0" if first else f"v[{B.ACC+16*be}:{B.ACC+16*be+15}]"
            s.append(f"v_mfma_f32_32x32x16_bf16 v[{B.ACC+16*be}:{B.ACC+16*be+15}], v[{buf+4*be}:{buf+4*be+3}], v[{x}:{x+3}], {c}")
        c = "0" if first else f"v[{B.CS}:{B.CS+3}]"
        s.append(f"v_mfma_f32_16x16x32_bf16 v[{B.CS}:{B.CS+3}], v[{buf}:{buf+3}], v[{B.SEL}:{B.SEL+3}], {c}")
        return s
    p(f"s_waitcnt vmcnt({waits[0]}) lgkmcnt(0)")
    p("s_barrier")
    for g in dma_wb_list(4, role) + dma_wb_list(5, role): p(g)
    p(setaddr(0))
    for r in reads(0): p(r)
    nrd = 2 * nb
    for k in range(32):
        t, pp = k // 4, k % 4
        m = mfmas(k, k == 0)
        p("s_waitcnt lgkmcnt(0)")
        p(m[0])
        if k < 31:
            if pp == 3:
                p(f"s_waitcnt vmcnt({waits[t+1]})")
                p("s_barrier")
                if (t + 1) % 2 == 0: p(setaddr(t + 1))
            rr = reads(k + 1)
            fill = []
            if pp == 3 and t + 1 == 2: fill = dma_wb_list(6, role) + dma_wb_list(7, role)
            rest = m[1:]
            per = (len(rr) + len(rest) - 1) // len(rest)
            ri = 0
            for mm in rest:
                for _ in range(per):
                    if ri < len(rr): p(rr[ri]); ri += 1
                p(mm)
            while ri < len(rr): p(rr[ri]); ri += 1
            for g in fill: p(g)
        else:
            for mm in m[1:]: p(mm)
    csb_write(p, B.CS, role, group="B")

def csb_write(p, cs, role, group, beta=0):
    T = 2
    p(f"v_and_b32 v{T}, 15, v1\nv_lshrrev_b32 v{T+1}, 4, v1")
    p(f"v_cmp_gt_u32 vcc, 2, v{T}")
    p(f"v_lshlrev_b32 v{T}, 6, v{T}\nv_lshlrev_b32 v{T+1}, 4, v{T+1}\nv_add_u32 v{T}, v{T}, v{T+1}")
    if group == "B":
        if role == 0:
            p(f"s_cmp_eq_u32 s{sW4}, 3\ns_cselect_b32 s{sT0}, 0, s{sW4}\ns_lshl_b32 s{sT0}, s{sT0}, 7\ns_add_u32 s{sT0}, s{sT0}, {L_CSB}")
        else:
            p(f"s_and_b32 s{sT0}, s{sW4}, 1\ns_lshl_b32 s{sT0}, s{sT0}, 7\ns_add_u32 s{sT0}, s{sT0}, {L_CSB}")
    else:
        if role == 0:
            p(f"s_lshl_b32 s{sT0}, s{sW4}, 7\ns_add_u32 s{sT0}, s{sT0}, {L_CSA}")
        else:
            p(f"s_lshr_b32 s{sT0}, s{sW4}, 1\ns_lshl_b32 s{sT0}, s{sT0}, 7\ns_add_u32 s{sT0}, s{sT0}, {L_CSA + beta*256}")
    p(f"v_add_u32 v{T}, s{sT0}, v{T}")
    p(f"s_and_saveexec_b64 s[{sTMP}:{sTMP+1}], vcc")
    p(f"ds_write_b128 v{T}, v[{cs}:{cs+3}]")
    p(f"s_mov_b64 exec, s[{sTMP}:{sTMP+1}]")

class AR:
    ACC = 16
    XF = 80
    WF = 96
    CS = 112
    SEL = 120
    AX = 124
    AX2 = 128
    AW = 132
    AW2 = 134
    E = 136

def groupA_setup(p, role):
    A = AR
    p(f"s_and_b32 s{sT0}, s{sW4}, 1\ns_lshr_b32 s{sT1}, s{sW4}, 1")
    p(f"v_and_b32 v2, 31, v1\nv_lshrrev_b32 v3, 5, v1")
    p(f"v_lshrrev_b32 v4, 1, v2\nv_and_b32 v4, 7, v4\nv_xor_b32 v4, v4, v3\nv_lshlrev_b32 v4, 4, v4")
    p(f"v_lshlrev_b32 v5, 7, v2\nv_add_u32 v4, v4, v5\ns_lshl_b32 s{sT2}, s{sT0}, 13\nv_add_u32 v4, s{sT2}, v4")
    for pp in range(4):
        p(f"v_xor_b32 v{A.AX+pp}, {pp*32}, v4\nv_add_u32 v{A.AX2+pp}, 65536, v{A.AX+pp}")
    p(f"v_lshrrev_b32 v2, 5, v1\nv_lshlrev_b32 v2, 3, v2\nv_and_b32 v3, 15, v1\nv_lshrrev_b32 v4, 2, v3\nv_add_u32 v2, v2, v4\nv_lshlrev_b32 v2, 7, v2")
    p(f"v_lshrrev_b32 v4, 3, v3\nv_lshlrev_b32 v4, 6, v4\nv_add_u32 v2, v2, v4")
    p(f"v_lshrrev_b32 v4, 4, v1\nv_and_b32 v4, 1, v4\nv_lshlrev_b32 v4, 5, v4\nv_add_u32 v2, v2, v4\nv_and_b32 v4, 3, v3\nv_lshlrev_b32 v4, 3, v4\nv_add_u32 v2, v2, v4")
    if role == 0:
        p(f"s_lshl_b32 s{sT2}, s{sT0}, 6\nv_xor_b32 v2, s{sT2}, v2\ns_lshl_b32 s{sT2}, s{sT1}, 13\ns_add_u32 s{sT2}, s{sT2}, 16384")
        p(f"v_add_u32 v{A.AW}, s{sT2}, v2\nv_xor_b32 v{A.AW+1}, 64, v{A.AW}")
    else:
        p(f"s_lshl_b32 s{sT2}, s{sT1}, 6\nv_xor_b32 v2, s{sT2}, v2")
        p(f"v_add_u32 v{A.AW}, 16384, v2\nv_add_u32 v{A.AW+1}, {16384+8192}, v2")
    p(f"v_add_u32 v{A.AW2}, 65536, v{A.AW}\nv_add_u32 v{A.AW2+1}, 65536, v{A.AW+1}")
    make_sel(p, A.SEL, 2, 3)

def groupA_phaseA(p, role):
    A = AR
    def reads(k):
        s_, pp = k // 4, k % 4
        slot = s_ % 3
        b = k & 1
        ax = (A.AX2 if slot == 2 else A.AX) + pp
        aw = (A.AW2 if slot == 2 else A.AW)
        so = 0 if slot == 2 else slot * SLOT
        r = []
        for be in range(2):
            for u in range(2):
                r.append(f"ds_read_b64_tr_b16 v[{A.WF+8*b+4*be+2*u}:{A.WF+8*b+4*be+2*u+1}], v{aw+be} offset:{so + pp*2048 + u*512}")
        for tt in range(2):
            r.append(f"ds_read_b128 v[{A.XF+8*b+4*tt}:{A.XF+8*b+4*tt+3}], v{ax} offset:{so + tt*4096}")
        return r
    def mfmas(k):
        b = k & 1
        m = []
        for tt in range(2):
            for be in range(2):
                acc = A.ACC + 32*tt + 16*be
                c = "0" if k == 0 else f"v[{acc}:{acc+15}]"
                w = f"v[{A.WF+8*b+4*be}:{A.WF+8*b+4*be+3}]"; x = f"v[{A.XF+8*b+4*tt}:{A.XF+8*b+4*tt+3}]"
                if role == 0: m.append(f"v_mfma_f32_32x32x16_bf16 v[{acc}:{acc+15}], {w}, {x}, {c}")
                else:         m.append(f"v_mfma_f32_32x32x16_bf16 v[{acc}:{acc+15}], {x}, {w}, {c}")
        for be in range(1 if role == 0 else 2):
            c = "0" if k == 0 else f"v[{A.CS+4*be}:{A.CS+4*be+3}]"
            m.append(f"v_mfma_f32_16x16x32_bf16 v[{A.CS+4*be}:{A.CS+4*be+3}], v[{A.WF+8*b+4*be}:{A.WF+8*b+4*be+3}], v[{A.SEL}:{A.SEL+3}], {c}")
        return m
    p("s_barrier")
    for r in reads(0): p(r)
    for k in range(32):
        m = mfmas(k)
        p("s_waitcnt lgkmcnt(0)")
        p(m[0])
        if k < 31:
            if k % 4 == 3: p("s_barrier")
            rr = reads(k + 1)
            rest = m[1:]
            ri = 0
            for j_, mm in enumerate(rest):
                for _ in range(2):
                    if ri < len(rr): p(rr[ri]); ri += 1
                p(mm)
            while ri < len(rr): p(rr[ri]); ri += 1
        else:
            for mm in m[1:]: p(mm)
    if role == 0:
        csb_write(p, A.CS, role, "A")
    else:
        csb_write(p, A.CS, role, "A", 0)
        csb_write(p, A.CS + 4, role, "A", 1)
    p("s_waitcnt lgkmcnt(0)")

def silu_chunk(p, acc, cs, rs, nmr, T, out):
    for e in range(8): p(f"v_mul_f32 v{T+e}, v{nmr}, v{cs+e}")
    for e in range(8): p(f"v_fma_f32 v{T+e}, v{acc+e}, v{rs}, v{T+e}")
    for e in range(8): p(f"v_exp_f32 v{T+8+e}, -v{T+e}")
    for e in range(8): p(f"v_add_f32 v{T+8+e}, 1.0, v{T+8+e}")
    for e in range(8): p(f"v_rcp_f32 v{T+8+e}, v{T+8+e}")
    for e in range(8): p(f"v_mul_f32 v{T+e}, v{T+e}, v{T+8+e}")
    for e in range(4): p(f"v_cvt_pk_bf16_f32 v{out+e}, v{T+2*e}, v{T+2*e+1}")

def groupA_epi_F(p, sc):
    A = AR
    E = A.E
    RS, NMR, CSV, T, OUT = E, E+2, E+4, E+12, E+28
    VA = E + 36
    p("s_barrier")
    p(f"s_and_b32 s{sT0}, s{sW4}, 1\ns_lshr_b32 s{sT1}, s{sW4}, 1")
    p(f"v_and_b32 v2, 31, v1\nv_lshlrev_b32 v2, 2, v2\ns_lshl_b32 s{sT2}, s{sT0}, 8\ns_add_u32 s{sT2}, s{sT2}, {L_RS}\nv_add_u32 v2, s{sT2}, v2")
    for tt in range(2):
        p(f"ds_read_b32 v{RS+tt}, v2 offset:{tt*128}\nds_read_b32 v{NMR+tt}, v2 offset:{512+tt*128}")
    p(f"v_lshrrev_b32 v3, 5, v1\nv_lshlrev_b32 v3, 4, v3\ns_lshl_b32 s{sT2}, s{sT1}, 8\ns_add_u32 s{sT2}, s{sT2}, {L_CSA}\nv_add_u32 v3, s{sT2}, v3")
    p(f"s_lshl_b32 s{sT2}, s{sT0}, 7\nv_xor_b32 v{VA}, s{sT2}, v3")
    p(f"v_xor_b32 v{VA+1}, 128, v{VA}")
    p(f"v_lshlrev_b32 v{VA+2}, 4, v1")
    p(f"s_lshl_b32 s{sT2}, s{sI}, 2\ns_lshl_b32 s{sT3}, s{sT0}, 1\ns_add_u32 s{sT2}, s{sT2}, s{sT3}\ns_mul_i32 s{sT2}, s{sT2}, 112")
    p(f"s_lshr_b32 s{sT3}, s{sCOLA}, 4\ns_lshl_b32 s{sT4}, s{sT1}, 2\ns_add_u32 s{sT3}, s{sT3}, s{sT4}\ns_add_u32 s{sT2}, s{sT2}, s{sT3}")
    p(f"s_lshl_b32 s{sHB}, s{sT2}, 10\ns_add_u32 s{sHB}, s{sHB}, {WS_H}")
    p(f"s_lshl_b32 s{sT5}, s{sT0}, 11")
    ch = 0
    for be in range(2):
        for qp in range(2):
            p(f"ds_read_b128 v[{CSV}:{CSV+3}], v{VA+be} offset:{qp*64}\nds_read_b128 v[{CSV+4}:{CSV+7}], v{VA+be} offset:{qp*64+32}")
            p("s_waitcnt lgkmcnt(0)")
            for tt in range(2):
                acc = A.ACC + 32*tt + 16*be + 8*qp
                o = OUT + 4*(ch & 1)
                silu_chunk(p, acc, CSV, RS+tt, NMR+tt, T, o)
                if be == 0: p(f"s_add_u32 s{sT2}, s{sHB}, s{sT5}")
                else:       p(f"s_xor_b32 s{sT2}, s{sT5}, 2048\ns_add_u32 s{sT2}, s{sHB}, s{sT2}")
                p(f"s_add_u32 s{sT2}, s{sT2}, {tt*112*1024 + qp*1024}")
                p(f"buffer_store_dwordx4 v[{o}:{o+3}], v{VA+2}, s[{S_WS}:{S_WS+3}], s{sT2} offen{sc}")
                ch += 1
                p("s_barrier")

def groupB_epi_F(p, sc):
    B = BR
    CSV, T, OUT, VA = 128, 136, 152, 160
    p("s_waitcnt lgkmcnt(0)")
    p("s_barrier")
    p(f"v_lshrrev_b32 v3, 5, v1\nv_lshlrev_b32 v3, 4, v3\nv_add_u32 v3, {L_CSB}, v3")
    for be in range(3):
        p(f"s_add_u32 s{sT0}, s{sW4}, {be}\ns_cmp_ge_u32 s{sT0}, 3\ns_cselect_b32 s{sT1}, 3, 0\ns_sub_u32 s{sT0}, s{sT0}, s{sT1}")
        p(f"s_cmp_ge_u32 s{sT0}, 3\ns_cselect_b32 s{sT1}, 3, 0\ns_sub_u32 s{sTMP+2+be}, s{sT0}, s{sT1}")
        p(f"s_lshl_b32 s{sT0}, s{sTMP+2+be}, 7\nv_add_u32 v{VA+be}, s{sT0}, v3")
    p(f"v_lshlrev_b32 v{VA+3}, 4, v1")
    p(f"s_lshl_b32 s{sT2}, s{sI}, 2\ns_add_u32 s{sT2}, s{sT2}, s{sW4}\ns_mul_i32 s{sT2}, s{sT2}, 112\ns_lshr_b32 s{sT3}, s{sCOLB}, 4\ns_add_u32 s{sT2}, s{sT2}, s{sT3}")
    p(f"s_lshl_b32 s{sHB}, s{sT2}, 10\ns_add_u32 s{sHB}, s{sHB}, {WS_H}")
    ch = 0
    for be in range(3):
        for qp in range(2):
            p(f"ds_read_b128 v[{CSV}:{CSV+3}], v{VA+be} offset:{qp*64}\nds_read_b128 v[{CSV+4}:{CSV+7}], v{VA+be} offset:{qp*64+32}")
            p("s_waitcnt lgkmcnt(0)")
            o = OUT + 4*(ch & 1)
            silu_chunk(p, B.ACC + 16*be + 8*qp, CSV, B.RS, B.NMR, T, o)
            p(f"s_lshl_b32 s{sT2}, s{sTMP+2+be}, 11\ns_add_u32 s{sT2}, s{sT2}, s{sHB}\ns_add_u32 s{sT2}, s{sT2}, {qp*1024}")
            p(f"buffer_store_dwordx4 v[{o}:{o+3}], v{VA+3}, s[{S_WS}:{S_WS+3}], s{sT2} offen{sc}")
            ch += 1

def phi_elems(p, t, n, T):
    for e in range(n): p(f"v_min_f32 v{T+e}, 0, v{t+e}")
    for e in range(n): p(f"v_exp_f32 v{T+e}, v{T+e}")
    for e in range(n): p(f"v_max_f32 v{t+e}, s{sCEPS}, v{t+e}")
    for e in range(n): p(f"v_fma_f32 v{t+e}, v{t+e}, s{sLN2}, v{T+e}")

def consts(p):
    p(f"s_mov_b32 s{sLN2}, {fhex(LN2)}\ns_mov_b32 s{sCEPS}, {fhex(1e-6/LN2)}")

def groupA_epi_Q(p):
    A = AR
    E = A.E
    RSV, NMV = E, E+8
    CSK, CSVv = E+16, E+17
    T = E+18
    PK = E+26
    VV = E+42
    Z = E+58
    D2 = E+60
    VA = E+76
    p("s_barrier")
    p(f"s_and_b32 s{sT0}, s{sW4}, 1\ns_lshr_b32 s{sT1}, s{sW4}, 1")
    p(f"v_and_b32 v2, 31, v1\nv_lshlrev_b32 v2, 2, v2\ns_lshl_b32 s{sT2}, s{sT1}, 7\ns_add_u32 s{sT2}, s{sT2}, {L_CSA}\nv_add_u32 v2, s{sT2}, v2")
    p(f"ds_read_b32 v{CSK}, v2\nds_read_b32 v{CSVv}, v2 offset:256")
    p(f"v_lshrrev_b32 v3, 5, v1\nv_lshlrev_b32 v3, 4, v3\ns_lshl_b32 s{sT2}, s{sT0}, 8\ns_add_u32 s{sT2}, s{sT2}, {L_RS}\nv_add_u32 v{VA}, s{sT2}, v3")
    p(f"v_mov_b32 v{Z}, 0")
    nb = 0
    for tt in range(2):
        for hf in range(2):
            for q2 in range(2):
                off = (32*tt + 8*(2*hf+q2)) * 4
                p(f"ds_read_b128 v[{RSV+4*q2}:{RSV+4*q2+3}], v{VA} offset:{off}\nds_read_b128 v[{NMV+4*q2}:{NMV+4*q2+3}], v{VA} offset:{off+512}")
            p("s_waitcnt lgkmcnt(0)")
            k = A.ACC + 32*tt + 8*hf; v = A.ACC + 32*tt + 16 + 8*hf
            for e in range(8): p(f"v_mul_f32 v{T+e}, v{NMV+e}, v{CSVv}")
            for e in range(8): p(f"v_fma_f32 v{v+e}, v{v+e}, v{RSV+e}, v{T+e}")
            for e in range(4): p(f"v_cvt_pk_bf16_f32 v{VV+8*tt+4*hf+e}, v{v+2*e}, v{v+2*e+1}")
            p("s_barrier"); nb += 1
            for e in range(8): p(f"v_mul_f32 v{T+e}, v{NMV+e}, v{CSK}")
            for e in range(8): p(f"v_fma_f32 v{k+e}, v{k+e}, v{RSV+e}, v{T+e}")
            phi_elems(p, k, 8, T)
            for e in range(8): p(f"v_add_f32 v{Z}, v{Z}, v{k+e}")
            for e in range(4): p(f"v_cvt_pk_bf16_f32 v{PK+8*tt+4*hf+e}, v{k+2*e}, v{k+2*e+1}")
            c = "0" if (tt == 0 and hf == 0) else f"v[{D2}:{D2+15}]"
            p(f"v_mfma_f32_32x32x16_bf16 v[{D2}:{D2+15}], v[{PK+8*tt+4*hf}:{PK+8*tt+4*hf+3}], v[{VV+8*tt+4*hf}:{VV+8*tt+4*hf+3}], {c}")
            p("s_barrier"); nb += 1
    assert nb == 8
    p(f"v_mov_b32 v{T}, v{Z}")
    p(f"v_permlane32_swap_b32 v{T}, v{Z}")
    p(f"v_add_f32 v{Z}, v{Z}, v{T}")
    p(f"s_mov_b32 s{sMASKH}, 0xffff0000\ns_mov_b32 s{sMASKH+1}, 0xffff0000")
    for r in range(8): p(f"v_cndmask_b32 v{T+r}, v{D2+r}, v{D2+8+r}, s[{sMASKH}:{sMASKH+1}]")
    p(f"s_lshl_b32 s{sT2}, s{sJ}, 1\ns_lshr_b32 s{sT1}, s{sW4}, 1\ns_add_u32 s{sT2}, s{sT2}, s{sT1}\ns_lshl_b32 s{sT2}, s{sT2}, 12\ns_add_u32 s{sHB}, s{sT2}, {WS_KVZ}")
    p(f"v_lshlrev_b32 v{VA+1}, 2, v1")

def groupA_kv_atomics(p):
    A = AR; E = A.E; T = E+18; Z = E+58; VA = E+76
    for r in range(8):
        p(f"buffer_atomic_add_f32 v{T+r}, v{VA+1}, s[{S_WS}:{S_WS+3}], s{sHB} offen offset:{r*256}")
    p(f"v_lshrrev_b32 v2, 3, v1\nv_and_b32 v2, 1, v2\nv_lshlrev_b32 v2, 2, v2\nv_and_b32 v3, 3, v1\nv_add_u32 v2, v2, v3\nv_lshlrev_b32 v2, 8, v2")
    p(f"v_lshrrev_b32 v3, 4, v1\nv_and_b32 v3, 1, v3\nv_lshlrev_b32 v3, 1, v3\nv_lshrrev_b32 v4, 2, v1\nv_and_b32 v4, 1, v4\nv_add_u32 v3, v3, v4\nv_lshlrev_b32 v3, 2, v3")
    p(f"v_add_u32 v2, v2, v3")
    p(f"s_mov_b32 exec_hi, 0")
    p(f"buffer_atomic_add_f32 v{Z}, v2, s[{S_WS}:{S_WS+3}], s{sHB} offen offset:2048")
    p(f"s_mov_b32 exec_hi, -1")

def groupB_epi_Q(p):
    B = BR
    CSV, T, PQ, VA = 128, 136, 152, 170
    p("s_waitcnt lgkmcnt(0)")
    p("s_barrier")
    p(f"v_lshrrev_b32 v3, 5, v1\nv_lshlrev_b32 v3, 4, v3\nv_add_u32 v3, {L_CSB}, v3")
    p(f"s_and_b32 s{sT0}, s{sW4}, 1\ns_lshl_b32 s{sT0}, s{sT0}, 7\nv_add_u32 v{VA}, s{sT0}, v3\nv_xor_b32 v{VA+1}, 128, v{VA}")
    for be in range(2):
        for qp in range(2):
            p(f"ds_read_b128 v[{CSV}:{CSV+3}], v{VA+be} offset:{qp*64}\nds_read_b128 v[{CSV+4}:{CSV+7}], v{VA+be} offset:{qp*64+32}")
            p("s_waitcnt lgkmcnt(0)")
            a = B.ACC + 16*be + 8*qp
            for e in range(8): p(f"v_mul_f32 v{T+e}, v{B.NMR}, v{CSV+e}")
            for e in range(8): p(f"v_fma_f32 v{a+e}, v{a+e}, v{B.RS}, v{T+e}")
            phi_elems(p, a, 8, T)
            for e in range(4): p(f"v_cvt_pk_bf16_f32 v{PQ+8*be+4*qp+e}, v{a+2*e}, v{a+2*e+1}")
    return PQ
```

```python
from k1 import *

def o_stage(p, PQ, sc, T0=176):
    LD = T0
    KA = T0 + 32
    D4 = T0 + 48
    OUT = T0 + 64
    VA = T0 + 72
    p(f"v_and_b32 v2, 31, v1\nv_lshrrev_b32 v3, 5, v1")
    p(f"v_lshlrev_b32 v4, 5, v3\nv_add_u32 v4, v4, v2\nv_lshlrev_b32 v4, 2, v4")
    p(f"v_lshlrev_b32 v5, 2, v3\nv_add_u32 v5, 2048, v5")
    p(f"v_cmp_gt_u32 vcc, 16, v2")
    p(f"v_cndmask_b32 v{VA}, v5, v4, vcc")
    p(f"v_add_u32 v4, 64, v4\nv_add_u32 v5, 8, v5")
    p(f"v_cndmask_b32 v{VA+1}, v5, v4, vcc")
    p(f"v_lshlrev_b32 v{VA+2}, 4, v1")
    p(f"s_lshl_b32 s{sT0}, s{sJ}, 13\ns_add_u32 s{sT0}, s{sT0}, {WS_KVZ}")
    p(f"s_and_b32 s{sT1}, s{sW4}, 1\ns_lshl_b32 s{sT1}, s{sT1}, 12")
    p(f"s_add_u32 s{sT2}, s{sT0}, s{sT1}\ns_xor_b32 s{sT1}, s{sT1}, 4096\ns_add_u32 s{sT3}, s{sT0}, s{sT1}")
    for be in range(2):
        for hh in range(2):
            h = 2*be + hh
            for r in range(8):
                p(f"buffer_load_dword v{LD+8*h+r}, v{VA+hh}, s[{S_WS}:{S_WS+3}], s{sT2+be} offen offset:{r*256} sc1")
    p(f"s_lshl_b32 s{sT4}, s{sI}, 2\ns_add_u32 s{sT4}, s{sT4}, s{sW4}\ns_lshl_b32 s{sT4}, s{sT4}, 5\ns_lshl_b32 s{sT5}, s{sJ}, 2\ns_add_u32 s{sT4}, s{sT4}, s{sT5}")
    p(f"s_lshl_b32 s{sT4}, s{sT4}, 10\ns_add_u32 s{sHB}, s{sT4}, {WS_O}")
    p(f"s_and_b32 s{sT1}, s{sW4}, 1\ns_lshl_b32 s{sT1}, s{sT1}, 11")
    for be in range(2):
        for hh in range(2):
            h = 2*be + hh
            p(f"s_waitcnt vmcnt({(3-h)*8 + h})")
            for e in range(4): p(f"v_cvt_pk_bf16_f32 v{KA+4*h+e}, v{LD+8*h+2*e}, v{LD+8*h+2*e+1}")
            p(f"v_mfma_f32_32x32x16_bf16 v[{D4}:{D4+15}], v[{KA+4*h}:{KA+4*h+3}], v[{PQ+8*be+4*hh}:{PQ+8*be+4*hh+3}], 0")
            p(f"v_add_f32 v{D4+8}, {fhex(1e-6)}, v{D4+8}")
            p(f"v_rcp_f32 v{D4+8}, v{D4+8}")
            for e in range(8): p(f"v_mul_f32 v{D4+e}, v{D4+e}, v{D4+8}")
            o = OUT + 4*(h&1)
            for e in range(4): p(f"v_cvt_pk_bf16_f32 v{o+e}, v{D4+2*e}, v{D4+2*e+1}")
            if be == 0: p(f"s_add_u32 s{sT5}, s{sHB}, s{sT1}")
            else:       p(f"s_xor_b32 s{sT5}, s{sT1}, 2048\ns_add_u32 s{sT5}, s{sHB}, s{sT5}")
            p(f"s_add_u32 s{sT5}, s{sT5}, {hh*1024}")
            p(f"buffer_store_dwordx4 v[{o}:{o+3}], v{VA+2}, s[{S_WS}:{S_WS+3}], s{sT5} offen{sc}")

class P2:
    ACCF = 16
    ACCS = 80
    AF = 144
    BF = 176
    VL16 = 192
    VW2 = 193
    VBR = 194
    XR = 196
    T = 204
sT2i = 62
sC   = 63
sAH  = 64
sAH1 = 65
sBW  = 66
sLB  = 67
sAO, sAO1, sBO = 68, 69, 39

NS, DA, DB = 7, 3, 6

def p2_setup(p):
    P = P2
    p(f"s_and_b32 s{sT0}, s2, 7\ns_lshr_b32 s{sT1}, s2, 3")
    p(f"s_lshr_b32 s{sT2}, s{sT0}, 1\ns_lshl_b32 s{sT2}, s{sT2}, 3\ns_and_b32 s{sT3}, s{sT1}, 7\ns_add_u32 s{sT2i}, s{sT2}, s{sT3}")
    p(f"s_and_b32 s{sT2}, s{sT0}, 1\ns_lshl_b32 s{sT2}, s{sT2}, 2\ns_lshr_b32 s{sT3}, s{sT1}, 3\ns_add_u32 s{sC}, s{sT2}, s{sT3}")
    p(f"s_lshr_b32 s{sT0}, s{sW4}, 1\ns_lshl_b32 s{sT1}, s{sT2i}, 1")
    p(f"s_add_u32 s{sT2}, s{sT1}, s{sT0}\ns_xor_b32 s{sT3}, s{sT2}, 1")
    p(f"s_mul_i32 s{sT4}, s{sW4}, 28")
    for (d, src) in ((sAH, sT2), (sAH1, sT3)):
        p(f"s_mul_i32 s{sT5}, s{src}, 112\ns_add_u32 s{sT5}, s{sT5}, s{sT4}\ns_lshl_b32 s{sT5}, s{sT5}, 10\ns_add_u32 s{d}, s{sT5}, {WS_H}")
    p(f"s_lshl_b32 s{sT4}, s{sW4}, 3")
    for (d, src) in ((sAO, sT2), (sAO1, sT3)):
        p(f"s_lshl_b32 s{sT5}, s{src}, 5\ns_add_u32 s{sT5}, s{sT5}, s{sT4}\ns_lshl_b32 s{sT5}, s{sT5}, 10\ns_add_u32 s{d}, s{sT5}, {WS_O}")
    p(f"s_lshl_b32 s{sT0}, s{sC}, 7\ns_mul_i32 s{sT1}, s{sW4}, {28*16*1024}\ns_add_u32 s{sBW}, s{sT0}, s{sT1}")
    p(f"s_lshl_b32 s{sT1}, s{sW4}, 17\ns_add_u32 s{sBO}, s{sT0}, s{sT1}")
    p(f"s_mul_i32 s{sLB}, s{sW4}, {NS*2048}\ns_add_u32 s{sLB}, s{sLB}, {L_P2}")
    p(f"v_lshlrev_b32 v{P.VL16}, 4, v1")
    p(f"v_lshrrev_b32 v2, 3, v1\nv_lshlrev_b32 v2, 10, v2\nv_and_b32 v3, 7, v1\nv_lshrrev_b32 v4, 4, v1\nv_and_b32 v4, 1, v4\nv_lshlrev_b32 v4, 2, v4\nv_xor_b32 v3, v3, v4\nv_lshlrev_b32 v3, 4, v3\nv_add_u32 v{P.VW2}, v2, v3")
    p(f"v_lshrrev_b32 v2, 5, v1\nv_lshlrev_b32 v2, 2, v2\nv_and_b32 v3, 15, v1\nv_lshrrev_b32 v4, 2, v3\nv_add_u32 v2, v2, v4\nv_lshlrev_b32 v2, 7, v2")
    p(f"v_lshrrev_b32 v4, 3, v3\nv_lshlrev_b32 v4, 6, v4\nv_add_u32 v2, v2, v4")
    p(f"v_lshrrev_b32 v4, 4, v1\nv_and_b32 v4, 1, v4\nv_lshlrev_b32 v4, 5, v4\nv_add_u32 v2, v2, v4\nv_and_b32 v4, 3, v3\nv_lshlrev_b32 v4, 3, v4\nv_add_u32 v2, v2, v4")
    p(f"s_and_b32 s{sT0}, s{sW4}, 1\ns_lshl_b32 s{sT0}, s{sT0}, 6\nv_xor_b32 v2, s{sT0}, v2\nv_add_u32 v{P.VBR}, s{sLB}, v2\nv_xor_b32 v{P.VBR+1}, 64, v{P.VBR}")

def p2_steps():
    order = list(range(0, 8)) + list(range(20, 28)) + list(range(8, 20))
    return [("f", q) for q in order] + [("s", h) for h in range(8)]

def p2_B(n, steps):
    P = P2
    kind, q = steps[n]
    slot = n % NS
    out = []
    for u in range(2):
        if kind == "f":
            so = f"s_add_u32 s{sT0}, s{sBW}, {q*16384 + u*8192}"; srd_ = S_W2
        else:
            so = f"s_add_u32 s{sT0}, s{sBO}, {q*16384 + u*8192}"; srd_ = S_WO
        out.append(f"s_add_u32 m0, s{sLB}, {slot*2048 + u*1024}\n{so}\nbuffer_load_dwordx4 v{P.VW2}, s[{srd_}:{srd_+3}], s{sT0} offen lds")
    return out

def p2_A(n, steps, sc):
    P = P2
    kind, q = steps[n]
    buf = P.AF + 8 * (n % 4)
    out = []
    for tau in range(2):
        base = (sAH + tau) if kind == "f" else (sAO + tau)
        out.append(f"s_add_u32 s{sT1}, s{base}, {q*1024}\nbuffer_load_dwordx4 v[{buf+4*tau}:{buf+4*tau+3}], v{P.VL16}, s[{S_WS}:{S_WS+3}], s{sT1} offen{sc}")
    return out

def p2_reads(n):
    P = P2
    slot = n % NS; buf = P.BF + 8 * (n & 1)
    r = []
    for be in range(2):
        for u in range(2):
            r.append(f"ds_read_b64_tr_b16 v[{buf+4*be+2*u}:{buf+4*be+2*u+1}], v{P.VBR+be} offset:{slot*2048 + u*1024}")
    return r

def p2_mfmas(n, steps, firstf, firsts):
    P = P2
    kind, q = steps[n]
    acc0 = P.ACCF if kind == "f" else P.ACCS
    first = (n == firstf) if kind == "f" else (n == firsts)
    a = P.AF + 8 * (n % 4); b = P.BF + 8 * (n & 1)
    m = []
    for tau in range(2):
        for be in range(2):
            acc = acc0 + 16 * (2*tau + be)
            c = "0" if first else f"v[{acc}:{acc+15}]"
            m.append(f"v_mfma_f32_32x32x16_bf16 v[{acc}:{acc+15}], v[{b+4*be}:{b+4*be+3}], v[{a+4*tau}:{a+4*tau+3}], {c}")
    return m

L_REDF = 0
L_REDS = 49152

def red_write(p, acc0, base):
    P = P2
    for dl in range(1, 4):
        p(f"s_xor_b32 s{sT0}, s{sW4}, {dl}\ns_mul_i32 s{sT0}, s{sT0}, 12288\ns_add_u32 s{sT0}, s{sT0}, {base + (dl-1)*4096}")
        p(f"v_add_u32 v{P.T}, s{sT0}, v{P.VL16}")
        for q in range(4):
            r = acc0 + 16*dl + 4*q
            p(f"ds_write_b128 v{P.T}, v[{r}:{r+3}] offset:{q*1024}")

def red_read_add(p, acc0, base, T):
    P = P2
    p(f"s_mul_i32 s{sT0}, s{sW4}, 12288\ns_add_u32 s{sT0}, s{sT0}, {base}\nv_add_u32 v{P.T}, s{sT0}, v{P.VL16}")
    for sl in range(3):
        for q in range(4):
            p(f"ds_read_b128 v[{T+16*sl+4*q}:{T+16*sl+4*q+3}], v{P.T} offset:{sl*4096 + q*1024}")
    for sl in range(3):
        p(f"s_waitcnt lgkmcnt({8-4*sl})")
        for e in range(16): p(f"v_add_f32 v{acc0+e}, v{acc0+e}, v{T+16*sl+e}")

def phase2(p, sc, flagwait=None, prefetched=0):
    P = P2
    steps = p2_steps(); N = len(steps)
    firstf, firsts = 0, 28
    for n in range(prefetched, DB):
        for g in p2_B(n, steps): p(g)
    if flagwait: flagwait(0)
    for n in range(DA):
        for g in p2_A(n, steps, sc): p(g)
    p(f"s_waitcnt vmcnt({2*(DA-1)})")
    for r in p2_reads(0): p(r)
    for n in range(N):
        iss = []
        cnt_after = 0
        if n + DB < N: iss += p2_B(n + DB, steps)
        if n + DA < N:
            if flagwait:
                if n + DA == 16: iss.append(("flag", 1))
                if n + DA == 28: iss.append(("flag", 2))
            iss += p2_A(n + DA, steps, sc)
        m = p2_mfmas(n, steps, firstf, firsts)
        p("s_waitcnt lgkmcnt(0)")
        p(m[0])
        for g in iss:
            if isinstance(g, tuple): flagwait(g[1])
            else: p(g)
        if n + 1 < N:
            cnt = 0
            for mm in range(max(0, n + 1 - DA + 1), n + 1):
                if mm + DB < N: cnt += 2
                if mm + DA < N: cnt += 2
            if n + 1 < DA:
                cnt += 2 * (DA - 1 - (n + 1))
            p(m[1])
            p(f"s_waitcnt vmcnt({cnt})")
            rr = p2_reads(n + 1)
            p(rr[0]); p(rr[1]); p(m[2]); p(rr[2]); p(rr[3]); p(m[3])
        else:
            p(m[1]); p(m[2]); p(m[3])
        if n == 27:
            pass
    return

def final_epilogue(p):
    P = P2
    T = P.T
    p(f"v_and_b32 v2, 31, v1\nv_lshlrev_b32 v2, 10, v2\nv_lshrrev_b32 v3, 5, v1\nv_lshlrev_b32 v3, 4, v3\nv_add_u32 v{P.VW2}, v2, v3")
    p(f"s_lshl_b32 s{sT0}, s{sT2i}, 6\ns_lshr_b32 s{sT1}, s{sW4}, 1\ns_lshl_b32 s{sT1}, s{sT1}, 5\ns_add_u32 s{sT0}, s{sT0}, s{sT1}\ns_lshl_b32 s{sT0}, s{sT0}, 10")
    p(f"s_lshl_b32 s{sT1}, s{sC}, 7\ns_add_u32 s{sT0}, s{sT0}, s{sT1}\ns_and_b32 s{sT1}, s{sW4}, 1\ns_lshl_b32 s{sT1}, s{sT1}, 6\ns_add_u32 s{sHB}, s{sT0}, s{sT1}")
    for qp in range(2):
        p(f"buffer_load_dwordx4 v[{P.XR+4*qp}:{P.XR+4*qp+3}], v{P.VW2}, s[{S_X}:{S_X+3}], s{sHB} offen offset:{qp*32}")
    red_write(p, P.ACCF, L_REDF)
    red_write(p, P.ACCS, L_REDS)
    p("s_waitcnt lgkmcnt(0)")
    p("s_barrier")
    TT = P.AF
    red_read_add(p, P.ACCF, L_REDF, TT)
    red_read_add(p, P.ACCS, L_REDS, TT)
    a = P.ACCF; s = P.ACCS
    for e in range(16): p(f"v_exp_f32 v{TT+e}, -v{a+e}")
    for e in range(16): p(f"v_add_f32 v{TT+e}, 1.0, v{TT+e}")
    for e in range(16): p(f"v_rcp_f32 v{TT+e}, v{TT+e}")
    for e in range(16): p(f"v_mul_f32 v{a+e}, v{a+e}, v{TT+e}")
    for e in range(16): p(f"v_mul_f32 v{a+e}, v{a+e}, v{s+e}")
    p(f"s_mov_b32 s{sT0}, {fhex(LN2*LN2)}")
    p("s_waitcnt vmcnt(0)")
    for qp in range(2):
        x = P.XR + 4*qp
        p(f"v_permlane32_swap_b32 v{x}, v{x+2}\nv_permlane32_swap_b32 v{x+1}, v{x+3}")
        for d in range(4):
            e0 = 8*qp + 2*d
            p(f"v_lshlrev_b32 v{TT}, 16, v{x+d}\nv_and_b32 v{TT+1}, 0xffff0000, v{x+d}")
            p(f"v_fma_f32 v{TT}, v{a+e0}, s{sT0}, v{TT}\nv_fma_f32 v{TT+1}, v{a+e0+1}, s{sT0}, v{TT+1}")
            p(f"v_cvt_pk_bf16_f32 v{x+d}, v{TT}, v{TT+1}")
        p(f"v_permlane32_swap_b32 v{x}, v{x+2}\nv_permlane32_swap_b32 v{x+1}, v{x+3}")
        p(f"buffer_store_dwordx4 v[{x}:{x+3}], v{P.VW2}, s[{S_OUT}:{S_OUT+3}], s{sHB} offen offset:{qp*32}")
```

```python
import re
NAME = "recurrent_scan__linear_attn_block__dense_activation_silu__prompt"

TRANS = ("v_exp_f32", "v_log_f32", "v_rcp_f32", "v_rsq_f32", "v_sqrt_f32", "v_sin_f32", "v_cos_f32", "v_rcp_iflag_f32")

def regs_of(tok):
    tok = tok.strip()
    tok = re.sub(r"^-|^\||\|$|^abs\(|^neg\(|\)$", "", tok)
    m = re.fullmatch(r"([vsa])(\d+)", tok)
    if m: return [(m.group(1), int(m.group(2)))]
    m = re.fullmatch(r"([vsa])\[(\d+):(\d+)\]", tok)
    if m: return [(m.group(1), i) for i in range(int(m.group(2)), int(m.group(3)) + 1)]
    if tok == "vcc": return [("s", "vcc")]
    if tok == "exec": return [("s", "exec")]
    if tok == "m0": return [("s", "m0")]
    if tok == "scc": return [("s", "scc")]
    return []

class Ins:
    __slots__ = ("text", "op", "ops", "mods", "cls", "wr", "rd", "auto")
    def __init__(self, text, auto=False):
        self.text = text; self.auto = auto
        t = text.split(";")[0].strip()
        parts = t.split(None, 1)
        self.op = parts[0]
        rest = parts[1] if len(parts) > 1 else ""
        ops = []; cur = ""; depth = 0
        for ch in rest:
            if ch == "[": depth += 1
            if ch == "]": depth -= 1
            if ch == "," and depth == 0: ops.append(cur.strip()); cur = ""
            else: cur += ch
        if cur.strip(): ops.append(cur.strip())
        self.mods = []
        if ops:
            lp = ops[-1].split()
            ops[-1] = lp[0]; self.mods = lp[1:]
        self.ops = ops
        self.classify()
    def classify(self):
        op = self.op; o = self.ops
        R = lambda i: regs_of(o[i]) if i < len(o) else []
        wr = []; rd = []
        if op.startswith("v_mfma"):
            self.cls = "mfma"; wr = R(0); rd = R(1) + R(2) + R(3)
        elif op.startswith("v_"):
            self.cls = "trans" if op.replace("_e32","").replace("_e64","") in TRANS else "valu"
            base = op.replace("_e32","").replace("_e64","").replace("_dpp","").replace("_sdwa","")
            if base.startswith("v_cmp"):
                wr = R(0); rd = R(1) + R(2)
            elif base in ("v_readfirstlane_b32", "v_readlane_b32"):
                wr = R(0); rd = R(1) + R(2)
            elif base.startswith("v_permlane") and "swap" in base:
                wr = R(0) + R(1); rd = R(0) + R(1)
            elif base in ("v_fmac_f32", "v_dot2c_f32_bf16", "v_fmaak_f32x"):
                wr = R(0); rd = R(0) + R(1) + R(2)
            elif base in ("v_add_co_u32", "v_sub_co_u32"):
                wr = R(0) + R(1); rd = R(2) + R(3)
            elif base in ("v_addc_co_u32",):
                wr = R(0) + R(1); rd = R(2) + R(3) + R(4)
            elif base == "v_cndmask_b32":
                wr = R(0); rd = R(1) + R(2) + (R(3) if len(o) > 3 else [("s","vcc")])
            elif base == "v_nop":
                pass
            else:
                wr = R(0); rd = sum((R(i) for i in range(1, len(o))), [])
            if "_dpp" in op or any(m.startswith(("row_","quad_perm","wave_")) for m in self.mods): self.cls = "valu"
        elif op.startswith("ds_"):
            self.cls = "ds"
            if op.startswith("ds_read") or op.startswith("ds_bpermute") or op.startswith("ds_swizzle") or op.startswith("ds_permute"):
                wr = R(0); rd = sum((R(i) for i in range(1, len(o))), [])
            else:
                rd = sum((R(i) for i in range(0, len(o))), [])
        elif op.startswith("buffer_") or op.startswith("global_"):
            self.cls = "vmem"
            if op in ("buffer_inv", "buffer_wbl2"):
                pass
            elif "lds" in self.mods or "_lds_" in op:
                rd = sum((R(i) for i in range(0, len(o))), []) + [("s","m0")]
            elif "load" in op:
                wr = R(0); rd = sum((R(i) for i in range(1, len(o))), [])
            elif "atomic" in op:
                rd = sum((R(i) for i in range(0, len(o))), [])
                if "sc0" in self.mods: wr = R(0) if op.startswith("buffer") else R(0)
            else:
                rd = sum((R(i) for i in range(0, len(o))), [])
        elif op.startswith("s_"):
            self.cls = "salu"
            if op in ("s_waitcnt","s_barrier","s_nop","s_endpgm","s_branch","s_sleep","s_setprio") or op.startswith("s_cbranch"):
                self.cls = "ctl"
                if op in ("s_cbranch_vccz","s_cbranch_vccnz"): rd = [("s","vcc")]
                if op in ("s_cbranch_execz","s_cbranch_execnz"): rd = [("s","exec")]
            elif op.startswith("s_cmp") or op.startswith("s_bitcmp"):
                rd = R(0) + R(1)
            elif op.startswith("s_load") or op.startswith("s_memtime") or op.startswith("s_memrealtime"):
                self.cls = "smem"; wr = R(0); rd = R(1)
            elif "saveexec" in op:
                wr = R(0) + [("s","exec")]; rd = R(1) + [("s","exec")]
            else:
                wr = R(0); rd = sum((R(i) for i in range(1, len(o))), [])
                if op in ("s_addc_u32","s_cselect_b32","s_cselect_b64","s_subb_u32"): pass
        else:
            raise ValueError("unknown instr: " + self.text)
        self.wr = wr; self.rd = rd
    def states(self):
        if self.op == "s_nop": return int(self.ops[0], 0) + 1
        return 1

def mfma_passes(ins):
    if "32x32x16" in ins.op: return 8
    if "16x16x32" in ins.op: return 4
    if "16x16x16" in ins.op: return 4
    if "32x32x8" in ins.op: return 8
    raise ValueError(ins.op)

class Prog:
    def __init__(self):
        self.items = []
    def __call__(self, s):
        for l in s.split("\n"):
            l = l.strip()
            if not l: continue
            if l.startswith(";") or l.startswith("."):
                self.items.append(("raw", l))
            elif l.endswith(":"):
                self.items.append(("label", l[:-1]))
            else:
                self.items.append(Ins(l))
    def label(self, n): self.items.append(("label", n))
    def raw(self, t): self.items.append(("raw", t))

    @staticmethod
    def need(p, c):
        n = 0
        pw = set(p.wr);
        vw = {r for r in pw if r[0] in "va"}
        sw = {r for r in pw if r[0] == "s"}
        crd = set(c.rd); cwr = set(c.wr)
        if p.cls in ("valu", "trans"):
            if c.cls == "mfma" and vw & crd: n = max(n, 2)
            if p.cls == "trans" and c.cls in ("valu", "mfma", "vmem", "ds") and vw & crd: n = max(n, 1)
            if c.op.startswith(("v_readfirstlane", "v_readlane")) and vw & crd: n = max(n, 1)
            if "permlane" in c.op and vw & crd: n = max(n, 2)
            if ("_dpp" in c.op) and vw & crd: n = max(n, 2)
            if sw:
                if c.cls == "vmem" and sw & crd: n = max(n, 5)
                if c.cls in ("valu", "trans") and sw & crd: n = max(n, 2)
                if c.op.startswith(("v_readlane","v_writelane")) and sw & crd: n = max(n, 4)
                if c.cls in ("salu",) and sw & crd: n = max(n, 1)
                if c.op in ("s_cbranch_vccz","s_cbranch_vccnz") and ("s","vcc") in sw: n = max(n, 1)
        if p.cls == "mfma":
            ps = mfma_passes(p)
            big = {2:5, 4:8, 8:12, 16:20}[ps]
            if c.cls == "mfma":
                cA = set(regs_of(c.ops[1])) | set(regs_of(c.ops[2]))
                cC = set(regs_of(c.ops[3]))
                if vw & cA: n = max(n, big)
                if vw & cC:
                    if set(regs_of(c.ops[3])) == set(regs_of(p.ops[0])) and mfma_passes(c) == ps: pass
                    else: n = max(n, {2:4,4:6,8:10,16:18}[ps])
                if vw & cwr and not (vw & cC):
                    n = max(n, big)
            elif c.cls in ("valu", "trans", "vmem", "ds"):
                if vw & (crd | cwr): n = max(n, big)
            if c.cls in ("valu", "trans"):
                pC = set(regs_of(p.ops[3]))
                if pC & cwr: n = max(n, {2:1,4:3,8:7,16:15}[ps])
        if p.cls == "salu" and ("s","m0") in sw and c.cls == "vmem" and ("s","m0") in crd: n = max(n, 1)
        if p.cls == "vmem" and ("store" in p.op) and ("x4" in p.op or "x3" in p.op):
            data = set(regs_of(p.ops[0] if p.op.startswith("buffer") else p.ops[1]))
            if data & cwr and c.cls in ("valu","trans"): n = max(n, 2)
            elif data & cwr: n = max(n, 1)
        if p.cls == "salu" and ("s","exec") in sw and c.cls == "mfma": n = max(n, 0)
        return n

    def fix_hazards(self):
        out = []
        window = []
        for it in self.items:
            if not isinstance(it, Ins):
                if it[0] == "label":
                    pass
                out.append(it); continue
            need = 0
            for (p, age) in window:
                d = self.need(p, it) - age
                if d > need: need = d
            if need > 0:
                k = need
                while k > 0:
                    m = min(k, 16)
                    nop = Ins(f"s_nop {m-1}", auto=True); out.append(nop)
                    k -= m
                window = [(p, a + need) for (p, a) in window]
            out.append(it)
            st = it.states()
            window = [(p, a + st) for (p, a) in window if a + st < 24]
            window.append((it, 0))
            if it.op in ("s_branch", "s_endpgm"): window = []
        self.items = out

    def check_waits(self, name=""):
        lg = []
        vm = []
        errs = 0
        smem_pending = set()
        for idx, it in enumerate(self.items):
            if not isinstance(it, Ins):
                continue
            if it.op == "s_waitcnt":
                t = " ".join(it.ops + it.mods)
                m = re.search(r"lgkmcnt\((\d+)\)", t)
                if m:
                    n = int(m.group(1))
                    while len(lg) > n: lg.pop(0)
                    if n == 0: smem_pending = set()
                m = re.search(r"vmcnt\((\d+)\)", t)
                if m:
                    n = int(m.group(1))
                    while len(vm) > n: vm.pop(0)
                continue
            touched = set(it.rd) | set(it.wr)
            for lst, nm in ((lg, "lgkm"), (vm, "vm")):
                for pend in lst:
                    if pend & touched:
                        print(f"WAIT ERROR [{name}] {nm}: {it.text}  touches pending {sorted(pend & touched)[:4]} (item {idx})"); errs += 1
            if smem_pending & touched:
                print(f"WAIT ERROR [{name}] smem: {it.text}"); errs += 1
            if it.cls == "ds": lg.append(set(it.wr))
            elif it.cls == "vmem" and it.op not in ("buffer_inv","buffer_wbl2"): vm.append(set(it.wr))
            elif it.cls == "smem": smem_pending |= set(it.wr); lg.append(set())
            if len(lg) > 15 and it.cls == "ds":
                pass
        return errs

    def text(self):
        o = []
        for it in self.items:
            if isinstance(it, Ins): o.append("  " + it.text)
            elif it[0] == "label": o.append(it[1] + ":")
            else: o.append(it[1])
        return "\n".join(o) + "\n"

def kernel_header(name):
    return f""".globl {name}
.p2align 8
.type {name},@function
{name}:"""

def kernel_desc(name, vgpr, sgpr, accum):
    return f""".amdhsa_kernel {name}
  .amdhsa_next_free_vgpr {vgpr}
  .amdhsa_next_free_sgpr {sgpr}
  .amdhsa_accum_offset {accum}
  .amdhsa_group_segment_fixed_size 0
  .amdhsa_kernarg_size 72
  .amdhsa_user_sgpr_count 2
  .amdhsa_user_sgpr_kernarg_segment_ptr 1
  .amdhsa_system_sgpr_workgroup_id_x 1
  .amdhsa_float_denorm_mode_32 3
  .amdhsa_float_denorm_mode_16_64 3
.end_amdhsa_kernel"""
```

```python
import sys
from k2 import *

def finish(p, name):
    p.fix_hazards()
    e = p.check_waits(name)
    return e

def k0():
    p = Prog()
    p("s_cmp_ge_u32 s2, 16\ns_cbranch_scc1 L0_end")
    p("s_load_dwordx2 s[4:5], s[0:1], 64\ns_waitcnt lgkmcnt(0)")
    p(f"s_mov_b32 s8, s4\ns_mov_b32 s9, s5\ns_mov_b32 s10, {WS_SIZE}\ns_mov_b32 s11, 0x20000")
    p(f"s_lshl_b32 s3, s2, 12\ns_add_u32 s3, s3, {WS_KVZ}\nv_lshlrev_b32 v1, 4, v0\nv_mov_b32 v4, 0\nv_mov_b32 v5, 0\nv_mov_b32 v6, 0\nv_mov_b32 v7, 0")
    p("buffer_store_dwordx4 v[4:7], v1, s[8:11], s3 offen")
    p("L0_end:\ns_endpgm")
    finish(p, "k0")
    return p

def k1():
    p = Prog()
    prologue(p); role_setup(p); consts(p)
    p(f"s_cmp_ge_u32 s{sW8}, 4\ns_cbranch_scc1 L_B")
    p(f"s_cmp_eq_u32 s{sROLE}, 0\ns_cbranch_scc0 L_AQ")
    groupA_setup(p, 0); groupA_phaseA(p, 0); groupA_epi_F(p, "")
    p("s_branch L_end")
    p("L_AQ:")
    groupA_setup(p, 1); groupA_phaseA(p, 1); groupA_epi_Q(p); groupA_kv_atomics(p)
    p("s_branch L_end")
    p("L_B:")
    p(f"s_cmp_eq_u32 s{sROLE}, 0\ns_cbranch_scc0 L_BQ")
    groupB_setup(p, 0); groupB_phaseA(p, 0); groupB_phaseB(p, 0); groupB_epi_F(p, "")
    p("s_branch L_end")
    p("L_BQ:")
    groupB_setup(p, 1); groupB_phaseA(p, 1); groupB_phaseB(p, 1)
    PQ = groupB_epi_Q(p)
    p(f"v_lshlrev_b32 v2, 4, v1")
    p(f"s_lshl_b32 s{sT4}, s{sI}, 2\ns_add_u32 s{sT4}, s{sT4}, s{sW4}\ns_lshl_b32 s{sT4}, s{sT4}, 5\ns_lshl_b32 s{sT5}, s{sJ}, 2\ns_add_u32 s{sT4}, s{sT4}, s{sT5}")
    p(f"s_lshl_b32 s{sT4}, s{sT4}, 10\ns_add_u32 s{sHB}, s{sT4}, {WS_PQ}")
    p(f"s_and_b32 s{sT1}, s{sW4}, 1\ns_lshl_b32 s{sT1}, s{sT1}, 11")
    for be in range(2):
        for qp in range(2):
            if be == 0: p(f"s_add_u32 s{sT5}, s{sHB}, s{sT1}")
            else:       p(f"s_xor_b32 s{sT5}, s{sT1}, 2048\ns_add_u32 s{sT5}, s{sHB}, s{sT5}")
            p(f"s_add_u32 s{sT5}, s{sT5}, {qp*1024}")
            r = PQ + 8*be + 4*qp
            p(f"buffer_store_dwordx4 v[{r}:{r+3}], v2, s[{S_WS}:{S_WS+3}], s{sT5} offen")
    p("L_end:\ns_endpgm")
    finish(p, "k1")
    return p

def ko():
    p = Prog()
    prologue(p, nwg=128)
    p(f"s_lshr_b32 s{sI}, s2, 3\ns_and_b32 s{sJ}, s2, 7")
    PQ = 152
    p(f"v_lshlrev_b32 v2, 4, v1")
    p(f"s_lshl_b32 s{sT4}, s{sI}, 2\ns_add_u32 s{sT4}, s{sT4}, s{sW4}\ns_lshl_b32 s{sT4}, s{sT4}, 5\ns_lshl_b32 s{sT5}, s{sJ}, 2\ns_add_u32 s{sT4}, s{sT4}, s{sT5}")
    p(f"s_lshl_b32 s{sT4}, s{sT4}, 10\ns_add_u32 s{sHB}, s{sT4}, {WS_PQ}")
    p(f"s_and_b32 s{sT1}, s{sW4}, 1\ns_lshl_b32 s{sT1}, s{sT1}, 11")
    for be in range(2):
        for qp in range(2):
            if be == 0: p(f"s_add_u32 s{sT5}, s{sHB}, s{sT1}")
            else:       p(f"s_xor_b32 s{sT5}, s{sT1}, 2048\ns_add_u32 s{sT5}, s{sHB}, s{sT5}")
            p(f"s_add_u32 s{sT5}, s{sT5}, {qp*1024}")
            r = PQ + 8*be + 4*qp
            p(f"buffer_load_dwordx4 v[{r}:{r+3}], v2, s[{S_WS}:{S_WS+3}], s{sT5} offen")
    p("s_waitcnt vmcnt(0)")
    o_stage(p, PQ, "")
    p("L_end:\ns_endpgm")
    p.items = [(it if isinstance(it, Ins) else ((it[0], it[1].replace("L_end","Lo_end")) if it[0]=="label" else it)) for it in p.items]
    for it in p.items:
        if isinstance(it, Ins) and "L_end" in it.text: it.text = it.text.replace("L_end", "Lo_end")
    finish(p, "ko")
    return p

def k2():
    p = Prog()
    prologue(p)
    p2_setup(p)
    phase2(p, "")
    final_epilogue(p)
    p("L_end:\ns_endpgm")
    p.items = [(it if isinstance(it, Ins) else ((it[0], it[1].replace("L_end","L2_end")) if it[0]=="label" else it)) for it in p.items]
    for it in p.items:
        if isinstance(it, Ins) and "L_end" in it.text: it.text = it.text.replace("L_end", "L2_end")
    finish(p, "k2")
    return p

def build(path, which=("k0","k1","ko","k2")):
    hdr = open("cdna_kernels/" + NAME + ".s.ref").read().split("\n")
    top = [l for l in hdr if l.startswith(";") and "@launch" not in l and "Override" not in l and "grid=" not in l]
    o = []
    o += top
    geo = {"k0": "grid=(16,1,1) block=(256,1,1) lds=0", "k1": f"grid=(256,1,1) block=(512,1,1) lds={LDS_BYTES}",
           "ko": "grid=(128,1,1) block=(256,1,1) lds=0", "k2": f"grid=(256,1,1) block=(256,1,1) lds={LDS_BYTES}"}
    for k in which: o.append(f"; @launch kernel={k}_kernel {geo[k]}")
    o.append('.amdgcn_target "amdgcn-amd-amdhsa--gfx950"\n.text')
    gens = {"k0": k0, "k1": k1, "ko": ko, "k2": k2}
    for k in which:
        o.append(kernel_header(k + "_kernel"))
        o.append(gens[k]().text())
    o.append('.section .rodata,"a"')
    for k in which:
        o.append(".p2align 6")
        o.append(kernel_desc(k + "_kernel", 256, 96, 256))
    open(path, "w").write("\n".join(o) + "\n")

if __name__ == "__main__":
    build("multi.s")
```

```python
import re
NAME = "recurrent_scan__linear_attn_block__dense_activation_silu__prompt"

TRANS = ("v_exp_f32", "v_log_f32", "v_rcp_f32", "v_rsq_f32", "v_sqrt_f32", "v_sin_f32", "v_cos_f32", "v_rcp_iflag_f32")

def regs_of(tok):
    tok = tok.strip()
    tok = re.sub(r"^-|^\||\|$|^abs\(|^neg\(|\)$", "", tok)
    m = re.fullmatch(r"([vsa])(\d+)", tok)
    if m: return [(m.group(1), int(m.group(2)))]
    m = re.fullmatch(r"([vsa])\[(\d+):(\d+)\]", tok)
    if m: return [(m.group(1), i) for i in range(int(m.group(2)), int(m.group(3)) + 1)]
    if tok == "vcc": return [("s", "vcc")]
    if tok == "exec": return [("s", "exec")]
    if tok == "m0": return [("s", "m0")]
    if tok == "scc": return [("s", "scc")]
    return []

class Ins:
    __slots__ = ("text", "op", "ops", "mods", "cls", "wr", "rd", "auto")
    def __init__(self, text, auto=False):
        self.text = text; self.auto = auto
        t = text.split(";")[0].strip()
        parts = t.split(None, 1)
        self.op = parts[0]
        rest = parts[1] if len(parts) > 1 else ""
        ops = []; cur = ""; depth = 0
        for ch in rest:
            if ch == "[": depth += 1
            if ch == "]": depth -= 1
            if ch == "," and depth == 0: ops.append(cur.strip()); cur = ""
            else: cur += ch
        if cur.strip(): ops.append(cur.strip())
        self.mods = []
        if ops:
            lp = ops[-1].split()
            ops[-1] = lp[0]; self.mods = lp[1:]
        self.ops = ops
        for m in self.mods:
            if m.startswith("offset:"):
                v = int(m.split(":")[1], 0)
                if self.op.startswith("buffer_"): assert 0 <= v < 4096, "MUBUF offset too large: " + text
                elif self.op.startswith("ds_"): assert 0 <= v < 65536, "DS offset too large: " + text
                elif self.op.startswith("global_"): assert -4096 <= v < 4096, "global offset: " + text
        self.classify()
    def classify(self):
        op = self.op; o = self.ops
        R = lambda i: regs_of(o[i]) if i < len(o) else []
        wr = []; rd = []
        if op.startswith("v_mfma"):
            self.cls = "mfma"; wr = R(0); rd = R(1) + R(2) + R(3)
        elif op.startswith("v_"):
            self.cls = "trans" if op.replace("_e32","").replace("_e64","") in TRANS else "valu"
            base = op.replace("_e32","").replace("_e64","").replace("_dpp","").replace("_sdwa","")
            if base.startswith("v_cmp"):
                wr = R(0); rd = R(1) + R(2)
            elif base in ("v_readfirstlane_b32", "v_readlane_b32"):
                wr = R(0); rd = R(1) + R(2)
            elif base.startswith("v_permlane") and "swap" in base:
                wr = R(0) + R(1); rd = R(0) + R(1)
            elif base in ("v_fmac_f32", "v_dot2c_f32_bf16", "v_fmaak_f32x"):
                wr = R(0); rd = R(0) + R(1) + R(2)
            elif base in ("v_add_co_u32", "v_sub_co_u32"):
                wr = R(0) + R(1); rd = R(2) + R(3)
            elif base in ("v_addc_co_u32",):
                wr = R(0) + R(1); rd = R(2) + R(3) + R(4)
            elif base == "v_cndmask_b32":
                wr = R(0); rd = R(1) + R(2) + (R(3) if len(o) > 3 else [("s","vcc")])
            elif base == "v_nop":
                pass
            else:
                wr = R(0); rd = sum((R(i) for i in range(1, len(o))), [])
            if "_dpp" in op or any(m.startswith(("row_","quad_perm","wave_")) for m in self.mods): self.cls = "valu"
        elif op.startswith("ds_"):
            self.cls = "ds"
            if op.startswith("ds_read") or op.startswith("ds_bpermute") or op.startswith("ds_swizzle") or op.startswith("ds_permute"):
                wr = R(0); rd = sum((R(i) for i in range(1, len(o))), [])
            else:
                rd = sum((R(i) for i in range(0, len(o))), [])
        elif op.startswith("buffer_") or op.startswith("global_"):
            self.cls = "vmem"
            if op in ("buffer_inv", "buffer_wbl2"):
                pass
            elif "lds" in self.mods or "_lds_" in op:
                rd = sum((R(i) for i in range(0, len(o))), []) + [("s","m0")]
            elif "load" in op:
                wr = R(0); rd = sum((R(i) for i in range(1, len(o))), [])
            elif "atomic" in op:
                rd = sum((R(i) for i in range(0, len(o))), [])
                if "sc0" in self.mods: wr = R(0) if op.startswith("buffer") else R(0)
            else:
                rd = sum((R(i) for i in range(0, len(o))), [])
        elif op.startswith("s_"):
            self.cls = "salu"
            if op in ("s_waitcnt","s_barrier","s_nop","s_endpgm","s_branch","s_sleep","s_setprio") or op.startswith("s_cbranch"):
                self.cls = "ctl"
                if op in ("s_cbranch_vccz","s_cbranch_vccnz"): rd = [("s","vcc")]
                if op in ("s_cbranch_execz","s_cbranch_execnz"): rd = [("s","exec")]
            elif op.startswith("s_cmp") or op.startswith("s_bitcmp"):
                rd = R(0) + R(1)
            elif op.startswith("s_load") or op.startswith("s_memtime") or op.startswith("s_memrealtime"):
                self.cls = "smem"; wr = R(0); rd = R(1)
            elif "saveexec" in op:
                wr = R(0) + [("s","exec")]; rd = R(1) + [("s","exec")]
            else:
                wr = R(0); rd = sum((R(i) for i in range(1, len(o))), [])
                if op in ("s_addc_u32","s_cselect_b32","s_cselect_b64","s_subb_u32"): pass
        else:
            raise ValueError("unknown instr: " + self.text)
        self.wr = wr; self.rd = rd
    def states(self):
        if self.op == "s_nop": return int(self.ops[0], 0) + 1
        return 1

def mfma_passes(ins):
    if "32x32x16" in ins.op: return 8
    if "16x16x32" in ins.op: return 4
    if "16x16x16" in ins.op: return 4
    if "32x32x8" in ins.op: return 8
    raise ValueError(ins.op)

class Prog:
    def __init__(self):
        self.items = []
    def __call__(self, s):
        for l in s.split("\n"):
            l = l.strip()
            if not l: continue
            if l.startswith(";") or l.startswith("."):
                self.items.append(("raw", l))
            elif l.endswith(":"):
                self.items.append(("label", l[:-1]))
            else:
                self.items.append(Ins(l))
    def label(self, n): self.items.append(("label", n))
    def raw(self, t): self.items.append(("raw", t))

    @staticmethod
    def need(p, c):
        n = 0
        pw = set(p.wr);
        vw = {r for r in pw if r[0] in "va"}
        sw = {r for r in pw if r[0] == "s"}
        crd = set(c.rd); cwr = set(c.wr)
        if p.cls in ("valu", "trans"):
            if c.cls == "mfma" and vw & crd: n = max(n, 2)
            if p.cls == "trans" and c.cls in ("valu", "mfma", "vmem", "ds") and vw & crd: n = max(n, 1)
            if c.op.startswith(("v_readfirstlane", "v_readlane")) and vw & crd: n = max(n, 1)
            if "permlane" in c.op and vw & crd: n = max(n, 2)
            if ("_dpp" in c.op) and vw & crd: n = max(n, 2)
            if sw:
                if c.cls == "vmem" and sw & crd: n = max(n, 5)
                if c.cls in ("valu", "trans") and sw & crd: n = max(n, 2)
                if c.op.startswith(("v_readlane","v_writelane")) and sw & crd: n = max(n, 4)
                if c.cls in ("salu",) and sw & crd: n = max(n, 1)
                if c.op in ("s_cbranch_vccz","s_cbranch_vccnz") and ("s","vcc") in sw: n = max(n, 1)
        if p.cls == "mfma":
            ps = mfma_passes(p)
            big = {2:5, 4:8, 8:12, 16:20}[ps]
            if c.cls == "mfma":
                cA = set(regs_of(c.ops[1])) | set(regs_of(c.ops[2]))
                cC = set(regs_of(c.ops[3]))
                if vw & cA: n = max(n, big)
                if vw & cC:
                    if set(regs_of(c.ops[3])) == set(regs_of(p.ops[0])) and mfma_passes(c) == ps: pass
                    else: n = max(n, {2:4,4:6,8:10,16:18}[ps])
                if vw & cwr and not (vw & cC):
                    n = max(n, big)
            elif c.cls in ("valu", "trans", "vmem", "ds"):
                if vw & (crd | cwr): n = max(n, big)
            if c.cls in ("valu", "trans"):
                pC = set(regs_of(p.ops[3]))
                if pC & cwr: n = max(n, {2:1,4:3,8:7,16:15}[ps])
        if p.cls == "salu" and ("s","m0") in sw and c.cls == "vmem" and ("s","m0") in crd: n = max(n, 1)
        if p.cls == "vmem" and ("store" in p.op) and ("x4" in p.op or "x3" in p.op):
            data = set(regs_of(p.ops[0] if p.op.startswith("buffer") else p.ops[1]))
            if data & cwr and c.cls in ("valu","trans"): n = max(n, 2)
            elif data & cwr: n = max(n, 1)
        if p.cls == "salu" and ("s","exec") in sw and c.cls == "mfma": n = max(n, 0)
        return n

    def fix_hazards(self):
        out = []
        window = []
        for it in self.items:
            if not isinstance(it, Ins):
                if it[0] == "label":
                    pass
                out.append(it); continue
            need = 0
            for (p, age) in window:
                d = self.need(p, it) - age
                if d > need: need = d
            if need > 0:
                k = need
                while k > 0:
                    m = min(k, 16)
                    nop = Ins(f"s_nop {m-1}", auto=True); out.append(nop)
                    k -= m
                window = [(p, a + need) for (p, a) in window]
            out.append(it)
            st = it.states()
            window = [(p, a + st) for (p, a) in window if a + st < 24]
            window.append((it, 0))
            if it.op in ("s_branch", "s_endpgm"): window = []
        self.items = out

    def check_waits(self, name=""):
        lg = []
        vm = []
        errs = 0
        smem_pending = set()
        for idx, it in enumerate(self.items):
            if not isinstance(it, Ins):
                continue
            if it.op == "s_waitcnt":
                t = " ".join(it.ops + it.mods)
                m = re.search(r"lgkmcnt\((\d+)\)", t)
                if m:
                    n = int(m.group(1))
                    while len(lg) > n: lg.pop(0)
                    if n == 0: smem_pending = set()
                m = re.search(r"vmcnt\((\d+)\)", t)
                if m:
                    n = int(m.group(1))
                    while len(vm) > n: vm.pop(0)
                continue
            if it.op in ("s_branch", "s_endpgm"):
                lg = []; vm = []; smem_pending = set()
                continue
            touched = set(it.rd) | set(it.wr)
            for lst, nm in ((lg, "lgkm"), (vm, "vm")):
                for pend in lst:
                    if pend & touched:
                        errs += 1
                        if errs <= 8: print(f"WAIT ERROR [{name}] {nm}: {it.text}  touches pending {sorted(pend & touched)[:4]} (item {idx})")
            if smem_pending & touched:
                print(f"WAIT ERROR [{name}] smem: {it.text}"); errs += 1
            if it.cls == "ds": lg.append(set(it.wr))
            elif it.cls == "vmem" and it.op not in ("buffer_inv","buffer_wbl2"): vm.append(set(it.wr))
            elif it.cls == "smem": smem_pending |= set(it.wr); lg.append(set())
            if len(lg) > 15 and it.cls == "ds":
                pass
        if errs: print(f"[{name}] total wait errors: {errs}")
        return errs

    def text(self):
        o = []
        for it in self.items:
            if isinstance(it, Ins): o.append("  " + it.text)
            elif it[0] == "label": o.append(it[1] + ":")
            else: o.append(it[1])
        return "\n".join(o) + "\n"

def kernel_header(name):
    return f""".globl {name}
.p2align 8
.type {name},@function
{name}:"""

def kernel_desc(name, vgpr, sgpr, accum):
    return f""".amdhsa_kernel {name}
  .amdhsa_next_free_vgpr {vgpr}
  .amdhsa_next_free_sgpr {sgpr}
  .amdhsa_accum_offset {accum}
  .amdhsa_group_segment_fixed_size 0
  .amdhsa_kernarg_size 72
  .amdhsa_user_sgpr_count 2
  .amdhsa_user_sgpr_kernarg_segment_ptr 1
  .amdhsa_system_sgpr_workgroup_id_x 1
  .amdhsa_float_denorm_mode_32 3
  .amdhsa_float_denorm_mode_16_64 3
.end_amdhsa_kernel"""
```

```python
import sys
from prog import *
import struct
def f2u(x): return struct.unpack("<I", struct.pack("<f", x))[0]
def fhex(x): return "0x%08x" % f2u(x)
LOG2E = 1.4426950408889634
LN2 = 0.6931471805599453

OPT = dict(nowarm=1, ntH=1, lead=2, DA=3, w2at=6)

WS_FA, WS_FB, WS_FO = 0, 4096, 8192
WS_C2 = 12288
WS_FA2 = 16384 + 4096
WS_NONCE = 16384
WS_KVZ = 0x10000
WS_STG = 0x30000
WS_CSP = 0x40000
WS_H   = 0x100000
WS_O   = 0x900000
WS_SIZE = 0x1000000
WS_DIAG = 0xF00000

SLOT = 32768
L_P2 = 98304
NS = 7
L_MISC = L_P2 + 4 * NS * 2048
L_RS = L_MISC; L_NMR = L_MISC + 512
L_CSA = L_MISC + 1024
L_CSB = L_MISC + 1536
L_CNT = L_MISC + 2040
L_NONCE = L_MISC + 2032
L_LF = L_MISC + 2000
L_CF = L_MISC + 2016
L_CS2 = L_MISC + 2020
L_W1 = L_MISC + 2024
L_W2 = L_MISC + 2028
L_SPARE = L_MISC + 2048
L_CSPL = L_SPARE
LDS_BYTES = 163840
assert L_SPARE + 6144 == LDS_BYTES

S_X, S_W, S_WS, S_W2, S_WO, S_OUT, S_DBG = 4, 8, 12, 16, 20, 24, 28
sW8, sW4, sI, sJ, sROLE, sR0, sRS = 32, 33, 34, 35, 36, 37, 38
sBO = 39
sT0, sT1, sT2, sT3, sT4, sT5 = 40, 41, 42, 43, 44, 45
sXB, sWB_, sLX, sLW, sXK, sWK, sWBB, sLWB, sK64, sHB = 46, 47, 48, 49, 50, 51, 52, 53, 54, 55
sMASKH = 56
sCOLA, sCOLB = 58, 59
sTMP = 60
sT2i, sC, sAH, sAH1, sBW, sLB, sAO, sAO1 = 62, 63, 64, 65, 66, 67, 68, 69
sLN2, sCEPS = 70, 71
sZ, sROT, sPA, sPB = 72, 73, 74, 75
sBB2 = 0
sNONCE = 57 + 0
sWSP = 92
sPOLL = 96
SPIN = 5000
sNONCE = 3 + 0
sNONCE = 1
DBG_NONCE = 128

STAMPS = {"on": False, "n": 0, "names": {}}
VSTAMP = 12
def stamp(p, name=""):
    if not STAMPS["on"]: return
    n = STAMPS["n"]; STAMPS["n"] += 1
    assert n < 62
    STAMPS["names"].setdefault(STAMPS.get("path", ""), {})[n] = name
    p(f"s_memtime s[100:101]\ns_waitcnt lgkmcnt(0)\nv_writelane_b32 v{VSTAMP}, s100, {n}")
def stamp_reset(n=0, path=None):
    STAMPS["n"] = n
    if path is not None: STAMPS["path"] = path
def stamp_dump(p):
    if not STAMPS["on"]: return
    p(f"s_memrealtime s[100:101]\ns_waitcnt lgkmcnt(0)\nv_writelane_b32 v{VSTAMP}, s100, 63")
    p(f"s_lshl_b32 s{sT0}, s2, 11\ns_lshl_b32 s{sT1}, s{sW8}, 8\ns_add_u32 s{sT0}, s{sT0}, s{sT1}\ns_add_u32 s{sT0}, s{sT0}, {WS_DIAG}")
    p(f"v_lshlrev_b32 v2, 2, v1\nbuffer_store_dword v{VSTAMP}, v2, s[{S_WS}:{S_WS+3}], s{sT0} offen")

_lbl = [0]
def newlbl(s):
    _lbl[0] += 1
    return f"{s}_{_lbl[0]}"

def srd(p, dst, lo, nbytes):
    p(f"s_mov_b32 s{dst}, s{lo}\ns_mov_b32 s{dst+1}, s{lo+1}\ns_mov_b32 s{dst+2}, {nbytes}\ns_mov_b32 s{dst+3}, 0x20000")

KX, KQKV, KWO, KW1, KW2, KOUT, KDBG = 76, 78, 80, 84, 86, 88, 90

def prologue(p):
    p("s_cmp_ge_u32 s2, 256\ns_cbranch_scc1 L_end")
    p(f"s_load_dwordx4 s[{KX}:{KX+3}], s[0:1], 0")
    p(f"s_load_dwordx4 s[{KW1}:{KW1+3}], s[0:1], 32")
    p(f"s_load_dwordx2 s[{sWSP}:{sWSP+1}], s[0:1], 64")
    p(f"s_load_dwordx2 s[{KWO}:{KWO+1}], s[0:1], 16")
    p(f"s_load_dwordx4 s[{KOUT}:{KOUT+3}], s[0:1], 48")
    p("s_getpc_b64 s[94:95]")
    p("v_and_b32 v1, 63, v0\nv_lshrrev_b32 v2, 6, v0")
    p("s_lshr_b32 s3, s2, 3\ns_lshl_b32 s3, s3, 11\nv_lshlrev_b32 v14, 7, v0\nv_add_u32 v14, s3, v14\nv_cmp_gt_u32 vcc, 16, v0")
    p("s_and_saveexec_b64 s[98:99], vcc\ns_cbranch_execz L_nopf")
    p("global_load_dword v15, v14, s[94:95]")
    p("L_nopf:\ns_mov_b64 exec, s[98:99]")
    p(f"v_readfirstlane_b32 s{sW8}, v2")
    p(f"s_and_b32 s{sT0}, s2, 7\ns_lshr_b32 s{sT1}, s2, 3")
    p(f"s_and_b32 s{sT2}, s{sT0}, 1\ns_lshl_b32 s{sT2}, s{sT2}, 3\ns_and_b32 s{sT3}, s{sT1}, 7\ns_add_u32 s{sI}, s{sT2}, s{sT3}")
    p(f"s_lshr_b32 s{sT3}, s{sT1}, 3\ns_lshr_b32 s{sROLE}, s{sT3}, 1")
    p(f"s_lshr_b32 s{sT2}, s{sT0}, 1\ns_lshl_b32 s{sT2}, s{sT2}, 1\ns_and_b32 s{sT4}, s{sT3}, 1\ns_add_u32 s{sJ}, s{sT2}, s{sT4}")
    p(f"s_lshl_b32 s{sT4}, s{sT3}, 1\ns_add_u32 s{sR0}, s{sI}, s{sT4}\ns_and_b32 s{sR0}, s{sR0}, 7")
    p(f"s_and_b32 s{sW4}, s{sW8}, 3")
    p(f"s_mul_i32 s{sT0}, s{sJ}, 224\ns_and_b32 s{sT1}, s{sJ}, 1\ns_mul_i32 s{sT2}, s{sT1}, 96\ns_add_u32 s{sCOLA}, s{sT0}, s{sT2}")
    p(f"s_xor_b32 s{sT1}, s{sT1}, 1\ns_lshl_b32 s{sT1}, s{sT1}, 7\ns_add_u32 s{sCOLB}, s{sT0}, s{sT1}")
    p(f"s_lshl_b32 s{sT0}, s{sJ}, 6\ns_add_u32 s{sT1}, s{sT0}, 512")
    p(f"s_cmp_eq_u32 s{sROLE}, 0")
    p(f"s_cselect_b32 s{sCOLA}, s{sCOLA}, s{sT1}\ns_cselect_b32 s{sCOLB}, s{sCOLB}, s{sT0}")
    p(f"s_mov_b32 s{sT0}, 3584\ns_mov_b32 s{sT1}, 3072\ns_cselect_b32 s{sRS}, s{sT0}, s{sT1}")
    p(f"s_mov_b32 s{sT0}, 1835008\ns_mov_b32 s{sT1}, 1572864\ns_cselect_b32 s{S_W+2}, s{sT0}, s{sT1}\ns_mov_b32 s{S_W+3}, 0x20000")
    p(f"s_lshl_b32 s{sK64}, s{sRS}, 6")
    p("s_waitcnt lgkmcnt(0)")
    p(f"s_cmp_eq_u32 s{sROLE}, 0")
    p(f"s_cselect_b32 s{S_W}, s{KW1}, s{KQKV}\ns_cselect_b32 s{S_W+1}, s{KW1+1}, s{KQKV+1}")
    srd(p, S_X, KX, 2097152)

def prologue2(p):
    srd(p, S_WS, sWSP, WS_SIZE)
    srd(p, S_W2, KW2, 1835008)
    srd(p, S_WO, KWO, 524288)
    srd(p, S_OUT, KOUT, 2097152)
    srd(p, S_DBG, KDBG, 256)
    p(f"s_mov_b32 s{sLN2}, {fhex(LN2)}\ns_mov_b32 s{sCEPS}, {fhex(1e-6/LN2)}")

def make_sel(p, base, t0, t1):
    p(f"v_and_b32 v{t0}, 15, v1\nv_lshrrev_b32 v{t1}, 4, v1\nv_and_b32 v{t1}, 1, v{t1}")
    p(f"v_cmp_eq_u32 vcc, v{t0}, v{t1}")
    p(f"v_mov_b32 v{t0}, 0x3f803f80")
    p(f"v_cndmask_b32 v{base}, 0, v{t0}, vcc")
    for k in range(1, 4): p(f"v_mov_b32 v{base+k}, v{base}")

def code_touch(p, start, end, vdst):
    L = newlbl("L_ct")
    kn = NAME + "_kernel"
    p(f"s_getpc_b64 s[94:95]\n{L}:")
    p(f"s_sub_u32 s94, s94, {L}-{kn}\ns_subb_u32 s95, s95, 0\ns_add_u32 s94, s94, {start}-{kn}\ns_addc_u32 s95, s95, 0")
    p(f"s_mov_b32 s{sT0}, ({end}-{start}+511)/512\ns_mul_i32 s{sT1}, s{sT0}, s{sW4}\ns_sub_u32 s{sT0}, s{sT0}, 1")
    p(f"v_min_u32 v2, s{sT0}, v1\nv_add_u32 v2, s{sT1}, v2\nv_lshlrev_b32 v2, 7, v2")
    p(f"global_load_dword v{vdst}, v2, s[94:95]")

def interleave(p, main, fill):
    n = len(main); m = len(fill); k = 0
    for i, s in enumerate(main):
        while k < m and k * n <= i * m:
            p(fill[k]); k += 1
        p(s)
    while k < m:
        p(fill[k]); k += 1

def store_flag(p, soff_code):
    p(soff_code)
    p(f"v_mov_b32 v2, 0\nv_mov_b32 v3, s{sNONCE}\ns_mov_b64 exec, 1\nbuffer_store_dword v3, v2, s[{S_WS}:{S_WS+3}], s{sT0} offen sc1\ns_mov_b64 exec, -1")

class BR:
    ACC = 16; WF = 64
    CS = 100
    XOFF0, XOFF1, WOFF = 104, 105, 106
    WBOFF = 107; XR = 110; WBL = 114
    SEL = 118; RS, NMR = 122, 123
    TA = 124; WBA = 124
    PFD = 117
    XO = 48
    WO = 52
    WQ1 = 103 + 0
    X = 128

def wb_base(role, k):
    return k * (3072 if role == 0 else 2048)

def B_setup(p, role):
    B = BR
    p(f"v_lshrrev_b32 v2, 3, v1\nv_lshlrev_b32 v5, 10, v2")
    p(f"v_and_b32 v3, 7, v1\nv_lshrrev_b32 v4, 4, v1\nv_xor_b32 v6, v3, v4\nv_lshlrev_b32 v6, 4, v6")
    p(f"v_add_u32 v{B.XOFF0}, v5, v6\nv_xor_b32 v{B.XOFF1}, 64, v{B.XOFF0}")
    p(f"v_mul_lo_u32 v2, v2, s{sRS}")
    p(f"v_and_b32 v4, 1, v4\nv_lshlrev_b32 v4, 2, v4\nv_xor_b32 v3, v3, v4\nv_lshlrev_b32 v3, 4, v3")
    p(f"v_add_u32 v{B.WOFF}, v2, v3")
    p(f"v_mov_b32 v{B.XO}, v{B.XOFF0}\nv_add_u32 v{B.XO+1}, 7168, v{B.XOFF1}\nv_add_u32 v{B.XO+2}, {2*7168}, v{B.XOFF0}\nv_add_u32 v{B.XO+3}, {3*7168}, v{B.XOFF1}")
    p(f"s_lshl_b32 s{sT5}, s{sRS}, 3\ns_sub_u32 s{sT5}, s{sT5}, 1024\nv_mov_b32 v{B.WO}, v{B.WOFF}")
    for t in range(1, 4): p(f"v_add_u32 v{B.WO+t}, s{sT5}, v{B.WO+t-1}")
    p(f"s_lshl_b32 s{sT0}, s{sI}, 7\ns_lshl_b32 s{sT1}, s{sW4}, 5\ns_add_u32 s{sT0}, s{sT0}, s{sT1}\ns_lshl_b32 s{sXB}, s{sT0}, 10")
    p(f"s_lshl_b32 s{sLX}, s{sW4}, 12")
    p(f"s_lshr_b32 s{sT0}, s{sW4}, 1\ns_and_b32 s{sT1}, s{sW4}, 1")
    p(f"s_lshl_b32 s{sT2}, s{sT1}, 5\ns_mul_i32 s{sT2}, s{sT2}, s{sRS}")
    p(f"s_lshl_b32 s{sT3}, s{sCOLA}, 1\ns_lshl_b32 s{sT4}, s{sT0}, {7 if role == 0 else 10}\ns_add_u32 s{sT3}, s{sT3}, s{sT4}")
    p(f"s_add_u32 s{sWB_}, s{sT2}, s{sT3}")
    p(f"s_lshl_b32 s{sT2}, s{sT0}, 13\ns_lshl_b32 s{sT3}, s{sT1}, 12\ns_add_u32 s{sLW}, s{sT2}, s{sT3}\ns_add_u32 s{sLW}, s{sLW}, 16384")

def B_setup2(p, role):
    B = BR
    p(f"v_and_b32 v2, 31, v1\nv_lshrrev_b32 v3, 5, v1")
    p(f"v_lshrrev_b32 v4, 1, v2\nv_and_b32 v4, 7, v4\nv_xor_b32 v4, v4, v3\nv_lshlrev_b32 v4, 4, v4")
    p(f"v_lshlrev_b32 v5, 7, v2\nv_add_u32 v4, v4, v5\nv_add_u32 v4, s{sLX}, v4")
    for pp in range(4): p(f"v_xor_b32 v{B.XR+pp}, {pp*32}, v4")
    p(f"s_lshl_b32 s{sT0}, s{sW4}, 4\ns_mul_i32 s{sT0}, s{sT0}, s{sRS}\ns_lshl_b32 s{sT1}, s{sCOLB}, 1\ns_add_u32 s{sWBB}, s{sT0}, s{sT1}")
    if role == 0:
        for t in range(3):
            p(f"v_add_u32 v2, {64*t}, v1\ns_mov_b32 s{sT0}, 43691\nv_mul_lo_u32 v3, v2, s{sT0}\nv_lshrrev_b32 v3, 19, v3")
            p(f"v_mul_u32_u24 v4, 12, v3\nv_sub_u32 v4, v2, v4\nv_lshlrev_b32 v4, 4, v4\nv_mul_lo_u32 v3, v3, s{sRS}\nv_add_u32 v{B.WBOFF+t}, v3, v4")
            if t: p(f"v_subrev_u32 v{B.WBOFF+t}, {t*1024}, v{B.WBOFF+t}")
        p(f"s_mul_i32 s{sLWB}, s{sW4}, 3072")
        p(f"v_lshrrev_b32 v2, 5, v1\nv_lshlrev_b32 v2, 3, v2\nv_and_b32 v3, 15, v1\nv_lshrrev_b32 v4, 2, v3\nv_add_u32 v2, v2, v4\nv_mul_u32_u24 v2, 192, v2")
        p(f"v_lshrrev_b32 v4, 4, v1\nv_and_b32 v4, 1, v4\nv_lshlrev_b32 v4, 5, v4\nv_add_u32 v2, v2, v4\nv_and_b32 v4, 3, v3\nv_lshlrev_b32 v4, 3, v4\nv_add_u32 v2, v2, v4")
        for be in range(3):
            p(f"s_add_u32 s{sT0}, s{sW4}, {be}\ns_cmp_ge_u32 s{sT0}, 3\ns_cselect_b32 s{sT1}, 3, 0\ns_sub_u32 s{sT0}, s{sT0}, s{sT1}")
            p(f"s_cmp_ge_u32 s{sT0}, 3\ns_cselect_b32 s{sT1}, 3, 0\ns_sub_u32 s{sT0}, s{sT0}, s{sT1}\ns_lshl_b32 s{sT0}, s{sT0}, 6")
            p(f"v_add_u32 v{B.WBL+be}, s{sT0}, v2")
    else:
        p(f"s_lshl_b32 s{sLWB}, s{sW4}, 11")
        p(f"v_mov_b32 v{B.WBOFF}, v{B.WOFF}\ns_lshl_b32 s{sT5}, s{sRS}, 3\ns_sub_u32 s{sT5}, s{sT5}, 1024\nv_add_u32 v{B.WBOFF+1}, s{sT5}, v{B.WOFF}")
        p(f"v_lshrrev_b32 v2, 5, v1\nv_lshlrev_b32 v2, 3, v2\nv_and_b32 v3, 15, v1\nv_lshrrev_b32 v4, 2, v3\nv_add_u32 v2, v2, v4\nv_lshlrev_b32 v2, 7, v2")
        p(f"v_lshrrev_b32 v4, 3, v3\nv_lshlrev_b32 v4, 6, v4\nv_add_u32 v2, v2, v4")
        p(f"v_lshrrev_b32 v4, 4, v1\nv_and_b32 v4, 1, v4\nv_lshlrev_b32 v4, 5, v4\nv_add_u32 v2, v2, v4\nv_and_b32 v4, 3, v3\nv_lshlrev_b32 v4, 3, v4\nv_add_u32 v2, v2, v4")
        p(f"s_and_b32 s{sT0}, s{sW4}, 1\ns_lshl_b32 s{sT0}, s{sT0}, 6\nv_xor_b32 v{B.WBL}, s{sT0}, v2\nv_xor_b32 v{B.WBL+1}, 64, v{B.WBL}")
    make_sel(p, B.SEL, 2, 3)

def dma_stage(stage, xfirst=False):
    B = BR
    slot = (stage % 4) * SLOT
    pre = (f"s_add_u32 s{sT0}, s{sR0}, {stage}\ns_and_b32 s{sT0}, s{sT0}, 7\n"
           f"s_lshl_b32 s{sT1}, s{sT0}, 7\ns_add_u32 s{sXK}, s{sXB}, s{sT1}\n"
           f"s_mul_i32 s{sT1}, s{sT0}, s{sK64}\ns_add_u32 s{sWK}, s{sWB_}, s{sT1}")
    gx = [f"buffer_load_dwordx4 v{B.XO+t}, s[{S_X}:{S_X+3}], s{sXK} offen offset:{t*1024} lds" for t in range(4)]
    gw = [f"buffer_load_dwordx4 v{B.WO+t}, s[{S_W}:{S_W+3}], s{sWK} offen offset:{t*1024} lds" for t in range(4)]
    gx[0] = f"s_add_u32 m0, s{sLX}, {slot}\n" + gx[0]
    gw[0] = f"s_add_u32 m0, s{sLW}, {slot}\n" + gw[0]
    g = gx + gw
    g[0] = pre + "\n" + g[0]
    return g

def dma_wb(t, role):
    B = BR
    b0 = wb_base(role, 4*t)
    pre = (f"s_add_u32 s{sT0}, s{sR0}, {t}\ns_and_b32 s{sT0}, s{sT0}, 7\n"
           f"s_mul_i32 s{sT1}, s{sT0}, s{sK64}\ns_add_u32 s{sWK}, s{sWBB}, s{sT1}\ns_add_u32 m0, s{sLWB}, {b0}")
    n = 3 if role == 0 else 2
    g = [f"buffer_load_dwordx4 v{B.WBOFF+u}, s[{S_W}:{S_W+3}], s{sWK} offen offset:{u*1024} lds" for u in range(n)]
    return [pre + "\n" + "\n".join(g)]

def B_phaseA(p, role):
    B = BR
    nb = 3 if role == 0 else 2
    stamp(p, "B:setup")
    for g in dma_stage(0): p(g)
    stamp(p, "B:dma0")
    for g in dma_stage(1, xfirst=True): p(g)
    for g in dma_stage(2): p(g)
    nwarm = 0
    if not OPT.get("nowarm"):
        A_prefetch_setup(p)
        p(f"v_lshlrev_b32 v2, 7, v1\nbuffer_load_dword v{B.PFD}, v2, s[96:99], s{sPA} offen")
        nwarm = 1
    stamp(p, "B:dma012")
    prologue2(p)
    B_setup2(p, role)
    VST, VCS, LD, ST4, PZ = 16, 17, 20, 36, 40
    p(f"s_lshl_b32 s{sT3}, s{sI}, 11\ns_lshl_b32 s{sT4}, s{sW4}, 9\ns_add_u32 s{sT3}, s{sT3}, s{sT4}\ns_add_u32 s{sT3}, s{sT3}, {WS_STG}\nv_and_b32 v2, 31, v1\nv_lshlrev_b32 v2, 4, v2\nv_add_u32 v{VST}, s{sT3}, v2")
    p(f"s_lshl_b32 s{sT2}, s{sROLE}, 3\ns_add_u32 s{sT2}, s{sT2}, s{sJ}\ns_lshl_b32 s{sT3}, s{sT2}, 14\ns_add_u32 s{sT3}, s{sT3}, {WS_CSP}\ns_lshl_b32 s{sT4}, s{sW4}, 8\ns_add_u32 s{sT3}, s{sT3}, s{sT4}")
    p(f"v_lshrrev_b32 v2, 5, v1\nv_lshlrev_b32 v2, 13, v2\nv_and_b32 v3, 31, v1\nv_lshlrev_b32 v3, 3, v3\nv_add_u32 v2, v2, v3\nv_add_u32 v{VCS}, s{sT3}, v2")
    def preloads():
        o = [f"buffer_load_dwordx4 v[{ST4}:{ST4+3}], v{VST}, s[{S_WS}:{S_WS+3}], 0 offen sc1"]
        for q in range(8):
            so = "0" if q < 4 else f"s{sMASKH}"
            o.append(f"buffer_load_dwordx2 v[{LD+2*q}:{LD+2*q+1}], v{VCS}, s[{S_WS}:{S_WS+3}], {so} offen offset:{(q & 3)*1024} sc1")
        return o
    p(f"s_mov_b32 s{sMASKH}, 4096")
    if role == 0:
        wbs = {5: (0,), 6: (1, 2), 7: (3,)} if not OPT.get("wblate") else {5: (), 6: (0,), 7: (1,)}
    else:
        wbs = {5: (0, 1), 6: (2, 3), 7: ()} if not OPT.get("wblate") else {5: (), 6: (0, 1), 7: (2, 3)}
    ops = []
    ops += ["s0"]*8 + ["s1"]*8 + ["s2"]*8 + ["w"]*nwarm
    def wait_for(tag):
        last = max(i for i, t in enumerate(ops) if t == tag)
        return len(ops) - 1 - last
    for s in range(8):
        p(f"s_waitcnt vmcnt({wait_for('s%d' % s)}) lgkmcnt(0)")
        stamp(p, f"B:landed{s}")
        p("s_barrier")
        if s <= 4: fill = dma_stage(s + 3); tags = ["s%d" % (s + 3)] * 8
        else:
            fill = sum((dma_wb(t, role) for t in wbs[s]), []); tags = sum((["b%d" % t] * nb for t in wbs[s]), [])
        slot = (s % 4) * SLOT
        for pp in range(4):
            k = 4 * s + pp
            p(f"v_add_u32 v{B.TA+pp}, {slot}, v{B.XR+pp}\nds_read_b128 v[{B.X+4*k}:{B.X+4*k+3}], v{B.TA+pp}")
        if s == 0:
            p(f"v_mov_b32 v3, {L_NONCE}\nds_read_b32 v4, v3\ns_waitcnt lgkmcnt(0)\nv_readfirstlane_b32 s{sNONCE}, v4")
        for g in fill: p(g)
        ops += tags
        if s == 2:
            p(f"v_and_b32 v2, 15, v1\nv_lshlrev_b32 v3, 3, v2\ns_lshl_b32 s{sT0}, s{sW4}, 7\ns_add_u32 s{sT0}, s{sT0}, {L_CSPL}\nv_add_u32 v3, s{sT0}, v3\nds_read_b64 v[44:45], v3")
            p(f"s_lshl_b32 s{sT0}, s{sROLE}, 3\ns_add_u32 s{sT0}, s{sT0}, s{sJ}\ns_lshl_b32 s{sT0}, s{sT0}, 4\ns_add_u32 s{sT0}, s{sT0}, s{sI}\ns_lshl_b32 s{sT0}, s{sT0}, 10\ns_add_u32 s{sT0}, s{sT0}, {WS_CSP}\ns_lshl_b32 s{sT1}, s{sW4}, 8\ns_add_u32 s{sT0}, s{sT0}, s{sT1}")
            p(f"v_lshlrev_b32 v2, 4, v2\ns_waitcnt lgkmcnt(0)\nv_mov_b32 v46, v45\nv_mov_b32 v45, s{sNONCE}\nv_mov_b32 v47, s{sNONCE}")
            p(f"s_mov_b64 exec, 0xffff\nbuffer_store_dwordx4 v[44:47], v2, s[{S_WS}:{S_WS+3}], s{sT0} offen sc1\ns_mov_b64 exec, -1")
            p(f"v_and_b32 v2, 31, v1\nv_lshlrev_b32 v2, 2, v2\nbuffer_load_dword v{PZ}, v2, s[{S_DBG}:{S_DBG+3}], 0 offen sc1")
            ops += ["c", "z"]
        if s == 4:
            for x_ in preloads(): p(x_)
            ops += ["p"] * 9
        if OPT.get("touch"):
            if s == 3:
                code_touch(p, f"L_Aepi{role}", "L_AQ" if role == 0 else "L_P2", B.PFD); ops += ["t"]
                code_touch(p, f"L_Bpb{role}", f"L_Bend{role}", B.PFD); ops += ["t"]
            if s == 6:
                code_touch(p, "L_P2", "L_end", B.PFD); ops += ["t"]
    L = newlbl("L_tg")
    p(f"s_waitcnt vmcnt({wait_for('p')})")
    p(f"s_mov_b32 s3, 0\n{L}:")
    p(f"v_xor_b32 v2, s{sNONCE}, v{ST4+2}")
    for q in range(8): p(f"v_xor_b32 v3, s{sNONCE}, v{LD+2*q+1}\nv_or_b32 v2, v2, v3")
    p(f"v_cmp_ne_u32 vcc, 0, v2\ns_cbranch_vccz {L}x")
    p(f"s_add_u32 s3, s3, 1\ns_cmp_gt_u32 s3, {SPIN}\ns_cbranch_scc1 {L}x")
    for x_ in preloads(): p(x_)
    p(f"s_waitcnt vmcnt(0)\ns_branch {L}\n{L}x:")
    p(f"v_and_b32 v2, 31, v1\nv_lshlrev_b32 v2, 2, v2")
    poll_check(p, PZ, 1, 2, S_DBG)
    p(f"s_lshl_b32 s{sT0}, s{sW4}, 7\ns_add_u32 s{sT0}, s{sT0}, {L_RS}\nv_add_u32 v3, s{sT0}, v2\nds_write_b32 v3, v{ST4}\nds_write_b32 v3, v{ST4+1} offset:512")
    for st in (4, 2, 1):
        for q in range(st): p(f"v_add_f32 v{LD+2*q}, v{LD+2*q}, v{LD+2*(q+st)}")
    p(f"v_mov_b32 v4, v{LD}\nv_permlane32_swap_b32 v4, v{LD}\nv_add_f32 v{LD}, v{LD}, v4")
    p(f"s_lshl_b32 s{sT0}, s{sW4}, 7\ns_add_u32 s{sT0}, s{sT0}, {L_CSA}\nv_add_u32 v3, s{sT0}, v2\nds_write_b32 v3, v{LD}")
    return ops

def B_phaseB(p, role, ops):
    p(f"L_Bpb{role}:")
    B = BR
    nb = 3 if role == 0 else 2
    ustride = 768 if role == 0 else 512
    def reads(k):
        buf = B.WF + (k % 3) * 12
        base = wb_base(role, k)
        hi = base // 32768; lo = base - hi * 32768
        s = []
        for be in range(nb):
            for u in range(2):
                s.append(f"ds_read_b64_tr_b16 v[{buf+4*be+2*u}:{buf+4*be+2*u+1}], v{B.WBA+be} offset:{lo + u*ustride}")
        return hi, s
    cur = [None]
    def setaddr(hi):
        if cur[0] == hi: return ""
        cur[0] = hi
        return "\n".join(f"v_add_u32 v{B.WBA+be}, {hi*32768}, v{B.WBL+be}" for be in range(nb))
    def mfmas(k):
        buf = B.WF + (k % 3) * 12; x = B.X + 4 * k; first = k == 0
        s = []
        for be in range(nb):
            c = "0" if first else f"v[{B.ACC+16*be}:{B.ACC+16*be+15}]"
            s.append(f"v_mfma_f32_32x32x16_bf16 v[{B.ACC+16*be}:{B.ACC+16*be+15}], v[{buf+4*be}:{buf+4*be+3}], v[{x}:{x+3}], {c}")
        c = "0" if first else f"v[{B.CS}:{B.CS+3}]"
        s.append(f"v_mfma_f32_16x16x32_bf16 v[{B.CS}:{B.CS+3}], v[{buf}:{buf+3}], v[{B.SEL}:{B.SEL+3}], {c}")
        return s
    def wait_for(tag):
        last = max(i for i, t in enumerate(ops) if t == tag)
        return len(ops) - 1 - last
    rest_wb = list(range(2, 8)) if (role == 0 and OPT.get('wblate')) else list(range(4, 8))
    w8 = wait_for("b1")
    for t in rest_wb: ops += ["b%d" % t] * nb
    w9 = wait_for("b3")
    nrd = 2 * nb
    p(f"s_waitcnt vmcnt({w8}) lgkmcnt(0)")
    stamp(p, "B:pre8")
    p("s_barrier")
    stamp(p, "B:post8")
    if OPT.get("prioBm"): p(f"s_setprio {OPT['prioBm']}")
    for k0 in range(2):
        hi, rr = reads(k0)
        a = setaddr(hi)
        if a: p(a)
        for r in rr: p(r)
    for k in range(32):
        m = mfmas(k)
        p(f"s_waitcnt lgkmcnt({nrd if k < 31 else 0})")
        p(m[0])
        if k < len(rest_wb):
            for g in dma_wb(rest_wb[k], role): p(g)
        if k + 2 < 32:
            if k + 4 == 8:  p(f"s_waitcnt vmcnt({w9})"); lds_cnt_inc_nowait(p, L_W1)
            if k + 4 == 16: p(f"s_waitcnt vmcnt(0)"); lds_cnt_inc_nowait(p, L_W2)
            if k + 2 == 8:  lds_cnt_wait(p, L_W1, 4)
            if k + 2 == 16: lds_cnt_wait(p, L_W2, 4)
            hi, rr = reads(k + 2)
            a = setaddr(hi)
            if a:
                p("s_waitcnt lgkmcnt(0)") if False else None
                p(a)
            rest = m[1:]
            per = (len(rr) + len(rest) - 1) // len(rest)
            ri = 0
            for mm in rest:
                for _ in range(per):
                    if ri < len(rr): p(rr[ri]); ri += 1
                p(mm)
            while ri < len(rr): p(rr[ri]); ri += 1
        else:
            for mm in m[1:]: p(mm)
    stamp(p, "B:mfma_end")
    if OPT.get("prioBm"): p(f"s_setprio {OPT.get('prioBe', 0)}")
    if OPT.get("prioBe"): p(f"s_setprio {OPT['prioBe']}")
    T = 2
    p(f"v_and_b32 v{T}, 15, v1\nv_lshrrev_b32 v{T+1}, 4, v1")
    p(f"v_cmp_gt_u32 vcc, 2, v{T}")
    p(f"v_lshlrev_b32 v{T}, 6, v{T}\nv_lshlrev_b32 v{T+1}, 4, v{T+1}\nv_add_u32 v{T}, v{T}, v{T+1}")
    if role == 0: p(f"s_cmp_eq_u32 s{sW4}, 3\ns_cselect_b32 s{sT0}, 0, s{sW4}\ns_lshl_b32 s{sT0}, s{sT0}, 7\ns_add_u32 s{sT0}, s{sT0}, {L_CSB}")
    else:         p(f"s_and_b32 s{sT0}, s{sW4}, 1\ns_lshl_b32 s{sT0}, s{sT0}, 7\ns_add_u32 s{sT0}, s{sT0}, {L_CSB}")
    p(f"v_add_u32 v{T}, s{sT0}, v{T}")
    p(f"s_and_saveexec_b64 s[{sTMP}:{sTMP+1}], vcc")
    p(f"ds_write_b128 v{T}, v[{B.CS}:{B.CS+3}]")
    p(f"s_mov_b64 exec, s[{sTMP}:{sTMP+1}]")
    L = newlbl("L_cnt")
    p(f"v_mov_b32 v4, {L_CNT}\nv_mov_b32 v5, 1\ns_waitcnt lgkmcnt(0)\ns_mov_b64 exec, 1\nds_add_u32 v4, v5\ns_mov_b64 exec, -1")
    p(f"s_mov_b32 s3, 0\n{L}:\ns_add_u32 s3, s3, 1\ns_cmp_gt_u32 s3, {SPIN}\ns_cbranch_scc1 {L}x")
    p(f"ds_read_b32 v5, v4\ns_waitcnt lgkmcnt(0)\nv_cmp_gt_u32 vcc, 4, v5\ns_cbranch_vccnz {L}\n{L}x:")
    p(f"v_and_b32 v2, 31, v1\nv_lshlrev_b32 v2, 2, v2\ns_lshl_b32 s{sT0}, s{sW4}, 7\ns_add_u32 s{sT0}, s{sT0}, {L_RS}\nv_add_u32 v2, s{sT0}, v2")
    p(f"ds_read_b32 v{B.RS}, v2\nds_read_b32 v{B.NMR}, v2 offset:512")

def silu_chunk(p, acc, cs, rs, nmr, T, out):
    for e in range(8): p(f"v_mul_f32 v{T+e}, v{nmr}, v{cs+e}")
    for e in range(8): p(f"v_fma_f32 v{T+e}, v{acc+e}, v{rs}, v{T+e}")
    for e in range(8): p(f"v_exp_f32 v{T+8+e}, -v{T+e}")
    for e in range(8): p(f"v_add_f32 v{T+8+e}, 1.0, v{T+8+e}")
    for e in range(8): p(f"v_rcp_f32 v{T+8+e}, v{T+8+e}")
    for e in range(8): p(f"v_mul_f32 v{T+e}, v{T+e}, v{T+8+e}")
    for e in range(4): p(f"v_cvt_pk_bf16_f32 v{out+e}, v{T+2*e}, v{T+2*e+1}")

def phi_elems(p, t, n, T):
    for e in range(n): p(f"v_min_f32 v{T+e}, 0, v{t+e}")
    for e in range(n): p(f"v_exp_f32 v{T+e}, v{T+e}")
    for e in range(n): p(f"v_max_f32 v{t+e}, s{sCEPS}, v{t+e}")
    for e in range(n): p(f"v_fma_f32 v{t+e}, v{t+e}, s{sLN2}, v{T+e}")

def B_epi_F(p):
    stamp(p, "B:cnt_done")
    B = BR
    CSV, T, OUT, VA = 128, 176, 192, 200
    p(f"v_lshrrev_b32 v3, 5, v1\nv_lshlrev_b32 v3, 4, v3\nv_add_u32 v3, {L_CSB}, v3")
    for be in range(3):
        p(f"s_add_u32 s{sT0}, s{sW4}, {be}\ns_cmp_ge_u32 s{sT0}, 3\ns_cselect_b32 s{sT1}, 3, 0\ns_sub_u32 s{sT0}, s{sT0}, s{sT1}")
        p(f"s_cmp_ge_u32 s{sT0}, 3\ns_cselect_b32 s{sT1}, 3, 0\ns_sub_u32 s{sTMP+2+be}, s{sT0}, s{sT1}")
        p(f"s_lshl_b32 s{sT0}, s{sTMP+2+be}, 7\nv_add_u32 v{VA+be}, s{sT0}, v3")
        for q in range(4):
            p(f"ds_read_b128 v[{CSV+16*be+4*q}:{CSV+16*be+4*q+3}], v{VA+be} offset:{q*32}")
    p(f"v_lshlrev_b32 v{VA+3}, 4, v1")
    p(f"s_lshl_b32 s{sT2}, s{sI}, 2\ns_add_u32 s{sT2}, s{sT2}, s{sW4}\ns_mul_i32 s{sT2}, s{sT2}, 112\ns_lshr_b32 s{sT3}, s{sCOLB}, 4\ns_add_u32 s{sT2}, s{sT2}, s{sT3}")
    p(f"s_lshl_b32 s{sHB}, s{sT2}, 10\ns_add_u32 s{sHB}, s{sHB}, {WS_H}")
    ch = 0
    for be in range(3):
        p(f"s_waitcnt lgkmcnt({8-4*be})")
        for qp in range(2):
            o = OUT + 4*(ch & 1)
            silu_chunk(p, B.ACC + 16*be + 8*qp, CSV + 16*be + 8*qp, B.RS, B.NMR, T, o)
            stamp(p, f"B:v{ch}")
            p(f"s_lshl_b32 s{sT2}, s{sTMP+2+be}, 11\ns_add_u32 s{sT2}, s{sT2}, s{sHB}\ns_add_u32 s{sT2}, s{sT2}, {qp*1024}")
            p(f"buffer_store_dwordx4 v[{o}:{o+3}], v{VA+3}, s[{S_WS}:{S_WS+3}], s{sT2} offen sc1")
            stamp(p, f"B:s{ch}")
            ch += 1
    stamp(p, "B:epi_valu")
    p("s_waitcnt vmcnt(0)")
    stamp(p, "B:drained")
    store_flag(p, flagB_addr(WS_FB))

def flagB_addr(base):
    return (f"s_lshl_b32 s{sT2}, s{sI}, 1\ns_lshr_b32 s{sT3}, s{sW4}, 1\ns_add_u32 s{sT2}, s{sT2}, s{sT3}\ns_lshl_b32 s{sT2}, s{sT2}, 7\n"
            f"s_lshl_b32 s{sT3}, s{sJ}, 1\ns_and_b32 s{sT4}, s{sW4}, 1\ns_add_u32 s{sT3}, s{sT3}, s{sT4}\ns_lshl_b32 s{sT3}, s{sT3}, 2\n"
            f"s_add_u32 s{sT0}, s{sT2}, s{sT3}\ns_add_u32 s{sT0}, s{sT0}, {base}")

def B_epi_Q(p):
    B = BR
    CSV, T, PQ, VA = 128, 160, 224, 170
    p(f"v_lshrrev_b32 v3, 5, v1\nv_lshlrev_b32 v3, 4, v3\nv_add_u32 v3, {L_CSB}, v3")
    p(f"s_and_b32 s{sT0}, s{sW4}, 1\ns_lshl_b32 s{sT0}, s{sT0}, 7\nv_add_u32 v{VA}, s{sT0}, v3\nv_xor_b32 v{VA+1}, 128, v{VA}")
    for be in range(2):
        for q in range(4):
            p(f"ds_read_b128 v[{CSV+16*be+4*q}:{CSV+16*be+4*q+3}], v{VA+be} offset:{q*32}")
    for be in range(2):
        p(f"s_waitcnt lgkmcnt({4-4*be})")
        for qp in range(2):
            a = B.ACC + 16*be + 8*qp; cs = CSV + 16*be + 8*qp
            for e in range(8): p(f"v_mul_f32 v{T+e}, v{B.NMR}, v{cs+e}")
            for e in range(8): p(f"v_fma_f32 v{a+e}, v{a+e}, v{B.RS}, v{T+e}")
            phi_elems(p, a, 8, T)
            for e in range(4): p(f"v_cvt_pk_bf16_f32 v{PQ+8*be+4*qp+e}, v{a+2*e}, v{a+2*e+1}")
    return PQ

def wait_c2(p):
    L = newlbl("L_c2")
    p(f"s_lshl_b32 s{sT0}, s{sJ}, 8\ns_add_u32 s{sT0}, s{sT0}, {WS_C2}")
    p(f"v_and_b32 v2, 1, v1\nv_lshlrev_b32 v2, 7, v2")
    p(f"s_mov_b32 s3, 0\n{L}:\ns_add_u32 s3, s3, 1\ns_cmp_gt_u32 s3, {SPIN}\ns_cbranch_scc1 {L}x")
    p(f"buffer_load_dword v3, v2, s[{S_WS}:{S_WS+3}], s{sT0} offen sc1\ns_waitcnt vmcnt(0)\nv_cmp_ne_u32 vcc, 32, v3\ns_cbranch_vccz {L}x\ns_sleep 4\ns_branch {L}\n{L}x:")

def o_stage(p, PQ, T0=128):
    LD = T0; KA = T0 + 32; D4 = T0 + 48; OUT = T0 + 80; VA = T0 + 88
    p(f"v_and_b32 v2, 31, v1\nv_lshrrev_b32 v3, 5, v1")
    p(f"v_lshlrev_b32 v4, 5, v3\nv_add_u32 v4, v4, v2\nv_lshlrev_b32 v4, 2, v4")
    p(f"v_lshlrev_b32 v5, 2, v3\nv_add_u32 v5, 2048, v5")
    p(f"v_cmp_gt_u32 vcc, 16, v2")
    p(f"v_cndmask_b32 v{VA}, v5, v4, vcc")
    p(f"v_add_u32 v4, 64, v4\nv_add_u32 v5, 8, v5")
    p(f"v_cndmask_b32 v{VA+1}, v5, v4, vcc")
    p(f"v_lshlrev_b32 v{VA+2}, 4, v1")
    p(f"s_lshl_b32 s{sT0}, s{sJ}, 13\ns_add_u32 s{sT0}, s{sT0}, {WS_KVZ}")
    p(f"s_and_b32 s{sT1}, s{sW4}, 1\ns_lshl_b32 s{sT1}, s{sT1}, 12")
    p(f"s_add_u32 s{sTMP}, s{sT0}, s{sT1}\ns_xor_b32 s{sT1}, s{sT1}, 4096\ns_add_u32 s{sTMP+1}, s{sT0}, s{sT1}")
    p(f"s_lshl_b32 s{sT4}, s{sI}, 2\ns_add_u32 s{sT4}, s{sT4}, s{sW4}\ns_lshl_b32 s{sT4}, s{sT4}, 5\ns_lshl_b32 s{sT5}, s{sJ}, 2\ns_add_u32 s{sT4}, s{sT4}, s{sT5}")
    p(f"s_lshl_b32 s{sT4}, s{sT4}, 10\ns_add_u32 s{sHB}, s{sT4}, {WS_O}")
    p(f"s_and_b32 s{sT1}, s{sW4}, 1\ns_lshl_b32 s{sT1}, s{sT1}, 11")
    p(f"s_add_u32 s{sTMP+2}, s{sHB}, s{sT1}\ns_xor_b32 s{sT1}, s{sT1}, 2048\ns_add_u32 s{sTMP+3}, s{sHB}, s{sT1}")
    wait_c2(p)
    stamp(p, "B:c2")
    for be in range(2):
        for hh in range(2):
            h = 2*be + hh
            for r in range(8):
                p(f"buffer_load_dword v{LD+8*h+r}, v{VA+hh}, s[{S_WS}:{S_WS+3}], s{sTMP+be} offen offset:{r*256} sc1")
    for h in range(4):
        be, hh = h >> 1, h & 1
        d = D4 + 16 * (h & 1)
        p(f"s_waitcnt vmcnt({(3-h)*8 + max(0, h-2)})")
        for e in range(4): p(f"v_cvt_pk_bf16_f32 v{KA+4*h+e}, v{LD+8*h+2*e}, v{LD+8*h+2*e+1}")
        p(f"v_mfma_f32_32x32x16_bf16 v[{d}:{d+15}], v[{KA+4*h}:{KA+4*h+3}], v[{PQ+8*be+4*hh}:{PQ+8*be+4*hh+3}], 0")
        if h >= 1: o_fin(p, h - 1, D4, OUT, VA)
    o_fin(p, 3, D4, OUT, VA)
    p("s_waitcnt vmcnt(0)")
    store_flag(p, flagB_addr(WS_FO))

def o_fin(p, h, D4, OUT, VA):
    be, hh = h >> 1, h & 1
    d = D4 + 16 * (h & 1); o = OUT + 4 * (h & 1)
    p(f"v_add_f32 v{d+8}, {fhex(1e-6)}, v{d+8}")
    p(f"v_rcp_f32 v{d+8}, v{d+8}")
    for e in range(8): p(f"v_mul_f32 v{d+e}, v{d+e}, v{d+8}")
    for e in range(4): p(f"v_cvt_pk_bf16_f32 v{o+e}, v{d+2*e}, v{d+2*e+1}")
    p(f"s_add_u32 s{sT5}, s{sTMP+2+be}, {hh*1024}")
    p(f"buffer_store_dwordx4 v[{o}:{o+3}], v{VA+2}, s[{S_WS}:{S_WS+3}], s{sT5} offen sc1")

class AR:
    ACC = 16; XF = 80; WF = 184; CS = 112; SEL = 120; SEL2 = 236
    AX = 124; AX2 = 128; AW = 132; AW2 = 134
    E = 136
    CL = 136
    STL = 168
    POLL = 172
    VCL = 173
    VSL = 174
    PF = 255
    CSO = 176

def zero_ctrl(p):
    L = newlbl("L_nz")
    p(f"s_cmp_ge_u32 s2, 8\ns_cbranch_scc1 {L}")
    L2 = newlbl("L_nn")
    p(f"s_or_b32 s{sT0}, s2, s{sW4}\ns_cmp_lg_u32 s{sT0}, 0\ns_cbranch_scc1 {L2}")
    p(f"s_load_dword s{sT3}, s[{sWSP}:{sWSP+1}], {WS_NONCE} glc")
    p(f"{L2}:")
    p("v_mov_b32 v8, 0\nv_mov_b32 v9, 0\nv_mov_b32 v10, 0\nv_mov_b32 v11, 0\nv_lshlrev_b32 v2, 4, v1")
    p(f"s_lshl_b32 s{sT0}, s2, 13\ns_lshl_b32 s{sT1}, s{sW4}, 11\ns_add_u32 s{sT0}, s{sT0}, s{sT1}\ns_add_u32 s{sT0}, s{sT0}, {WS_KVZ}")
    p(f"buffer_store_dwordx4 v[8:11], v2, s[{S_WS}:{S_WS+3}], s{sT0} offen sc1\nbuffer_store_dwordx4 v[8:11], v2, s[{S_WS}:{S_WS+3}], s{sT0} offen offset:1024 sc1")
    p(f"s_lshl_b32 s{sT0}, s2, 8\ns_add_u32 s{sT0}, s{sT0}, {WS_C2}\ns_mov_b64 exec, 0xffff")
    p(f"buffer_store_dwordx4 v[8:11], v2, s[{S_WS}:{S_WS+3}], s{sT0} offen sc1\ns_mov_b64 exec, -1")
    L3 = newlbl("L_nn")
    p(f"s_or_b32 s{sT0}, s2, s{sW4}\ns_cmp_lg_u32 s{sT0}, 0\ns_cbranch_scc1 {L3}")
    p(f"s_waitcnt lgkmcnt(0)\ns_add_u32 s{sT3}, s{sT3}, 1\ns_or_b32 s{sT3}, s{sT3}, 1")
    p(f"v_mov_b32 v3, s{sT3}\nv_mov_b32 v4, {DBG_NONCE}\nv_mov_b32 v5, {WS_NONCE}\ns_mov_b64 exec, 1")
    p(f"buffer_store_dword v3, v4, s[{S_DBG}:{S_DBG+3}], 0 offen sc1\nbuffer_store_dword v3, v5, s[{S_WS}:{S_WS+3}], 0 offen sc1\ns_mov_b64 exec, -1")
    p(f"{L3}:")
    p(f"s_lshl_b32 s{sT0}, s2, 2\ns_add_u32 s{sT0}, s{sT0}, s{sW4}\ns_lshl_b32 s{sT0}, s{sT0}, 2\nv_mov_b32 v2, s{sT0}\nv_mov_b32 v3, 1")
    p("s_waitcnt vmcnt(0)")
    p(f"s_mov_b64 exec, 1\nbuffer_store_dword v3, v2, s[{S_DBG}:{S_DBG+3}], 0 offen sc1\ns_mov_b64 exec, -1")
    p(f"{L}:")

def get_nonce(p):
    L = newlbl("L_gn")
    p(f"v_mov_b32 v2, {DBG_NONCE}")
    p(f"s_mov_b32 s3, 0\n{L}:\ns_add_u32 s3, s3, 1\ns_cmp_gt_u32 s3, {SPIN}\ns_cbranch_scc1 {L}x")
    p(f"buffer_load_dword v3, v2, s[{S_DBG}:{S_DBG+3}], 0 offen sc1\ns_waitcnt vmcnt(0)\nv_readfirstlane_b32 s{sNONCE}, v3\ns_cmp_eq_u32 s{sNONCE}, 0\ns_cbranch_scc1 {L}\n{L}x:")
    p(f"v_mov_b32 v2, {L_NONCE}\nv_mov_b32 v3, s{sNONCE}\nds_write_b32 v2, v3")

def A_stats_issue(p):
    p(f"s_lshl_b32 s{sT0}, s{sROLE}, 3\ns_add_u32 s{sT0}, s{sT0}, s{sJ}\ns_lshl_b32 s{sT0}, s{sT0}, 3\ns_lshl_b32 s{sT1}, s{sW4}, 1\ns_add_u32 s{sT0}, s{sT0}, s{sT1}")
    p(f"s_lshl_b32 s{sT1}, s{sI}, 7\ns_add_u32 s{sZ}, s{sT0}, s{sT1}\ns_lshl_b32 s{sT0}, s{sZ}, 10")
    p(f"v_lshlrev_b32 v2, 4, v1")
    p(f"buffer_load_dwordx4 v[40:43], v2, s[{S_X}:{S_X+3}], s{sT0} offen\nbuffer_load_dwordx4 v[44:47], v2, s[{S_X}:{S_X+3}], s{sT0} offen offset:1024")

def A_prefetch_setup(p):
    p(f"s_cmp_eq_u32 s{sW4}, 0\ns_cselect_b32 s96, s{KQKV}, s{KW1}\ns_cselect_b32 s97, s{KQKV+1}, s{KW1+1}\ns_mov_b32 s{sT0}, 1835008\ns_mov_b32 s{sT1}, 1572864\ns_cselect_b32 s98, s{sT1}, s{sT0}\ns_mov_b32 s{sT2}, 56\ns_mov_b32 s{sT3}, 48\ns_cselect_b32 s{sT2}, s{sT3}, s{sT2}")
    p(f"s_cmp_eq_u32 s{sW4}, 2\ns_cselect_b32 s96, s{KW2}, s96\ns_cselect_b32 s97, s{KW2+1}, s97")
    p(f"s_cmp_eq_u32 s{sW4}, 3\ns_cselect_b32 s96, s{KWO}, s96\ns_cselect_b32 s97, s{KWO+1}, s97\ns_mov_b32 s{sT0}, 524288\ns_cselect_b32 s98, s{sT0}, s98\ns_mov_b32 s{sT3}, 16\ns_cselect_b32 s{sT2}, s{sT3}, s{sT2}")
    p(f"s_mov_b32 s99, 0x20000\ns_mul_i32 s{sT2}, s{sT2}, s2\ns_lshl_b32 s{sPA}, s{sT2}, 7")

def A_stats_compute(p):
    p("s_waitcnt vmcnt(0)")
    for r in range(2):
        for d in range(4):
            x = 40 + 4*r + d
            p(f"v_lshlrev_b32 v48, 16, v{x}\nv_and_b32 v49, 0xffff0000, v{x}")
            if d == 0:
                p(f"v_add_f32 v{50+2*r}, v48, v49\nv_mul_f32 v{51+2*r}, v48, v48\nv_fmac_f32 v{51+2*r}, v49, v49")
            else:
                p(f"v_add_f32 v{50+2*r}, v{50+2*r}, v48\nv_fmac_f32 v{51+2*r}, v48, v48\nv_add_f32 v{50+2*r}, v{50+2*r}, v49\nv_fmac_f32 v{51+2*r}, v49, v49")
    for ctl in ("row_shr:1", "row_shr:2", "row_shr:4", "row_shr:8"):
        for v in range(50, 54): p(f"v_add_f32_dpp v{v}, v{v}, v{v} {ctl} row_mask:0xf bank_mask:0xf bound_ctrl:0")
    for v in range(50, 54): p(f"v_add_f32_dpp v{v}, v{v}, v{v} row_bcast:15 row_mask:0xa bank_mask:0xf")
    for v in range(50, 54): p(f"v_add_f32_dpp v{v}, v{v}, v{v} row_bcast:31 row_mask:0xc bank_mask:0xf")
    for r in range(2):
        s, q = 50 + 2*r, 51 + 2*r
        p(f"v_mul_f32 v{s}, {fhex(1.0/512)}, v{s}\nv_mul_f32 v{q}, {fhex(1.0/512)}, v{q}")
        p(f"v_fma_f32 v{q}, -v{s}, v{s}, v{q}\nv_max_f32 v{q}, 0, v{q}\nv_add_f32 v{q}, {fhex(1e-5)}, v{q}")
        p(f"v_rsq_f32 v{q}, v{q}")
        p(f"v_mul_f32 v{54+2*r}, {fhex(LOG2E)}, v{q}")
        p(f"v_mul_f32 v{55+2*r}, v{54+2*r}, v{s}\nv_sub_f32 v{55+2*r}, 0, v{55+2*r}")
    get_nonce(p)
    p(f"v_mov_b32 v60, v56\nv_mov_b32 v61, v57\nv_mov_b32 v56, s{sNONCE}\nv_mov_b32 v57, s{sNONCE}\nv_mov_b32 v62, s{sNONCE}\nv_mov_b32 v63, s{sNONCE}")
    p(f"s_lshl_b32 s{sT0}, s{sZ}, 4\ns_add_u32 s{sT0}, s{sT0}, {WS_STG}\nv_mov_b32 v2, 0")
    p(f"s_mov_b32 exec_lo, 0\ns_mov_b32 exec_hi, 0x80000000")
    p(f"buffer_store_dwordx4 v[54:57], v2, s[{S_WS}:{S_WS+3}], s{sT0} offen sc1\nbuffer_store_dwordx4 v[60:63], v2, s[{S_WS}:{S_WS+3}], s{sT0} offen offset:16 sc1")
    p(f"s_mov_b64 exec, -1")

def A_setup(p, role):
    A = AR
    p(f"s_and_b32 s{sT0}, s{sW4}, 1\ns_lshr_b32 s{sT1}, s{sW4}, 1")
    p(f"v_and_b32 v2, 31, v1\nv_lshrrev_b32 v3, 5, v1")
    p(f"v_lshrrev_b32 v4, 1, v2\nv_and_b32 v4, 7, v4\nv_xor_b32 v4, v4, v3\nv_lshlrev_b32 v4, 4, v4")
    p(f"v_lshlrev_b32 v5, 7, v2\nv_add_u32 v4, v4, v5\ns_lshl_b32 s{sT2}, s{sT0}, 13\nv_add_u32 v4, s{sT2}, v4")
    for pp in range(4):
        p(f"v_xor_b32 v{A.AX+pp}, {pp*32}, v4\nv_add_u32 v{A.AX2+pp}, 65536, v{A.AX+pp}")
    p(f"v_lshrrev_b32 v2, 5, v1\nv_lshlrev_b32 v2, 3, v2\nv_and_b32 v3, 15, v1\nv_lshrrev_b32 v4, 2, v3\nv_add_u32 v2, v2, v4\nv_lshlrev_b32 v2, 7, v2")
    p(f"v_lshrrev_b32 v4, 3, v3\nv_lshlrev_b32 v4, 6, v4\nv_add_u32 v2, v2, v4")
    p(f"v_lshrrev_b32 v4, 4, v1\nv_and_b32 v4, 1, v4\nv_lshlrev_b32 v4, 5, v4\nv_add_u32 v2, v2, v4\nv_and_b32 v4, 3, v3\nv_lshlrev_b32 v4, 3, v4\nv_add_u32 v2, v2, v4")
    if role == 0:
        p(f"s_lshl_b32 s{sT2}, s{sT0}, 6\nv_xor_b32 v2, s{sT2}, v2\ns_lshl_b32 s{sT2}, s{sT1}, 13\ns_add_u32 s{sT2}, s{sT2}, 16384")
        p(f"v_add_u32 v{A.AW}, s{sT2}, v2\nv_xor_b32 v{A.AW+1}, 64, v{A.AW}")
    else:
        p(f"s_lshl_b32 s{sT2}, s{sT1}, 6\nv_xor_b32 v2, s{sT2}, v2")
        p(f"v_add_u32 v{A.AW}, 16384, v2\nv_add_u32 v{A.AW+1}, {16384+8192}, v2")
    p(f"v_add_u32 v{A.AW2}, 65536, v{A.AW}\nv_add_u32 v{A.AW2+1}, 65536, v{A.AW+1}")
    make_sel(p, A.SEL, 2, 3)
    p(f"s_cmp_ge_u32 s{sI}, 8\ns_cselect_b32 s{sT2}, -1, 0")
    for k in range(4):
        p(f"v_and_b32 v{A.SEL2+k}, s{sT2}, v{A.SEL+k}")
    p(f"s_not_b32 s{sT2}, s{sT2}")
    for k in range(4):
        p(f"v_and_b32 v{A.SEL+k}, s{sT2}, v{A.SEL+k}")
    p(f"v_mov_b32 v2, {L_CNT}\nv_mov_b32 v3, 0\nds_write_b32 v2, v3")
    p(f"v_mov_b32 v2, {L_LF}\nv_mov_b32 v4, 0\nv_mov_b32 v5, 0\nv_mov_b32 v6, 0\nv_mov_b32 v7, 0\nds_write_b128 v2, v[4:7]\nds_write_b128 v2, v[4:7] offset:16")

def poll_check(p, reg, expect, addr_reg, srd_):
    L = newlbl("L_pc")
    p(f"v_cmp_ne_u32 vcc, {expect}, v{reg}\ns_cbranch_vccz {L}x")
    p(f"s_mov_b32 s3, 0\n{L}:\ns_add_u32 s3, s3, 1\ns_cmp_gt_u32 s3, {SPIN}\ns_cbranch_scc1 {L}x")
    p(f"buffer_load_dword v{reg}, v{addr_reg}, s[{srd_}:{srd_+3}], 0 offen sc1\ns_waitcnt vmcnt(0)\nv_cmp_ne_u32 vcc, {expect}, v{reg}\ns_cbranch_vccnz {L}\n{L}x:")

def w2_touch(p, dst):
    p(f"s_lshl_b32 s{sT2}, s{sC}, 7\ns_lshr_b32 s{sT1}, s2, 3\ns_and_b32 s{sT1}, s{sT1}, 7")
    p(f"s_mul_i32 s{sT3}, s{sT1}, 224\ns_mul_i32 s{sT4}, s{sW4}, 56\ns_add_u32 s{sT3}, s{sT3}, s{sT4}\ns_lshl_b32 s{sT3}, s{sT3}, 10\ns_add_u32 s{sT3}, s{sT3}, s{sT2}")
    p(f"v_min_u32 v2, 55, v1\nv_lshlrev_b32 v2, 10, v2\nbuffer_load_dword v{dst}, v2, s[{S_W2}:{S_W2+3}], s{sT3} offen")
    p(f"s_lshl_b32 s{sT3}, s{sT1}, 6\ns_lshl_b32 s{sT4}, s{sW4}, 4\ns_add_u32 s{sT3}, s{sT3}, s{sT4}\ns_lshl_b32 s{sT3}, s{sT3}, 10\ns_add_u32 s{sT3}, s{sT3}, s{sT2}")
    p(f"v_and_b32 v2, 15, v1\nv_lshlrev_b32 v2, 10, v2\ns_mov_b64 exec, 0xffff\nbuffer_load_dword v{dst}, v2, s[{S_WO}:{S_WO+3}], s{sT3} offen\ns_mov_b64 exec, -1")

def mall_warm(p, dst):
    L = newlbl("L_mw")
    p(f"s_cmp_ge_u32 s{sW4}, 2\ns_cbranch_scc1 {L}a")
    p(f"s_mul_i32 s{sT0}, s2, 56\ns_mul_i32 s{sT1}, s{sW4}, 28\ns_add_u32 s{sT0}, s{sT0}, s{sT1}\ns_lshl_b32 s{sT0}, s{sT0}, 7\nv_min_u32 v2, 27, v1\nv_lshlrev_b32 v2, 7, v2")
    p(f"s_mov_b32 exec_hi, 0\nbuffer_load_dword v{dst}, v2, s[{S_W2}:{S_W2+3}], s{sT0} offen\ns_mov_b32 exec_hi, -1\ns_branch {L}")
    p(f"{L}a:\ns_cmp_lg_u32 s{sW4}, 2\ns_cbranch_scc1 {L}")
    p(f"s_lshl_b32 s{sT0}, s2, 11\nv_lshlrev_b32 v2, 7, v1\ns_mov_b64 exec, 0xffff\nbuffer_load_dword v{dst}, v2, s[{S_WO}:{S_WO+3}], s{sT0} offen\ns_mov_b64 exec, -1")
    p(f"{L}:")

def wb_touch(p, dst):
    p(f"s_and_b32 s{sT0}, s{sI}, 7\ns_lshl_b32 s{sT0}, s{sT0}, 6\ns_lshl_b32 s{sT1}, s{sW4}, 4\ns_add_u32 s{sT0}, s{sT0}, s{sT1}\ns_mul_i32 s{sT0}, s{sT0}, s{sRS}")
    p(f"s_lshl_b32 s{sT1}, s{sCOLB}, 1\ns_and_b32 s{sT1}, s{sT1}, 0xffffff80\ns_add_u32 s{sT0}, s{sT0}, s{sT1}")
    p(f"v_lshrrev_b32 v2, 1, v1\nv_and_b32 v2, 15, v2\nv_mul_lo_u32 v2, v2, s{sRS}\nv_and_b32 v3, 1, v1\nv_lshlrev_b32 v3, 7, v3\nv_add_u32 v2, v2, v3")
    p(f"s_mov_b32 exec_hi, 0\nbuffer_load_dword v{dst}, v2, s[{S_W}:{S_W+3}], s{sT0} offen\ns_mov_b32 exec_hi, -1")

def A_phaseA(p, role):
    A = AR
    nsm = 1 if role == 0 else 2
    def reads(k):
        s_, pp = k // 4, k % 4
        slot = s_ % 4; b = k % 3
        ax = (A.AX2 if slot >= 2 else A.AX) + pp
        aw = (A.AW2 if slot >= 2 else A.AW)
        so = (slot & 1) * SLOT
        r = []
        for be in range(2):
            for u in range(2):
                r.append(f"ds_read_b64_tr_b16 v[{A.WF+8*b+4*be+2*u}:{A.WF+8*b+4*be+2*u+1}], v{aw+be} offset:{so + pp*2048 + u*512}")
        for tt in range(2):
            r.append(f"ds_read_b128 v[{A.XF+8*b+4*tt}:{A.XF+8*b+4*tt+3}], v{ax} offset:{so + tt*4096}")
        if OPT.get("noAreads"): r = ["s_nop 0"] * 6
        return r
    def mfmas(k):
        b = k % 3; m = []
        if OPT.get("noAmfma"): return ["s_nop 0"] * 4
        for tt in range(2):
            for be in range(2):
                acc = A.ACC + 32*tt + 16*be
                c = "0" if k == 0 else f"v[{acc}:{acc+15}]"
                w = f"v[{A.WF+8*b+4*be}:{A.WF+8*b+4*be+3}]"; x = f"v[{A.XF+8*b+4*tt}:{A.XF+8*b+4*tt+3}]"
                m.append(f"v_mfma_f32_32x32x16_bf16 v[{acc}:{acc+15}], {w}, {x}, {c}" if role == 0 else f"v_mfma_f32_32x32x16_bf16 v[{acc}:{acc+15}], {x}, {w}, {c}")
        if k < 4:
            sel = A.SEL if k < 2 else A.SEL2
            for be in range(nsm):
                c = "0" if k == 0 else f"v[{A.CS+4*be}:{A.CS+4*be+3}]"
                m.append(f"v_mfma_f32_16x16x32_bf16 v[{A.CS+4*be}:{A.CS+4*be+3}], v[{A.WF+8*b+4*be}:{A.WF+8*b+4*be+3}], v[{sel}:{sel+3}], {c}")
        return m
    p("s_waitcnt lgkmcnt(0)")
    stamp(p, "A:pre0")
    p("s_barrier")
    stamp(p, "A:post0")
    for r in reads(0) + reads(1): p(r)
    for k in range(32):
        m = mfmas(k)
        bar = (k + 2) % 4 == 0 and k + 2 < 32
        p(f"s_waitcnt lgkmcnt({0 if (bar or k >= 30) else 6})")
        if k in (4, 8, 16, 24): stamp(p, f"A:k{k}")
        p(m[0])
        if k == int(OPT.get("mwk", -1)): mall_warm(p, A.PF)
        if k == int(OPT.get("wbk", 4)) and not OPT.get("ntWB"): wb_touch(p, A.PF)
        if k == int(OPT.get("w2k", 16)) and not OPT.get("ntW2"): w2_touch(p, A.PF)
        if k == 5:
            p(f"v_and_b32 v2, 15, v1\nv_lshrrev_b32 v3, 4, v1\nv_cmp_gt_u32 vcc, 2, v2")
            p(f"v_lshlrev_b32 v2, 6, v2\nv_lshlrev_b32 v3, 4, v3\nv_add_u32 v2, v2, v3")
            if role == 0: p(f"s_lshl_b32 s{sT0}, s{sW4}, 7")
            else:         p(f"s_lshr_b32 s{sT0}, s{sW4}, 1\ns_lshl_b32 s{sT0}, s{sT0}, 7")
            p(f"s_add_u32 s{sT0}, s{sT0}, {L_CSPL}\nv_add_u32 v2, s{sT0}, v2")
            p(f"s_and_saveexec_b64 s[{sTMP}:{sTMP+1}], vcc")
            for be in range(nsm):
                p(f"ds_write_b128 v2, v[{A.CS+4*be}:{A.CS+4*be+3}] offset:{be*256}")
            p(f"s_mov_b64 exec, s[{sTMP}:{sTMP+1}]")
        if k + 2 < 32:
            if bar: p("s_barrier")
            rr = reads(k + 2)
            rest = m[1:]
            ri = 0
            for mm in rest:
                for _ in range(2):
                    if ri < len(rr): p(rr[ri]); ri += 1
                p(mm)
            while ri < len(rr): p(rr[ri]); ri += 1
        else:
            for mm in m[1:]: p(mm)

def A_epi_F(p, fill):
    p("L_Aepi0:")
    A = AR; E = A.E
    E = 80
    RS, NMR, CSV, T, OUT, VA = E, E+2, E+4, E+36, E+52, E+60
    stamp(p, "A:pre8")
    p("s_barrier")
    stamp(p, "A:post8")
    p(f"s_and_b32 s{sT0}, s{sW4}, 1\ns_lshr_b32 s{sT1}, s{sW4}, 1")
    p(f"v_and_b32 v2, 31, v1\nv_lshlrev_b32 v2, 2, v2\ns_lshl_b32 s{sT2}, s{sT0}, 8\ns_add_u32 s{sT2}, s{sT2}, {L_RS}\nv_add_u32 v2, s{sT2}, v2")
    for tt in range(2):
        p(f"ds_read_b32 v{RS+tt}, v2 offset:{tt*128}\nds_read_b32 v{NMR+tt}, v2 offset:{512+tt*128}")
    p(f"v_lshrrev_b32 v3, 5, v1\nv_lshlrev_b32 v3, 4, v3\ns_lshl_b32 s{sT2}, s{sT1}, 8\ns_add_u32 s{sT2}, s{sT2}, {L_CSA}\nv_add_u32 v3, s{sT2}, v3")
    p(f"s_lshl_b32 s{sT2}, s{sT0}, 7\nv_xor_b32 v{VA}, s{sT2}, v3\nv_xor_b32 v{VA+1}, 128, v{VA}")
    for be in range(2):
        for q in range(4):
            p(f"ds_read_b128 v[{CSV+16*be+4*q}:{CSV+16*be+4*q+3}], v{VA+be} offset:{q*32}")
    p(f"v_lshlrev_b32 v{VA+2}, 4, v1")
    p(f"s_lshl_b32 s{sT2}, s{sI}, 2\ns_lshl_b32 s{sT3}, s{sT0}, 1\ns_add_u32 s{sT2}, s{sT2}, s{sT3}\ns_mul_i32 s{sT2}, s{sT2}, 112")
    p(f"s_lshr_b32 s{sT3}, s{sCOLA}, 4\ns_lshl_b32 s{sT4}, s{sT1}, 2\ns_add_u32 s{sT3}, s{sT3}, s{sT4}\ns_add_u32 s{sT2}, s{sT2}, s{sT3}")
    p(f"s_lshl_b32 s{sHB}, s{sT2}, 10\ns_add_u32 s{sHB}, s{sHB}, {WS_H}")
    p(f"s_lshl_b32 s{sT5}, s{sT0}, 11\ns_add_u32 s{sTMP}, s{sHB}, s{sT5}\ns_xor_b32 s{sT5}, s{sT5}, 2048\ns_add_u32 s{sTMP+1}, s{sHB}, s{sT5}")
    p("s_waitcnt lgkmcnt(0)")
    stamp(p, "A:epi_start")
    def fa_addr(base):
        return (f"s_lshl_b32 s{sT2}, s{sI}, 1\ns_and_b32 s{sT3}, s{sW4}, 1\ns_add_u32 s{sT2}, s{sT2}, s{sT3}\ns_lshl_b32 s{sT2}, s{sT2}, 7\n"
                f"s_lshl_b32 s{sT3}, s{sJ}, 1\ns_lshr_b32 s{sT4}, s{sW4}, 1\ns_add_u32 s{sT3}, s{sT3}, s{sT4}\ns_lshl_b32 s{sT3}, s{sT3}, 2\n"
                f"s_add_u32 s{sT0}, s{sT2}, s{sT3}\ns_add_u32 s{sT0}, s{sT0}, {base}")
    ch = 0
    nops_after4 = 0
    for be in range(2):
        for qp in range(2):
            for tt in range(2):
                acc = A.ACC + 32*tt + 16*be + 8*qp
                o = OUT + 4*(ch & 1)
                silu_chunk(p, acc, CSV + 16*be + 8*qp, RS+tt, NMR+tt, T, o)
                if ch in (1, 3, 5, 7): stamp(p, f"A:ch{ch}")
                if ch == 6:
                    p(f"s_waitcnt vmcnt({nops_after4})")
                    store_flag(p, fa_addr(WS_FA))
                p(f"s_add_u32 s{sT2}, s{sTMP+be}, {tt*112*1024 + qp*1024}")
                p(f"buffer_store_dwordx4 v[{o}:{o+3}], v{VA+2}, s[{S_WS}:{S_WS+3}], s{sT2} offen sc1")
                if ch >= 4: nops_after4 += 1
                fi = ch - (8 - len(fill) - 1)
                if 0 <= fi < len(fill) and ch < 7:
                    p(fill[fi])
                    if ch >= 3: nops_after4 += 2
                ch += 1
                pass
    p(fa_addr(WS_FA2))
    p(f"s_mov_b32 s{sHB}, s{sT0}")

def A_epi_Q(p, fill):
    p("L_Aepi1:")
    A = AR; E = A.E
    ST = E; CSK, CSVv = E+32, E+33; T = E+34; PK = E+42; VV = E+58; Z = E+74; D2 = E+76; VA = E+92
    stamp(p, "A:pre8")
    p("s_barrier")
    stamp(p, "A:post8")
    p(f"s_and_b32 s{sT0}, s{sW4}, 1\ns_lshr_b32 s{sT1}, s{sW4}, 1")
    p(f"v_and_b32 v2, 31, v1\nv_lshlrev_b32 v2, 2, v2\ns_lshl_b32 s{sT2}, s{sT1}, 7\ns_add_u32 s{sT2}, s{sT2}, {L_CSA}\nv_add_u32 v2, s{sT2}, v2")
    p(f"ds_read_b32 v{CSK}, v2\nds_read_b32 v{CSVv}, v2 offset:256")
    p(f"v_lshrrev_b32 v3, 5, v1\nv_lshlrev_b32 v3, 4, v3\ns_lshl_b32 s{sT2}, s{sT0}, 8\ns_add_u32 s{sT2}, s{sT2}, {L_RS}\nv_add_u32 v{VA}, s{sT2}, v3")
    p(f"v_mov_b32 v{Z}, 0")
    def streads(g):
        tt, hf = g >> 1, g & 1
        b = ST + 16*(g & 1)
        for q2 in range(2):
            off = (32*tt + 8*(2*hf+q2)) * 4
            p(f"ds_read_b128 v[{b+4*q2}:{b+4*q2+3}], v{VA} offset:{off}\nds_read_b128 v[{b+8+4*q2}:{b+8+4*q2+3}], v{VA} offset:{off+512}")
    streads(0)
    nf = 0
    for g in range(4):
        tt, hf = g >> 1, g & 1
        if g < 3: streads(g + 1); p("s_waitcnt lgkmcnt(4)")
        else: p("s_waitcnt lgkmcnt(0)")
        RSV = ST + 16*(g & 1); NMV = RSV + 8
        k = A.ACC + 32*tt + 8*hf; v = A.ACC + 32*tt + 16 + 8*hf
        for e in range(8): p(f"v_mul_f32 v{T+e}, v{NMV+e}, v{CSVv}")
        for e in range(8): p(f"v_fma_f32 v{v+e}, v{v+e}, v{RSV+e}, v{T+e}")
        for e in range(4): p(f"v_cvt_pk_bf16_f32 v{VV+8*tt+4*hf+e}, v{v+2*e}, v{v+2*e+1}")
        if nf < len(fill): p(fill[nf]); nf += 1
        for e in range(8): p(f"v_mul_f32 v{T+e}, v{NMV+e}, v{CSK}")
        for e in range(8): p(f"v_fma_f32 v{k+e}, v{k+e}, v{RSV+e}, v{T+e}")
        phi_elems(p, k, 8, T)
        for e in range(8): p(f"v_add_f32 v{Z}, v{Z}, v{k+e}")
        for e in range(4): p(f"v_cvt_pk_bf16_f32 v{PK+8*tt+4*hf+e}, v{k+2*e}, v{k+2*e+1}")
        c = "0" if g == 0 else f"v[{D2}:{D2+15}]"
        p(f"v_mfma_f32_32x32x16_bf16 v[{D2}:{D2+15}], v[{PK+8*tt+4*hf}:{PK+8*tt+4*hf+3}], v[{VV+8*tt+4*hf}:{VV+8*tt+4*hf+3}], {c}")
        if nf < len(fill): p(fill[nf]); nf += 1
        pass
    p(f"v_mov_b32 v{T}, v{Z}")
    p(f"v_permlane32_swap_b32 v{T}, v{Z}")
    p(f"v_add_f32 v{Z}, v{Z}, v{T}")
    p(f"s_mov_b32 s{sMASKH}, 0xffff0000\ns_mov_b32 s{sMASKH+1}, 0xffff0000")
    for r in range(8): p(f"v_cndmask_b32 v{T+r}, v{D2+r}, v{D2+8+r}, s[{sMASKH}:{sMASKH+1}]")
    p(f"s_lshl_b32 s{sT2}, s{sJ}, 1\ns_lshr_b32 s{sT1}, s{sW4}, 1\ns_add_u32 s{sZ}, s{sT2}, s{sT1}\ns_lshl_b32 s{sT2}, s{sZ}, 12\ns_add_u32 s{sHB}, s{sT2}, {WS_KVZ}")
    p(f"v_lshlrev_b32 v{VA+1}, 2, v1")
    for r in range(8):
        p(f"buffer_atomic_add_f32 v{T+r}, v{VA+1}, s[{S_WS}:{S_WS+3}], s{sHB} offen offset:{r*256}")
    p(f"v_lshrrev_b32 v2, 3, v1\nv_and_b32 v2, 1, v2\nv_lshlrev_b32 v2, 2, v2\nv_and_b32 v3, 3, v1\nv_add_u32 v2, v2, v3\nv_lshlrev_b32 v2, 8, v2")
    p(f"v_lshrrev_b32 v3, 4, v1\nv_and_b32 v3, 1, v3\nv_lshlrev_b32 v3, 1, v3\nv_lshrrev_b32 v4, 2, v1\nv_and_b32 v4, 1, v4\nv_add_u32 v3, v3, v4\nv_lshlrev_b32 v3, 2, v3")
    p(f"v_add_u32 v2, v2, v3")
    p(f"s_mov_b32 exec_hi, 0")
    p(f"buffer_atomic_add_f32 v{Z}, v2, s[{S_WS}:{S_WS+3}], s{sHB} offen offset:2048")
    p(f"s_mov_b32 exec_hi, -1")
    while nf < len(fill): p(fill[nf]); nf += 1
    p(f"s_lshl_b32 s{sT0}, s{sZ}, 7\ns_add_u32 s{sT0}, s{sT0}, {WS_C2}\nv_mov_b32 v2, 0\nv_mov_b32 v3, 1")
    p("s_waitcnt vmcnt(0)")
    p(f"s_mov_b64 exec, 1\nbuffer_atomic_add v3, v2, s[{S_WS}:{S_WS+3}], s{sT0} offen sc1\ns_mov_b64 exec, -1")

class P2:
    ACCF = 16; ACCS = 80; AF = 144; BF = 200
    T = 216; XR = 240; VL16 = 250; VW2 = 251; VBR = 252; VX = 254; VW2B = 249; VBR2 = 236; VTMPB = 248
DA = DB = 6; NA = 7; NST = 36
L_REDF = 0; L_REDS = 49152

def p2_setup(p):
    P = P2
    p(f"s_and_b32 s{sT0}, s2, 7\ns_lshr_b32 s{sT1}, s2, 3")
    if OPT.get("map2", "512x256") == "512x256":
        p(f"s_lshr_b32 s{sT2}, s{sT0}, 1\ns_lshl_b32 s{sT2}, s{sT2}, 3\ns_and_b32 s{sT3}, s{sT1}, 7\ns_add_u32 s{sT2i}, s{sT2}, s{sT3}")
        p(f"s_and_b32 s{sT2}, s{sT0}, 1\ns_lshl_b32 s{sT2}, s{sT2}, 2\ns_lshr_b32 s{sT3}, s{sT1}, 3\ns_add_u32 s{sC}, s{sT2}, s{sT3}")
    else:
        p(f"s_lshl_b32 s{sT2}, s{sT0}, 2\ns_and_b32 s{sT3}, s{sT1}, 3\ns_add_u32 s{sT2i}, s{sT2}, s{sT3}\ns_lshr_b32 s{sC}, s{sT1}, 2")
    p(f"s_lshr_b32 s{sT0}, s{sW4}, 1\ns_lshl_b32 s{sT1}, s{sT2i}, 1")
    p(f"s_add_u32 s{sT2}, s{sT1}, s{sT0}\ns_xor_b32 s{sT3}, s{sT2}, 1")
    p(f"s_mul_i32 s{sT4}, s{sW4}, 28")
    for (d, src) in ((sAH, sT2), (sAH1, sT3)):
        p(f"s_mul_i32 s{sT5}, s{src}, 112\ns_add_u32 s{sT5}, s{sT5}, s{sT4}\ns_lshl_b32 s{sT5}, s{sT5}, 10\ns_add_u32 s{d}, s{sT5}, {WS_H}")
    p(f"s_lshl_b32 s{sT4}, s{sW4}, 3")
    for (d, src) in ((sAO, sT2), (sAO1, sT3)):
        p(f"s_lshl_b32 s{sT5}, s{src}, 5\ns_add_u32 s{sT5}, s{sT5}, s{sT4}\ns_lshl_b32 s{sT5}, s{sT5}, 10\ns_add_u32 s{d}, s{sT5}, {WS_O}")
    p(f"s_lshl_b32 s{sT0}, s{sC}, 7\ns_mul_i32 s{sT1}, s{sW4}, {28*16*1024}\ns_add_u32 s{sBW}, s{sT0}, s{sT1}")
    p(f"s_lshl_b32 s{sT1}, s{sW4}, 17\ns_add_u32 s{sBO}, s{sT0}, s{sT1}")
    p(f"s_mul_i32 s{sLB}, s{sW4}, {NS*2048}\ns_add_u32 s{sLB}, s{sLB}, {L_P2}")
    p(f"v_lshlrev_b32 v{P.VL16}, 4, v1")
    p(f"v_lshrrev_b32 v2, 3, v1\nv_lshlrev_b32 v2, 10, v2\nv_and_b32 v3, 7, v1\nv_lshrrev_b32 v4, 4, v1\nv_and_b32 v4, 1, v4\nv_lshlrev_b32 v4, 2, v4\nv_xor_b32 v3, v3, v4\nv_lshlrev_b32 v3, 4, v3\nv_add_u32 v{P.VW2}, v2, v3\nv_add_u32 v{P.VW2B}, 7168, v{P.VW2}")
    p(f"v_lshrrev_b32 v2, 5, v1\nv_lshlrev_b32 v2, 2, v2\nv_and_b32 v3, 15, v1\nv_lshrrev_b32 v4, 2, v3\nv_add_u32 v2, v2, v4\nv_lshlrev_b32 v2, 7, v2")
    p(f"v_lshrrev_b32 v4, 3, v3\nv_lshlrev_b32 v4, 6, v4\nv_add_u32 v2, v2, v4")
    p(f"v_lshrrev_b32 v4, 4, v1\nv_and_b32 v4, 1, v4\nv_lshlrev_b32 v4, 5, v4\nv_add_u32 v2, v2, v4\nv_and_b32 v4, 3, v3\nv_lshlrev_b32 v4, 3, v4\nv_add_u32 v2, v2, v4")
    p(f"s_and_b32 s{sT0}, s{sW4}, 1\ns_lshl_b32 s{sT0}, s{sT0}, 6\nv_xor_b32 v2, s{sT0}, v2\nv_add_u32 v{P.VBR}, s{sLB}, v2\nv_xor_b32 v{P.VBR+1}, 64, v{P.VBR}")
    p(f"s_mul_i32 s{sLB2}, s{sW4}, {NDEEP*2048}")
    p(f"v_mov_b32 v{P.VTMPB}, v2")
    p(f"s_and_b32 s{sBB2}, s{sT2i}, 1\ns_lshl_b32 s{sBB2}, s{sBB2}, 1")
    p(f"s_lshl_b32 s{sT0}, s{sBB2}, 10\ns_xor_b32 s{sT1}, s{sT0}, 2048")
    for tau in range(2):
        p(f"s_add_u32 s{sAHa+tau}, s{sAH+tau}, s{sT0}\ns_add_u32 s{sAHb+tau}, s{sAH+tau}, s{sT1}")
    p(f"s_lshl_b32 s{sT0}, s{sBB2}, 14\ns_xor_b32 s{sT1}, s{sT0}, 32768\ns_add_u32 s{sBWa}, s{sBW}, s{sT0}\ns_add_u32 s{sBWb}, s{sBW}, s{sT1}")
    p(f"v_and_b32 v2, 31, v1\nv_lshlrev_b32 v2, 10, v2\nv_lshrrev_b32 v3, 5, v1\nv_lshlrev_b32 v3, 4, v3\nv_add_u32 v{P.VX}, v2, v3")

def xres_soff():
    return (f"s_lshl_b32 s{sT0}, s{sT2i}, 6\ns_lshr_b32 s{sT1}, s{sW4}, 1\ns_lshl_b32 s{sT1}, s{sT1}, 5\ns_add_u32 s{sT0}, s{sT0}, s{sT1}\ns_lshl_b32 s{sT0}, s{sT0}, 10\n"
            f"s_lshl_b32 s{sT1}, s{sC}, 7\ns_add_u32 s{sT0}, s{sT0}, s{sT1}\ns_and_b32 s{sT1}, s{sW4}, 1\ns_lshl_b32 s{sT1}, s{sT1}, 6\ns_add_u32 s{sT0}, s{sT0}, s{sT1}")
def xres_load():
    P = P2
    return xres_soff() + "\n" + "\n".join(f"buffer_load_dwordx4 v[{P.XR+4*qp}:{P.XR+4*qp+3}], v{P.VX}, s[{S_X}:{S_X+3}], s{sT0} offen offset:{qp*32}" for qp in range(2))

def step_p(n):
    if n < 16:
        q = n & 7
        return (q >> 2) * 20 + ((q >> 1) & 1) * 4 + (q & 1), (0 if n < 8 else 1)
    if n < 28: return 8 + (n - 16), None
    return n - 28, None

sAHa, sAHb, sBWa, sBWb = 74, 98, 73, 97
sLB2 = 96
NDEEP = 0
def b_slot(n):
    if NDEEP == 0: return sLB, (n % NS) * 2048
    if n < NS: return sLB, n * 2048
    if n < NS + NDEEP: return sLB2, (n - NS) * 2048
    return sLB, ((n - NS - NDEEP) % NS) * 2048
def fB(n, split=False):
    P = P2
    sb, so = b_slot(n)
    p_, par = step_p(n)
    if n < 28:
        base = sBW if par is None else (sBWa if par == 0 else sBWb); srd_ = S_W2
    else:
        base = sBO; srd_ = S_WO
    o = p_ * 16384
    a = f"s_add_u32 m0, s{sb}, {so}\ns_add_u32 s{sT0}, s{base}, {o}\nbuffer_load_dwordx4 v{P.VW2}, s[{srd_}:{srd_+3}], s{sT0} offen lds"
    b = f"buffer_load_dwordx4 v{P.VW2B}, s[{srd_}:{srd_+3}], s{sT0} offen offset:1024 lds"
    return (a, b) if split else a + "\n" + b

def fA(n, split=False):
    P = P2
    buf = P.AF + 8 * (n % NA)
    p_, par = step_p(n)
    out = []
    for tau in range(2):
        if n < 28:
            base = (sAH + tau) if par is None else ((sAHa if par == 0 else sAHb) + tau)
        else:
            base = sAO + tau
        if p_ * 1024 < 4096:
            out.append(f"buffer_load_dwordx4 v[{buf+4*tau}:{buf+4*tau+3}], v{P.VL16}, s[{S_WS}:{S_WS+3}], s{base} offen offset:{p_*1024} sc1")
        else:
            out.append(f"s_add_u32 s{sT1+tau}, s{base}, {p_*1024}\nbuffer_load_dwordx4 v[{buf+4*tau}:{buf+4*tau+3}], v{P.VL16}, s[{S_WS}:{S_WS+3}], s{sT1+tau} offen sc1")
    return out if split else "\n".join(out)

def p2_reads(n):
    P = P2
    sb, so = b_slot(n); buf = P.BF + 8 * (n & 1)
    vb = P.VBR if sb == sLB else P.VBR2
    return [f"ds_read_b64_tr_b16 v[{buf+4*be+2*u}:{buf+4*be+2*u+1}], v{vb+be} offset:{so + u*1024}" for be in range(2) for u in range(2)]

def f_mfmas(n):
    P = P2
    acc0 = P.ACCF if n < 28 else P.ACCS
    first = n in (0, 28)
    a = P.AF + 8 * (n % NA); b = P.BF + 8 * (n & 1)
    m = []
    for tau in range(2):
        for be in range(2):
            acc = acc0 + 16 * (2*tau + be)
            c = "0" if first else f"v[{acc}:{acc+15}]"
            m.append(f"v_mfma_f32_32x32x16_bf16 v[{acc}:{acc+15}], v[{b+4*be}:{b+4*be+3}], v[{a+4*tau}:{a+4*tau+3}], {c}")
    return m

def fa1_issue(p):
    p(f"s_lshl_b32 s{sT3}, s{sT2i}, 7\ns_lshl_b32 s{sT4}, s{sW4}, 4\ns_add_u32 s{sT3}, s{sT3}, s{sT4}\ns_add_u32 s{sT3}, s{sT3}, {WS_FA}")
    p(f"s_add_u32 s94, s{sWSP}, s{sT3}\ns_addc_u32 s95, s{sWSP+1}, 0")
    p(f"s_load_dwordx4 s[96:99], s[94:95], 0 glc")

def fa1_check(p):
    L = newlbl("L_f1")
    p(f"s_mov_b32 s3, 0\n{L}:\ns_waitcnt lgkmcnt(0)")
    for q in range(4): p(f"s_xor_b32 s{96+q}, s{96+q}, s{sNONCE}")
    p(f"s_or_b32 s96, s96, s97\ns_or_b32 s98, s98, s99\ns_or_b32 s96, s96, s98\ns_cmp_eq_u32 s96, 0\ns_cbranch_scc1 {L}x")
    p(f"s_add_u32 s3, s3, 1\ns_cmp_gt_u32 s3, {SPIN}\ns_cbranch_scc1 {L}x")
    p(f"s_load_dwordx4 s[96:99], s[94:95], 0 glc\ns_branch {L}\n{L}x:")

def relay_poll(p, base, kind, wave):
    L = newlbl("L_rp")
    p(f"s_cmp_lg_u32 s{sW4}, {wave}\ns_cbranch_scc1 {L}e")
    p(f"s_lshl_b32 s{sT3}, s{sT2i}, 7\ns_add_u32 s{sT3}, s{sT3}, {base}\ns_add_u32 s94, s{sWSP}, s{sT3}\ns_addc_u32 s95, s{sWSP+1}, 0")
    p(f"s_mov_b32 s3, 0\n{L}:\ns_load_dwordx16 s[76:91], s[94:95], 0 glc\ns_waitcnt lgkmcnt(0)")
    for q in range(16): p(f"s_xor_b32 s{76+q}, s{76+q}, s{sNONCE}")
    for st in (8, 4, 2, 1):
        for q in range(st): p(f"s_or_b32 s{76+q}, s{76+q}, s{76+q+st}")
    p(f"s_cmp_eq_u32 s76, 0\ns_cbranch_scc1 {L}x\ns_sleep 2\ns_add_u32 s3, s3, 1\ns_cmp_gt_u32 s3, {SPIN}\ns_cbranch_scc0 {L}\n{L}x:")
    p(f"v_mov_b32 v2, {L_LF + 4*kind}\nv_mov_b32 v3, 1\nds_write_b32 v2, v3\n{L}e:")

def relay_check(p, kind, vreg):
    L = newlbl("L_rc")
    p(f"v_readfirstlane_b32 s{sT3}, v{vreg}\ns_cmp_lg_u32 s{sT3}, 0\ns_cbranch_scc1 {L}x")
    p(f"s_mov_b32 s3, 0\nv_mov_b32 v2, {L_LF + 4*kind}\n{L}:\nds_read_b32 v3, v2\ns_waitcnt lgkmcnt(0)\nv_readfirstlane_b32 s{sT3}, v3\ns_cmp_lg_u32 s{sT3}, 0\ns_cbranch_scc1 {L}x")
    p(f"s_sleep 1\ns_add_u32 s3, s3, 1\ns_cmp_gt_u32 s3, {SPIN*8}\ns_cbranch_scc0 {L}\n{L}x:")

def lds_cnt_wait(p, addr, n):
    L = newlbl("L_cw")
    p(f"v_mov_b32 v2, {addr}\ns_mov_b32 s3, 0\n{L}:\nds_read_b32 v3, v2\ns_waitcnt lgkmcnt(0)\nv_readfirstlane_b32 s{sT3}, v3\ns_cmp_ge_u32 s{sT3}, {n}\ns_cbranch_scc1 {L}x")
    p(f"s_sleep 1\ns_add_u32 s3, s3, 1\ns_cmp_gt_u32 s3, {SPIN*8}\ns_cbranch_scc0 {L}\n{L}x:")

def lds_cnt_inc_nowait(p, addr):
    p(f"v_mov_b32 v2, {addr}\nv_mov_b32 v3, 1\ns_mov_b64 exec, 1\nds_add_u32 v2, v3\ns_mov_b64 exec, -1")

def lds_cnt_inc(p, addr):
    p(f"v_mov_b32 v2, {addr}\nv_mov_b32 v3, 1\ns_waitcnt lgkmcnt(0)\ns_mov_b64 exec, 1\nds_add_u32 v2, v3\ns_mov_b64 exec, -1")

def red_write(p, acc0, base):
    P = P2
    for dl in range(1, 4):
        p(f"s_xor_b32 s{sT0}, s{sW4}, {dl}\ns_mul_i32 s{sT0}, s{sT0}, 12288\ns_add_u32 s{sT0}, s{sT0}, {base + (dl-1)*4096}")
        p(f"v_add_u32 v{P.T+dl}, s{sT0}, v{P.VL16}")
        for q in range(4):
            r = acc0 + 16*dl + 4*q
            p(f"ds_write_b128 v{P.T+dl}, v[{r}:{r+3}] offset:{q*1024}")

def red_read(p, base, T):
    P = P2
    p(f"s_mul_i32 s{sT0}, s{sW4}, 12288\ns_add_u32 s{sT0}, s{sT0}, {base}\nv_add_u32 v{P.T}, s{sT0}, v{P.VL16}")
    for sl in range(3):
        for q in range(4):
            p(f"ds_read_b128 v[{T+16*sl+4*q}:{T+16*sl+4*q+3}], v{P.T} offset:{sl*4096 + q*1024}")

VLF = 239
VTD = 238
def h_touch(p, kind):
    nq = 2 if kind != 2 else 3
    p(f"s_and_b32 s{sT0}, s{sC}, 3")
    if kind < 3:
        p(f"s_mul_i32 s{sT0}, s{sT0}, 28\ns_lshl_b32 s{sT1}, s{sT2i}, 1\ns_mul_i32 s{sT1}, s{sT1}, 112\ns_add_u32 s{sT0}, s{sT0}, s{sT1}\ns_lshl_b32 s{sT0}, s{sT0}, 10\ns_add_u32 s{sT0}, s{sT0}, {WS_H}")
        tile_stride = 112 * 1024
    else:
        p(f"s_lshl_b32 s{sT0}, s{sT0}, 3\ns_lshl_b32 s{sT1}, s{sT2i}, 6\ns_add_u32 s{sT0}, s{sT0}, s{sT1}\ns_lshl_b32 s{sT0}, s{sT0}, 10\ns_add_u32 s{sT0}, s{sT0}, {WS_O}")
        tile_stride = 32 * 1024
    p(f"v_and_b32 v2, 7, v1\nv_lshlrev_b32 v2, 7, v2\nv_lshrrev_b32 v3, 3, v1\nv_and_b32 v3, 1, v3\ns_mov_b32 s{sT1}, {tile_stride}\nv_mul_lo_u32 v3, v3, s{sT1}\nv_add_u32 v2, v2, v3\nv_lshrrev_b32 v3, 4, v1")
    if kind in (0, 1):
        x = "" if kind == 0 else f"\ns_xor_b32 s{sT2}, s{sT2}, 2"
        p(f"s_lshr_b32 s{sT1}, s{sW4}, 1\ns_mul_i32 s{sT1}, s{sT1}, 20\ns_and_b32 s{sT2}, s{sW4}, 1\ns_lshl_b32 s{sT2}, s{sT2}, 2\ns_add_u32 s{sT1}, s{sT1}, s{sT2}\ns_mov_b32 s{sT2}, s{sBB2}{x}\ns_add_u32 s{sT1}, s{sT1}, s{sT2}")
    elif kind == 2:
        p(f"s_mul_i32 s{sT1}, s{sW4}, 3\ns_add_u32 s{sT1}, s{sT1}, 8")
    else:
        p(f"s_lshl_b32 s{sT1}, s{sW4}, 1")
    p(f"s_lshl_b32 s{sT1}, s{sT1}, 10\ns_add_u32 s{sT0}, s{sT0}, s{sT1}\nv_lshlrev_b32 v3, 10, v3\nv_add_u32 v2, v2, v3")
    mask = "0xffffffff" if nq == 2 else "0xffffffffffff"
    if nq == 2: p("s_mov_b32 exec_lo, -1\ns_mov_b32 exec_hi, 0")
    else:       p("s_mov_b32 exec_lo, -1\ns_mov_b32 exec_hi, 0xffff")
    p(f"buffer_load_dword v{VTD}, v2, s[{S_WS}:{S_WS+3}], s{sT0} offen sc1\ns_mov_b64 exec, -1")

def phase2(p):
    P = P2
    N = NST
    LEAD = int(OPT.get("lead", 3))
    touch = not OPT.get("notouch") and not OPT.get("ntH")
    ops = []
    BL = 6
    def wait_for(tag):
        last = max(i for i, t in enumerate(ops) if t == tag)
        return len(ops) - 1 - last
    def wait_both(n):
        w = wait_for(f"A{n}")
        if f"B{n}" in ops: w = min(w, wait_for(f"B{n}"))
        return w
    p("L_P2loop:")
    stamp(p, "P2:start")
    p(f"v_add_u32 v{P.VBR2}, s{sLB2}, v{P.VTMPB}\nv_xor_b32 v{P.VBR2+1}, 64, v{P.VBR2}")
    relay_poll(p, WS_FA, 0, 0)
    p(f"v_mov_b32 v2, {L_LF}\nds_read_b32 v{VLF}, v2\ns_waitcnt lgkmcnt(0)")
    relay_check(p, 0, VLF)
    stamp(p, "P2:FA1")
    if touch: h_touch(p, 0); ops += ["t"]
    for n in range(DA): p(fA(n)); ops += [f"A{n}"] * 2
    if NDEEP:
        lds_cnt_wait(p, L_CNT, 4)
        for n in range(DB, NS + NDEEP): p(fB(n)); ops += [f"B{n}"] * 2
        stamp(p, "P2:deep")
    p(f"s_waitcnt vmcnt({len(ops)})")
    L = newlbl("L_fa2")
    p(f"s_cmp_lg_u32 s{sROLE}, 0\ns_cbranch_scc1 {L}")
    store_flag(p, f"s_mov_b32 s{sT0}, s{sHB}")
    p(f"{L}:")
    stamp(p, "P2:drain")
    p(f"s_waitcnt vmcnt({wait_both(0)})")
    for r in p2_reads(0): p(r)
    parts = {8: (1, WS_FA2, 1, 1), 16: (2, WS_FB, 2, 2), 28: (3, WS_FO, 3, 3)}
    chk_at = {}; poll_at = {}
    for nn, v in parts.items():
        c = max(0, nn - DA - LEAD); chk_at[c] = v; poll_at[max(0, c - 2)] = v
    for n in range(N):
        m = f_mfmas(n)
        if n > 0: p(f"s_waitcnt vmcnt({wait_for(f'A{n}')}) lgkmcnt(0)")
        else:     p("s_waitcnt lgkmcnt(0)")
        if n in (0, 4, 8, 12, 16, 20, 24, 28, 32, 35): stamp(p, f"P2:n{n}")
        p(m[0])
        if n + 1 < N:
            if f"B{n+1}" in ops and wait_for(f"B{n+1}") < wait_for(f"A{n}"):
                p(f"s_waitcnt vmcnt({wait_for(f'B{n+1}')})")
            for r in p2_reads(n + 1): p(r)
            if (n + 1) in chk_at and (n + 1) not in poll_at:
                p(f"v_mov_b32 v2, {L_LF + 4*chk_at[n+1][0]}\nds_read_b32 v{VLF}, v2")
        if n in poll_at:
            kind, fl, wv, tk = poll_at[n]; relay_poll(p, fl, kind, wv)
        if n in chk_at:
            kind, fl, wv, tk = chk_at[n]
            if n in poll_at or n == 0:
                p(f"v_mov_b32 v2, {L_LF + 4*kind}\nds_read_b32 v{VLF}, v2\ns_waitcnt lgkmcnt(0)")
            stamp(p, f"P2:pre{kind}"); relay_check(p, kind, VLF); stamp(p, f"P2:chk{kind}")
            if touch: h_touch(p, tk); ops += ["t"]
        vm = []
        nb_ = (n + BL) if NDEEP else (n + DB)
        lo = (NS + NDEEP) if NDEEP else DB
        if lo <= nb_ < N:
            a_, b_ = fB(nb_, True); vm += [a_, b_]; ops += [f"B{nb_}"] * 2
        if n + DA < N:
            vm += fA(n + DA, True); ops += [f"A{n+DA}"] * 2
        rest = m[1:]
        for i_ in range(max(len(vm), len(rest))):
            if i_ < len(vm): p(vm[i_])
            if i_ < len(rest): p(rest[i_])
        if n == 28:
            lds_cnt_wait(p, L_CNT, 4)
            red_write(p, P.ACCF, L_REDF)
            lds_cnt_inc(p, L_CF)
        if n == 32:
            lds_cnt_wait(p, L_CF, 4)
            red_read(p, L_REDF, P.ACCF + 16)
        if n == 33:
            a = P.ACCF
            for sl in range(3):
                for e in range(16): p(f"v_add_f32 v{a+e}, v{a+e}, v{a+16+16*sl+e}")
            TT = a + 16
            for e in range(16): p(f"v_exp_f32 v{TT+e}, -v{a+e}")
            for e in range(16): p(f"v_add_f32 v{TT+e}, 1.0, v{TT+e}")
            for e in range(16): p(f"v_rcp_f32 v{TT+e}, v{TT+e}")
            for e in range(16): p(f"v_mul_f32 v{a+e}, v{a+e}, v{TT+e}")

def final_epilogue(p):
    p("L_FINAL:")
    P = P2
    stamp(p, "F:start")
    red_write(p, P.ACCS, L_REDS)
    lds_cnt_inc(p, L_CS2)
    stamp(p, "F:written")
    TT = P.AF
    for qp in range(2):
        x = P.XR + 4*qp
        p(f"v_permlane32_swap_b32 v{x}, v{x+2}\nv_permlane32_swap_b32 v{x+1}, v{x+3}")
    XU = P.AF + 48
    lds_cnt_wait(p, L_CS2, 4)
    stamp(p, "F:sync")
    red_read(p, L_REDS, TT)
    a = P.ACCF; s = P.ACCS
    p(xres_soff())
    p(f"s_mov_b32 s{sT1}, {fhex(LN2*LN2)}")
    for sl in range(3):
        p(f"s_waitcnt lgkmcnt({8-4*sl})")
        for e in range(16): p(f"v_add_f32 v{s+e}, v{s+e}, v{TT+16*sl+e}")
    for e in range(16): p(f"v_mul_f32 v{a+e}, v{a+e}, v{s+e}")
    for qp in range(2):
        x = P.XR + 4*qp
        for d in range(4):
            e0 = 8*qp + 2*d
            t = TT + 2*d
            p(f"v_lshlrev_b32 v{t}, 16, v{x+d}\nv_and_b32 v{t+1}, 0xffff0000, v{x+d}")
        for d in range(4):
            e0 = 8*qp + 2*d
            t = TT + 2*d
            p(f"v_fma_f32 v{t}, v{a+e0}, s{sT1}, v{t}\nv_fma_f32 v{t+1}, v{a+e0+1}, s{sT1}, v{t+1}")
        for d in range(4):
            t = TT + 2*d
            p(f"v_cvt_pk_bf16_f32 v{x+d}, v{t}, v{t+1}")
        p(f"v_permlane32_swap_b32 v{x}, v{x+2}\nv_permlane32_swap_b32 v{x+1}, v{x+3}")
        p(f"buffer_store_dwordx4 v[{x}:{x+3}], v{P.VX}, s[{S_OUT}:{S_OUT+3}], s{sT0} offen offset:{qp*32}")

def fused():
    p = Prog()
    if STAMPS["on"]: p("s_memrealtime s[100:101]\ns_memtime s[96:97]")
    if OPT.get("dbgtime"): p("s_memrealtime s[100:101]\ns_memtime s[96:97]")
    prologue(p)
    if OPT.get("dbgtime"): p("s_mov_b32 s101, s96")
    if STAMPS["on"]: p(f"v_mov_b32 v{VSTAMP}, 0\nv_writelane_b32 v{VSTAMP}, s96, 0\nv_writelane_b32 v{VSTAMP}, s100, 62")
    p(f"s_cmp_ge_u32 s{sW8}, 4\ns_cbranch_scc0 L_A")
    p(f"s_cmp_eq_u32 s{sROLE}, 0\ns_cbranch_scc0 L_BQ")
    for role in (0, 1):
        if role == 1: p("L_BQ:")
        stamp_reset(1, f"B{role}")
        B_setup(p, role)
        ops = B_phaseA(p, role)
        B_phaseB(p, role, ops)
        if role == 0:
            B_epi_F(p)
        else:
            PQ = B_epi_Q(p); stamp(p, "B:epiQ"); o_stage(p, PQ)
        stamp(p, "B:end"); stamp_dump(p)
        p("s_endpgm")
        p(f"L_Bend{role}:")
    p("L_A:")
    prologue2(p)
    A_stats_issue(p)
    zero_ctrl_(p)
    p2_setup(p)
    fill = [fB(n) for n in range(DB)] + [xres_load()]
    p(f"s_cmp_eq_u32 s{sROLE}, 0\ns_cbranch_scc0 L_AQ")
    stamp_reset(1, "A0")
    A_setup(p, 0); A_stats_compute(p); A_phaseA(p, 0); A_epi_F(p, fill)
    p("s_branch L_P2")
    p("L_AQ:")
    stamp_reset(1, "A1")
    A_setup(p, 1); A_stats_compute(p); A_phaseA(p, 1); A_epi_Q(p, fill)
    p("L_P2:")
    stamp_reset(30, "P2")
    phase2(p)
    final_epilogue(p)
    stamp(p, "F:end"); stamp_dump(p)
    if OPT.get("dbgtime"):
        p("s_memrealtime s[76:77]\ns_memtime s[78:79]\ns_waitcnt lgkmcnt(0)")
        p("s_sub_u32 s76, s76, s100\ns_sub_u32 s78, s78, s101")
        p(f"s_cmp_lg_u32 s{sW4}, 0\ns_cbranch_scc1 L_end\ns_and_b32 s3, s2, 127\ns_cmp_lg_u32 s3, 0\ns_cbranch_scc1 L_end")
        p("s_lshr_b32 s3, s2, 7\ns_lshl_b32 s3, s3, 3\nv_mov_b32 v2, s3\nv_mov_b32 v4, s76\nv_mov_b32 v5, s78\ns_mov_b64 exec, 1")
        p(f"buffer_store_dwordx2 v[4:5], v2, s[{S_DBG}:{S_DBG+3}], 0 offen sc1\ns_mov_b64 exec, -1")
    p("L_end:\ns_endpgm")
    p.fix_hazards()
    e = p.check_waits("fused2")
    return p

def B_phaseA_(p, role):
    B_phaseA(p, role)

def zero_ctrl_(p):
    zero_ctrl(p)

def build(path):
    hdr = open("cdna_kernels/" + NAME + ".s.ref").read().split("\n")
    top = [l for l in hdr if l.startswith(";") and "@launch" not in l and "Override" not in l and "grid=" not in l]
    kn = NAME + "_kernel"
    o = top + [f"; @launch grid=(256,1,1) block=(512,1,1) lds={LDS_BYTES}", '.amdgcn_target "amdgcn-amd-amdhsa--gfx950"\n.text', kernel_header(kn)]
    _lbl[0] = 0
    o.append(fused().text())
    o.append('.section .rodata,"a"\n.p2align 6')
    o.append(kernel_desc(kn, 256, 102, 256))
    open(path, "w").write("\n".join(o) + "\n")

if __name__ == "__main__":
    for a in sys.argv[2:]:
        if a == "diag": STAMPS["on"] = True
        elif "=" in a:
            k_, v_ = a.split("="); OPT[k_] = v_
    if "DA" in OPT: DA = int(OPT["DA"])
    if "deep" in OPT: NDEEP = int(OPT["deep"])
    build(sys.argv[1])
    if STAMPS["on"]:
        import json
        json.dump(STAMPS["names"], open(sys.argv[1] + ".names", "w"))
```

```python
import sys
from prog import *
import struct
def f2u(x): return struct.unpack("<I", struct.pack("<f", x))[0]
def fhex(x): return "0x%08x" % f2u(x)
LOG2E = 1.4426950408889634
LN2 = 0.6931471805599453

OPT = dict(nowarm=1, ntH=1, lead=2, DA=3, w2at=6)

WS_FA, WS_FB, WS_FO = 0, 4096, 8192
WS_C2 = 12288
WS_FA2 = 16384 + 4096
WS_NONCE = 16384
WS_KVZ = 0x10000
WS_STG = 0x30000
WS_CSP = 0x40000
WS_H   = 0x100000
WS_O   = 0x900000
WS_SIZE = 0x1000000
WS_DIAG = 0xF00000

SLOT = 32768
L_P2 = 98304
NS = 7
L_MISC = L_P2 + 4 * NS * 2048
L_RS = L_MISC; L_NMR = L_MISC + 512
L_CSA = L_MISC + 1024
L_CSB = L_MISC + 1536
L_CNT = L_MISC + 2040
L_NONCE = L_MISC + 2032
L_LF = L_MISC + 2000
L_CF = L_MISC + 2016
L_CS2 = L_MISC + 2020
L_W1 = L_MISC + 2024
L_W2 = L_MISC + 2028
L_SPARE = L_MISC + 2048
L_CSPL = L_SPARE
LDS_BYTES = 163840
assert L_SPARE + 6144 == LDS_BYTES

S_X, S_W, S_WS, S_W2, S_WO, S_OUT, S_DBG = 4, 8, 12, 16, 20, 24, 28
sW8, sW4, sI, sJ, sROLE, sR0, sRS = 32, 33, 34, 35, 36, 37, 38
sBO = 39
sT0, sT1, sT2, sT3, sT4, sT5 = 40, 41, 42, 43, 44, 45
sXB, sWB_, sLX, sLW, sXK, sWK, sWBB, sLWB, sK64, sHB = 46, 47, 48, 49, 50, 51, 52, 53, 54, 55
sMASKH = 56
sCOLA, sCOLB = 58, 59
sTMP = 60
sT2i, sC, sAH, sAH1, sBW, sLB, sAO, sAO1 = 62, 63, 64, 65, 66, 67, 68, 69
sLN2, sCEPS = 70, 71
sZ, sROT, sPA, sPB = 72, 73, 74, 75
sBB2 = 0
sNONCE = 57 + 0
sWSP = 92
sPOLL = 96
SPIN = 5000
sNONCE = 3 + 0
sNONCE = 1
DBG_NONCE = 128

STAMPS = {"on": False, "n": 0, "names": {}}
VSTAMP = 12
def stamp(p, name=""):
    if not STAMPS["on"]: return
    if OPT.get("dbgsel"):
        sel = OPT["dbgsel"].split(",")
        if name not in sel: return
        p(f"s_memrealtime s[100:101]\ns_waitcnt lgkmcnt(0)\nv_writelane_b32 v{VSTAMP}, s100, {1 + sel.index(name)}")
        return
    n = STAMPS["n"]; STAMPS["n"] += 1
    assert n < 62
    STAMPS["names"].setdefault(STAMPS.get("path", ""), {})[n] = name
    p(f"{'s_memrealtime' if OPT.get('rt') else 's_memtime'} s[100:101]\ns_waitcnt lgkmcnt(0)\nv_writelane_b32 v{VSTAMP}, s100, {n}")
def stamp_reset(n=0, path=None):
    STAMPS["n"] = n
    if path is not None: STAMPS["path"] = path
def stamp_dump(p):
    if not STAMPS["on"]: return
    if OPT.get("dbgsel"):
        L = newlbl("L_dd")
        p(f"s_or_b32 s3, s2, s{sW8}\ns_cmp_lg_u32 s3, {OPT.get('dbgw', 0)}\ns_cbranch_scc1 {L}")
        p(f"v_readlane_b32 s3, v{VSTAMP}, 62\ns_nop 1\nv_subrev_u32 v{VSTAMP}, s3, v{VSTAMP}\nv_lshlrev_b32 v2, 2, v1\ns_mov_b64 exec, 0xffff")
        p(f"buffer_store_dword v{VSTAMP}, v2, s[{S_DBG}:{S_DBG+3}], 0 offen sc1\ns_mov_b64 exec, -1\n{L}:")
        return
    p(f"s_memrealtime s[100:101]\ns_waitcnt lgkmcnt(0)\nv_writelane_b32 v{VSTAMP}, s100, 63")
    p(f"s_lshl_b32 s{sT0}, s2, 11\ns_lshl_b32 s{sT1}, s{sW8}, 8\ns_add_u32 s{sT0}, s{sT0}, s{sT1}\ns_add_u32 s{sT0}, s{sT0}, {WS_DIAG}")
    p(f"v_lshlrev_b32 v2, 2, v1\nbuffer_store_dword v{VSTAMP}, v2, s[{S_WS}:{S_WS+3}], s{sT0} offen")

_lbl = [0]
def newlbl(s):
    _lbl[0] += 1
    return f"{s}_{_lbl[0]}"

def srd(p, dst, lo, nbytes):
    p(f"s_mov_b32 s{dst}, s{lo}\ns_mov_b32 s{dst+1}, s{lo+1}\ns_mov_b32 s{dst+2}, {nbytes}\ns_mov_b32 s{dst+3}, 0x20000")

KX, KQKV, KWO, KW1, KW2, KOUT, KDBG = 76, 78, 80, 84, 86, 88, 90

def prologue(p):
    p("s_cmp_ge_u32 s2, 256\ns_cbranch_scc1 L_end")
    p(f"s_load_dwordx4 s[{KX}:{KX+3}], s[0:1], 0")
    p(f"s_load_dwordx4 s[{KW1}:{KW1+3}], s[0:1], 32")
    p(f"s_load_dwordx2 s[{sWSP}:{sWSP+1}], s[0:1], 64")
    p(f"s_load_dwordx2 s[{KWO}:{KWO+1}], s[0:1], 16")
    p(f"s_load_dwordx4 s[{KOUT}:{KOUT+3}], s[0:1], 48")
    p("s_getpc_b64 s[94:95]")
    p("v_and_b32 v1, 63, v0\nv_lshrrev_b32 v2, 6, v0")
    p("s_lshr_b32 s3, s2, 3\ns_lshl_b32 s3, s3, 11\nv_lshlrev_b32 v14, 7, v0\nv_add_u32 v14, s3, v14\nv_cmp_gt_u32 vcc, 16, v0")
    p("s_and_saveexec_b64 s[98:99], vcc\ns_cbranch_execz L_nopf")
    p("global_load_dword v15, v14, s[94:95]")
    p("L_nopf:\ns_mov_b64 exec, s[98:99]")
    p(f"v_readfirstlane_b32 s{sW8}, v2")
    p(f"s_and_b32 s{sT0}, s2, 7\ns_lshr_b32 s{sT1}, s2, 3")
    p(f"s_and_b32 s{sT2}, s{sT0}, 1\ns_lshl_b32 s{sT2}, s{sT2}, 3\ns_and_b32 s{sT3}, s{sT1}, 7\ns_add_u32 s{sI}, s{sT2}, s{sT3}")
    p(f"s_lshr_b32 s{sT3}, s{sT1}, 3\ns_lshr_b32 s{sROLE}, s{sT3}, 1")
    p(f"s_lshr_b32 s{sT2}, s{sT0}, 1\ns_lshl_b32 s{sT2}, s{sT2}, 1\ns_and_b32 s{sT4}, s{sT3}, 1\ns_add_u32 s{sJ}, s{sT2}, s{sT4}")
    p(f"s_lshl_b32 s{sT4}, s{sT3}, 1\ns_add_u32 s{sR0}, s{sI}, s{sT4}\ns_and_b32 s{sR0}, s{sR0}, 7")
    p(f"s_and_b32 s{sW4}, s{sW8}, 3")
    p(f"s_mul_i32 s{sT0}, s{sJ}, 224\ns_and_b32 s{sT1}, s{sJ}, 1\ns_mul_i32 s{sT2}, s{sT1}, 96\ns_add_u32 s{sCOLA}, s{sT0}, s{sT2}")
    p(f"s_xor_b32 s{sT1}, s{sT1}, 1\ns_lshl_b32 s{sT1}, s{sT1}, 7\ns_add_u32 s{sCOLB}, s{sT0}, s{sT1}")
    p(f"s_lshl_b32 s{sT0}, s{sJ}, 6\ns_add_u32 s{sT1}, s{sT0}, 512")
    p(f"s_cmp_eq_u32 s{sROLE}, 0")
    p(f"s_cselect_b32 s{sCOLA}, s{sCOLA}, s{sT1}\ns_cselect_b32 s{sCOLB}, s{sCOLB}, s{sT0}")
    p(f"s_mov_b32 s{sT0}, 3584\ns_mov_b32 s{sT1}, 3072\ns_cselect_b32 s{sRS}, s{sT0}, s{sT1}")
    p(f"s_mov_b32 s{sT0}, 1835008\ns_mov_b32 s{sT1}, 1572864\ns_cselect_b32 s{S_W+2}, s{sT0}, s{sT1}\ns_mov_b32 s{S_W+3}, 0x20000")
    p(f"s_lshl_b32 s{sK64}, s{sRS}, 6")
    p("s_waitcnt lgkmcnt(0)")
    p(f"s_cmp_eq_u32 s{sROLE}, 0")
    p(f"s_cselect_b32 s{S_W}, s{KW1}, s{KQKV}\ns_cselect_b32 s{S_W+1}, s{KW1+1}, s{KQKV+1}")
    srd(p, S_X, KX, 2097152)

def prologue2(p):
    srd(p, S_WS, sWSP, WS_SIZE)
    srd(p, S_W2, KW2, 1835008)
    srd(p, S_WO, KWO, 524288)
    srd(p, S_OUT, KOUT, 2097152)
    srd(p, S_DBG, KDBG, 256)
    p(f"s_mov_b32 s{sLN2}, {fhex(LN2)}\ns_mov_b32 s{sCEPS}, {fhex(1e-6/LN2)}")

def make_sel(p, base, t0, t1):
    p(f"v_and_b32 v{t0}, 15, v1\nv_lshrrev_b32 v{t1}, 4, v1\nv_and_b32 v{t1}, 1, v{t1}")
    p(f"v_cmp_eq_u32 vcc, v{t0}, v{t1}")
    p(f"v_mov_b32 v{t0}, 0x3f803f80")
    p(f"v_cndmask_b32 v{base}, 0, v{t0}, vcc")
    for k in range(1, 4): p(f"v_mov_b32 v{base+k}, v{base}")

def code_touch(p, start, end, vdst):
    L = newlbl("L_ct")
    kn = NAME + "_kernel"
    p(f"s_getpc_b64 s[94:95]\n{L}:")
    p(f"s_sub_u32 s94, s94, {L}-{kn}\ns_subb_u32 s95, s95, 0\ns_add_u32 s94, s94, {start}-{kn}\ns_addc_u32 s95, s95, 0")
    p(f"s_mov_b32 s{sT0}, ({end}-{start}+511)/512\ns_mul_i32 s{sT1}, s{sT0}, s{sW4}\ns_sub_u32 s{sT0}, s{sT0}, 1")
    p(f"v_min_u32 v2, s{sT0}, v1\nv_add_u32 v2, s{sT1}, v2\nv_lshlrev_b32 v2, 7, v2")
    p(f"global_load_dword v{vdst}, v2, s[94:95]")

def interleave(p, main, fill):
    n = len(main); m = len(fill); k = 0
    for i, s in enumerate(main):
        while k < m and k * n <= i * m:
            p(fill[k]); k += 1
        p(s)
    while k < m:
        p(fill[k]); k += 1

def store_flag(p, soff_code):
    p(soff_code)
    p(f"v_mov_b32 v2, 0\nv_mov_b32 v3, s{sNONCE}\ns_mov_b64 exec, 1\nbuffer_store_dword v3, v2, s[{S_WS}:{S_WS+3}], s{sT0} offen sc1\ns_mov_b64 exec, -1")

class BR:
    ACC = 16; WF = 64
    CS = 100
    XOFF0, XOFF1, WOFF = 104, 105, 106
    WBOFF = 107; XR = 110; WBL = 114
    SEL = 118; RS, NMR = 122, 123
    TA = 124; WBA = 124
    PFD = 117
    XO = 48
    WO = 52
    WQ1 = 103 + 0
    X = 128

def wb_base(role, k):
    return k * (3072 if role == 0 else 2048)

def B_setup(p, role):
    B = BR
    p(f"v_lshrrev_b32 v2, 3, v1\nv_lshlrev_b32 v5, 10, v2")
    p(f"v_and_b32 v3, 7, v1\nv_lshrrev_b32 v4, 4, v1\nv_xor_b32 v6, v3, v4\nv_lshlrev_b32 v6, 4, v6")
    p(f"v_add_u32 v{B.XOFF0}, v5, v6\nv_xor_b32 v{B.XOFF1}, 64, v{B.XOFF0}")
    p(f"v_mul_lo_u32 v2, v2, s{sRS}")
    p(f"v_and_b32 v4, 1, v4\nv_lshlrev_b32 v4, 2, v4\nv_xor_b32 v3, v3, v4\nv_lshlrev_b32 v3, 4, v3")
    p(f"v_add_u32 v{B.WOFF}, v2, v3")
    p(f"v_mov_b32 v{B.XO}, v{B.XOFF0}\nv_add_u32 v{B.XO+1}, 7168, v{B.XOFF1}\nv_add_u32 v{B.XO+2}, {2*7168}, v{B.XOFF0}\nv_add_u32 v{B.XO+3}, {3*7168}, v{B.XOFF1}")
    p(f"s_lshl_b32 s{sT5}, s{sRS}, 3\ns_sub_u32 s{sT5}, s{sT5}, 1024\nv_mov_b32 v{B.WO}, v{B.WOFF}")
    for t in range(1, 4): p(f"v_add_u32 v{B.WO+t}, s{sT5}, v{B.WO+t-1}")
    p(f"s_lshl_b32 s{sT0}, s{sI}, 7\ns_lshl_b32 s{sT1}, s{sW4}, 5\ns_add_u32 s{sT0}, s{sT0}, s{sT1}\ns_lshl_b32 s{sXB}, s{sT0}, 10")
    p(f"s_lshl_b32 s{sLX}, s{sW4}, 12")
    p(f"s_lshr_b32 s{sT0}, s{sW4}, 1\ns_and_b32 s{sT1}, s{sW4}, 1")
    p(f"s_lshl_b32 s{sT2}, s{sT1}, 5\ns_mul_i32 s{sT2}, s{sT2}, s{sRS}")
    p(f"s_lshl_b32 s{sT3}, s{sCOLA}, 1\ns_lshl_b32 s{sT4}, s{sT0}, {7 if role == 0 else 10}\ns_add_u32 s{sT3}, s{sT3}, s{sT4}")
    p(f"s_add_u32 s{sWB_}, s{sT2}, s{sT3}")
    p(f"s_lshl_b32 s{sT2}, s{sT0}, 13\ns_lshl_b32 s{sT3}, s{sT1}, 12\ns_add_u32 s{sLW}, s{sT2}, s{sT3}\ns_add_u32 s{sLW}, s{sLW}, 16384")

def B_setup2(p, role):
    B = BR
    p(f"v_and_b32 v2, 31, v1\nv_lshrrev_b32 v3, 5, v1")
    p(f"v_lshrrev_b32 v4, 1, v2\nv_and_b32 v4, 7, v4\nv_xor_b32 v4, v4, v3\nv_lshlrev_b32 v4, 4, v4")
    p(f"v_lshlrev_b32 v5, 7, v2\nv_add_u32 v4, v4, v5\nv_add_u32 v4, s{sLX}, v4")
    for pp in range(4): p(f"v_xor_b32 v{B.XR+pp}, {pp*32}, v4")
    p(f"s_lshl_b32 s{sT0}, s{sW4}, 4\ns_mul_i32 s{sT0}, s{sT0}, s{sRS}\ns_lshl_b32 s{sT1}, s{sCOLB}, 1\ns_add_u32 s{sWBB}, s{sT0}, s{sT1}")
    if role == 0:
        for t in range(3):
            p(f"v_add_u32 v2, {64*t}, v1\ns_mov_b32 s{sT0}, 43691\nv_mul_lo_u32 v3, v2, s{sT0}\nv_lshrrev_b32 v3, 19, v3")
            p(f"v_mul_u32_u24 v4, 12, v3\nv_sub_u32 v4, v2, v4\nv_lshlrev_b32 v4, 4, v4\nv_mul_lo_u32 v3, v3, s{sRS}\nv_add_u32 v{B.WBOFF+t}, v3, v4")
            if t: p(f"v_subrev_u32 v{B.WBOFF+t}, {t*1024}, v{B.WBOFF+t}")
        p(f"s_mul_i32 s{sLWB}, s{sW4}, 3072")
        p(f"v_lshrrev_b32 v2, 5, v1\nv_lshlrev_b32 v2, 3, v2\nv_and_b32 v3, 15, v1\nv_lshrrev_b32 v4, 2, v3\nv_add_u32 v2, v2, v4\nv_mul_u32_u24 v2, 192, v2")
        p(f"v_lshrrev_b32 v4, 4, v1\nv_and_b32 v4, 1, v4\nv_lshlrev_b32 v4, 5, v4\nv_add_u32 v2, v2, v4\nv_and_b32 v4, 3, v3\nv_lshlrev_b32 v4, 3, v4\nv_add_u32 v2, v2, v4")
        for be in range(3):
            p(f"s_add_u32 s{sT0}, s{sW4}, {be}\ns_cmp_ge_u32 s{sT0}, 3\ns_cselect_b32 s{sT1}, 3, 0\ns_sub_u32 s{sT0}, s{sT0}, s{sT1}")
            p(f"s_cmp_ge_u32 s{sT0}, 3\ns_cselect_b32 s{sT1}, 3, 0\ns_sub_u32 s{sT0}, s{sT0}, s{sT1}\ns_lshl_b32 s{sT0}, s{sT0}, 6")
            p(f"v_add_u32 v{B.WBL+be}, s{sT0}, v2")
    else:
        p(f"s_lshl_b32 s{sLWB}, s{sW4}, 11")
        p(f"v_mov_b32 v{B.WBOFF}, v{B.WOFF}\ns_lshl_b32 s{sT5}, s{sRS}, 3\ns_sub_u32 s{sT5}, s{sT5}, 1024\nv_add_u32 v{B.WBOFF+1}, s{sT5}, v{B.WOFF}")
        p(f"v_lshrrev_b32 v2, 5, v1\nv_lshlrev_b32 v2, 3, v2\nv_and_b32 v3, 15, v1\nv_lshrrev_b32 v4, 2, v3\nv_add_u32 v2, v2, v4\nv_lshlrev_b32 v2, 7, v2")
        p(f"v_lshrrev_b32 v4, 3, v3\nv_lshlrev_b32 v4, 6, v4\nv_add_u32 v2, v2, v4")
        p(f"v_lshrrev_b32 v4, 4, v1\nv_and_b32 v4, 1, v4\nv_lshlrev_b32 v4, 5, v4\nv_add_u32 v2, v2, v4\nv_and_b32 v4, 3, v3\nv_lshlrev_b32 v4, 3, v4\nv_add_u32 v2, v2, v4")
        p(f"s_and_b32 s{sT0}, s{sW4}, 1\ns_lshl_b32 s{sT0}, s{sT0}, 6\nv_xor_b32 v{B.WBL}, s{sT0}, v2\nv_xor_b32 v{B.WBL+1}, 64, v{B.WBL}")
    make_sel(p, B.SEL, 2, 3)

def dma_stage(stage, xfirst=False):
    B = BR
    slot = (stage % 4) * SLOT
    pre = (f"s_add_u32 s{sT0}, s{sR0}, {stage}\ns_and_b32 s{sT0}, s{sT0}, 7\n"
           f"s_lshl_b32 s{sT1}, s{sT0}, 7\ns_add_u32 s{sXK}, s{sXB}, s{sT1}\n"
           f"s_mul_i32 s{sT1}, s{sT0}, s{sK64}\ns_add_u32 s{sWK}, s{sWB_}, s{sT1}")
    gx = [f"buffer_load_dwordx4 v{B.XO+t}, s[{S_X}:{S_X+3}], s{sXK} offen offset:{t*1024} lds" for t in range(4)]
    gw = [f"buffer_load_dwordx4 v{B.WO+t}, s[{S_W}:{S_W+3}], s{sWK} offen offset:{t*1024} lds" for t in range(4)]
    gx[0] = f"s_add_u32 m0, s{sLX}, {slot}\n" + gx[0]
    gw[0] = f"s_add_u32 m0, s{sLW}, {slot}\n" + gw[0]
    g = gx + gw
    g[0] = pre + "\n" + g[0]
    return g

def dma_wb(t, role):
    B = BR
    b0 = wb_base(role, 4*t)
    pre = (f"s_add_u32 s{sT0}, s{sR0}, {t}\ns_and_b32 s{sT0}, s{sT0}, 7\n"
           f"s_mul_i32 s{sT1}, s{sT0}, s{sK64}\ns_add_u32 s{sWK}, s{sWBB}, s{sT1}\ns_add_u32 m0, s{sLWB}, {b0}")
    n = 3 if role == 0 else 2
    g = [f"buffer_load_dwordx4 v{B.WBOFF+u}, s[{S_W}:{S_W+3}], s{sWK} offen offset:{u*1024} lds" for u in range(n)]
    return [pre + "\n" + "\n".join(g)]

def B_phaseA(p, role):
    B = BR
    nb = 3 if role == 0 else 2
    stamp(p, "B:setup")
    for g in dma_stage(0): p(g)
    stamp(p, "B:dma0")
    for g in dma_stage(1, xfirst=True): p(g)
    for g in dma_stage(2): p(g)
    nwarm = 0
    if not OPT.get("nowarm"):
        A_prefetch_setup(p)
        p(f"v_lshlrev_b32 v2, 7, v1\nbuffer_load_dword v{B.PFD}, v2, s[96:99], s{sPA} offen")
        nwarm = 1
    stamp(p, "B:dma012")
    prologue2(p)
    B_setup2(p, role)
    VST, VCS, LD, ST4, PZ = 16, 17, 20, 36, 40
    p(f"s_lshl_b32 s{sT3}, s{sI}, 11\ns_lshl_b32 s{sT4}, s{sW4}, 9\ns_add_u32 s{sT3}, s{sT3}, s{sT4}\ns_add_u32 s{sT3}, s{sT3}, {WS_STG}\nv_and_b32 v2, 31, v1\nv_lshlrev_b32 v2, 4, v2\nv_add_u32 v{VST}, s{sT3}, v2")
    p(f"s_lshl_b32 s{sT2}, s{sROLE}, 3\ns_add_u32 s{sT2}, s{sT2}, s{sJ}\ns_lshl_b32 s{sT3}, s{sT2}, 14\ns_add_u32 s{sT3}, s{sT3}, {WS_CSP}\ns_lshl_b32 s{sT4}, s{sW4}, 8\ns_add_u32 s{sT3}, s{sT3}, s{sT4}")
    p(f"v_lshrrev_b32 v2, 5, v1\nv_lshlrev_b32 v2, 13, v2\nv_and_b32 v3, 31, v1\nv_lshlrev_b32 v3, 3, v3\nv_add_u32 v2, v2, v3\nv_add_u32 v{VCS}, s{sT3}, v2")
    def preloads():
        o = [f"buffer_load_dwordx4 v[{ST4}:{ST4+3}], v{VST}, s[{S_WS}:{S_WS+3}], 0 offen sc1"]
        for q in range(8):
            so = "0" if q < 4 else f"s{sMASKH}"
            o.append(f"buffer_load_dwordx2 v[{LD+2*q}:{LD+2*q+1}], v{VCS}, s[{S_WS}:{S_WS+3}], {so} offen offset:{(q & 3)*1024} sc1")
        return o
    p(f"s_mov_b32 s{sMASKH}, 4096")
    if role == 0:
        wbs = {5: (0,), 6: (1, 2), 7: (3,)} if not OPT.get("wblate") else {5: (), 6: (0,), 7: (1,)}
        if OPT.get("wball"): wbs = {5: (0, 1), 6: (2, 3, 4), 7: (5, 6, 7)}
    else:
        wbs = {5: (0, 1), 6: (2, 3), 7: ()} if not OPT.get("wblate") else {5: (), 6: (0, 1), 7: (2, 3)}
        if OPT.get("wball"): wbs = {5: (0, 1, 2, 3), 6: (4, 5, 6, 7), 7: ()}
    ops = []
    ops += ["s0"]*8 + ["s1"]*8 + ["s2"]*8 + ["w"]*nwarm
    def wait_for(tag):
        last = max(i for i, t in enumerate(ops) if t == tag)
        return len(ops) - 1 - last
    for s in range(8):
        p(f"s_waitcnt vmcnt({wait_for('s%d' % s)}) lgkmcnt(0)")
        stamp(p, f"B:landed{s}")
        p("s_barrier")
        if s <= 4: fill = dma_stage(s + 3); tags = ["s%d" % (s + 3)] * 8
        else:
            fill = sum((dma_wb(t, role) for t in wbs[s]), []); tags = sum((["b%d" % t] * nb for t in wbs[s]), [])
        slot = (s % 4) * SLOT
        for pp in range(4):
            k = 4 * s + pp
            p(f"v_add_u32 v{B.TA+pp}, {slot}, v{B.XR+pp}\nds_read_b128 v[{B.X+4*k}:{B.X+4*k+3}], v{B.TA+pp}")
        if s == 0:
            p(f"v_mov_b32 v3, {L_NONCE}\nds_read_b32 v4, v3\ns_waitcnt lgkmcnt(0)\nv_readfirstlane_b32 s{sNONCE}, v4")
        for g in fill: p(g)
        ops += tags
        if s == 2:
            p(f"v_and_b32 v2, 15, v1\nv_lshlrev_b32 v3, 3, v2\ns_lshl_b32 s{sT0}, s{sW4}, 7\ns_add_u32 s{sT0}, s{sT0}, {L_CSPL}\nv_add_u32 v3, s{sT0}, v3\nds_read_b64 v[44:45], v3")
            p(f"s_lshl_b32 s{sT0}, s{sROLE}, 3\ns_add_u32 s{sT0}, s{sT0}, s{sJ}\ns_lshl_b32 s{sT0}, s{sT0}, 4\ns_add_u32 s{sT0}, s{sT0}, s{sI}\ns_lshl_b32 s{sT0}, s{sT0}, 10\ns_add_u32 s{sT0}, s{sT0}, {WS_CSP}\ns_lshl_b32 s{sT1}, s{sW4}, 8\ns_add_u32 s{sT0}, s{sT0}, s{sT1}")
            p(f"v_lshlrev_b32 v2, 4, v2\ns_waitcnt lgkmcnt(0)\nv_mov_b32 v46, v45\nv_mov_b32 v45, s{sNONCE}\nv_mov_b32 v47, s{sNONCE}")
            p(f"s_mov_b64 exec, 0xffff\nbuffer_store_dwordx4 v[44:47], v2, s[{S_WS}:{S_WS+3}], s{sT0} offen sc1\ns_mov_b64 exec, -1")
            p(f"v_and_b32 v2, 31, v1\nv_lshlrev_b32 v2, 2, v2\nbuffer_load_dword v{PZ}, v2, s[{S_DBG}:{S_DBG+3}], 0 offen sc1")
            ops += ["c", "z"]
        if s == int(OPT.get("plat", 6)):
            for x_ in preloads(): p(x_)
            ops += ["p"] * 9
        if OPT.get("touch"):
            if s == 3:
                code_touch(p, f"L_Aepi{role}", "L_AQ" if role == 0 else "L_P2", B.PFD); ops += ["t"]
                code_touch(p, f"L_Bpb{role}", f"L_Bend{role}", B.PFD); ops += ["t"]
            if s == 6:
                code_touch(p, "L_P2", "L_end", B.PFD); ops += ["t"]
    L = newlbl("L_tg")
    p(f"s_waitcnt vmcnt({wait_for('p')})")
    p(f"s_mov_b32 s3, 0\n{L}:")
    p(f"v_xor_b32 v2, s{sNONCE}, v{ST4+2}")
    for q in range(8): p(f"v_xor_b32 v3, s{sNONCE}, v{LD+2*q+1}\nv_or_b32 v2, v2, v3")
    p(f"v_cmp_ne_u32 vcc, 0, v2\ns_cbranch_vccz {L}x")
    p(f"s_add_u32 s3, s3, 1\ns_cmp_gt_u32 s3, {SPIN}\ns_cbranch_scc1 {L}x")
    for x_ in preloads(): p(x_)
    p(f"s_waitcnt vmcnt(0)\ns_branch {L}\n{L}x:")
    p(f"v_and_b32 v2, 31, v1\nv_lshlrev_b32 v2, 2, v2")
    poll_check(p, PZ, 1, 2, S_DBG)
    p(f"s_lshl_b32 s{sT0}, s{sW4}, 7\ns_add_u32 s{sT0}, s{sT0}, {L_RS}\nv_add_u32 v3, s{sT0}, v2\nds_write_b32 v3, v{ST4}\nds_write_b32 v3, v{ST4+1} offset:512")
    for st in (4, 2, 1):
        for q in range(st): p(f"v_add_f32 v{LD+2*q}, v{LD+2*q}, v{LD+2*(q+st)}")
    p(f"v_mov_b32 v4, v{LD}\nv_permlane32_swap_b32 v4, v{LD}\nv_add_f32 v{LD}, v{LD}, v4")
    p(f"s_lshl_b32 s{sT0}, s{sW4}, 7\ns_add_u32 s{sT0}, s{sT0}, {L_CSA}\nv_add_u32 v3, s{sT0}, v2\nds_write_b32 v3, v{LD}")
    return ops

def B_phaseB(p, role, ops):
    p(f"L_Bpb{role}:")
    B = BR
    nb = 3 if role == 0 else 2
    ustride = 768 if role == 0 else 512
    def reads(k):
        buf = B.WF + (k % 3) * 12
        base = wb_base(role, k)
        hi = base // 32768; lo = base - hi * 32768
        s = []
        for be in range(nb):
            for u in range(2):
                s.append(f"ds_read_b64_tr_b16 v[{buf+4*be+2*u}:{buf+4*be+2*u+1}], v{B.WBA+be} offset:{lo + u*ustride}")
        return hi, s
    cur = [None]
    def setaddr(hi):
        if cur[0] == hi: return ""
        cur[0] = hi
        return "\n".join(f"v_add_u32 v{B.WBA+be}, {hi*32768}, v{B.WBL+be}" for be in range(nb))
    def mfmas(k):
        buf = B.WF + (k % 3) * 12; x = B.X + 4 * k; first = k == 0
        s = []
        for be in range(nb):
            c = "0" if first else f"v[{B.ACC+16*be}:{B.ACC+16*be+15}]"
            s.append(f"v_mfma_f32_32x32x16_bf16 v[{B.ACC+16*be}:{B.ACC+16*be+15}], v[{buf+4*be}:{buf+4*be+3}], v[{x}:{x+3}], {c}")
        c = "0" if first else f"v[{B.CS}:{B.CS+3}]"
        s.append(f"v_mfma_f32_16x16x32_bf16 v[{B.CS}:{B.CS+3}], v[{buf}:{buf+3}], v[{B.SEL}:{B.SEL+3}], {c}")
        return s
    def wait_for(tag):
        last = max(i for i, t in enumerate(ops) if t == tag)
        return len(ops) - 1 - last
    rest_wb = list(range(2, 8)) if (role == 0 and OPT.get('wblate')) else list(range(4, 8))
    if OPT.get('wball'): rest_wb = []
    w8 = wait_for("b1")
    for t in rest_wb: ops += ["b%d" % t] * nb
    w9 = wait_for("b3")
    nrd = 2 * nb
    p(f"s_waitcnt vmcnt({w8}) lgkmcnt(0)")
    stamp(p, "B:pre8")
    p("s_barrier")
    stamp(p, "B:post8")
    if OPT.get("prioBm"): p(f"s_setprio {OPT['prioBm']}")
    for k0 in range(2):
        hi, rr = reads(k0)
        a = setaddr(hi)
        if a: p(a)
        for r in rr: p(r)
    for k in range(32):
        m = mfmas(k)
        p(f"s_waitcnt lgkmcnt({nrd if k < 31 else 0})")
        if k in (2, 4, 6, 8, 12, 14, 16, 24): stamp(p, f"B:b{k}")
        p(m[0])
        if k < len(rest_wb):
            for g in dma_wb(rest_wb[k], role): p(g)
        if k + 2 < 32:
            if k + 4 == 8:  p(f"s_waitcnt vmcnt({w9})"); lds_cnt_inc_nowait(p, L_W1)
            if k + 4 == 16: p(f"s_waitcnt vmcnt(0)"); lds_cnt_inc_nowait(p, L_W2)
            if k + 2 == 8:  lds_cnt_wait(p, L_W1, 4)
            if k + 2 == 16: lds_cnt_wait(p, L_W2, 4)
            hi, rr = reads(k + 2)
            a = setaddr(hi)
            if a:
                p("s_waitcnt lgkmcnt(0)") if False else None
                p(a)
            rest = m[1:]
            per = (len(rr) + len(rest) - 1) // len(rest)
            ri = 0
            for mm in rest:
                for _ in range(per):
                    if ri < len(rr): p(rr[ri]); ri += 1
                p(mm)
            while ri < len(rr): p(rr[ri]); ri += 1
        else:
            for mm in m[1:]: p(mm)
    stamp(p, "B:mfma_end")
    if OPT.get("prioBm"): p(f"s_setprio {OPT.get('prioBe', 0)}")
    if OPT.get("prioBe"): p(f"s_setprio {OPT['prioBe']}")
    T = 2
    p(f"v_and_b32 v{T}, 15, v1\nv_lshrrev_b32 v{T+1}, 4, v1")
    p(f"v_cmp_gt_u32 vcc, 2, v{T}")
    p(f"v_lshlrev_b32 v{T}, 6, v{T}\nv_lshlrev_b32 v{T+1}, 4, v{T+1}\nv_add_u32 v{T}, v{T}, v{T+1}")
    if role == 0: p(f"s_cmp_eq_u32 s{sW4}, 3\ns_cselect_b32 s{sT0}, 0, s{sW4}\ns_lshl_b32 s{sT0}, s{sT0}, 7\ns_add_u32 s{sT0}, s{sT0}, {L_CSB}")
    else:         p(f"s_and_b32 s{sT0}, s{sW4}, 1\ns_lshl_b32 s{sT0}, s{sT0}, 7\ns_add_u32 s{sT0}, s{sT0}, {L_CSB}")
    p(f"v_add_u32 v{T}, s{sT0}, v{T}")
    p(f"s_and_saveexec_b64 s[{sTMP}:{sTMP+1}], vcc")
    p(f"ds_write_b128 v{T}, v[{B.CS}:{B.CS+3}]")
    p(f"s_mov_b64 exec, s[{sTMP}:{sTMP+1}]")
    L = newlbl("L_cnt")
    p(f"v_mov_b32 v4, {L_CNT}\nv_mov_b32 v5, 1\ns_waitcnt lgkmcnt(0)\ns_mov_b64 exec, 1\nds_add_u32 v4, v5\ns_mov_b64 exec, -1")
    p(f"s_mov_b32 s3, 0\n{L}:\ns_add_u32 s3, s3, 1\ns_cmp_gt_u32 s3, {SPIN}\ns_cbranch_scc1 {L}x")
    p(f"ds_read_b32 v5, v4\ns_waitcnt lgkmcnt(0)\nv_cmp_gt_u32 vcc, 4, v5\ns_cbranch_vccnz {L}\n{L}x:")
    p(f"v_and_b32 v2, 31, v1\nv_lshlrev_b32 v2, 2, v2\ns_lshl_b32 s{sT0}, s{sW4}, 7\ns_add_u32 s{sT0}, s{sT0}, {L_RS}\nv_add_u32 v2, s{sT0}, v2")
    p(f"ds_read_b32 v{B.RS}, v2\nds_read_b32 v{B.NMR}, v2 offset:512")

def silu_chunk(p, acc, cs, rs, nmr, T, out):
    for e in range(8): p(f"v_mul_f32 v{T+e}, v{nmr}, v{cs+e}")
    for e in range(8): p(f"v_fma_f32 v{T+e}, v{acc+e}, v{rs}, v{T+e}")
    for e in range(8): p(f"v_exp_f32 v{T+8+e}, -v{T+e}")
    for e in range(8): p(f"v_add_f32 v{T+8+e}, 1.0, v{T+8+e}")
    for e in range(8): p(f"v_rcp_f32 v{T+8+e}, v{T+8+e}")
    for e in range(8): p(f"v_mul_f32 v{T+e}, v{T+e}, v{T+8+e}")
    for e in range(4): p(f"v_cvt_pk_bf16_f32 v{out+e}, v{T+2*e}, v{T+2*e+1}")

def phi_elems(p, t, n, T):
    for e in range(n): p(f"v_min_f32 v{T+e}, 0, v{t+e}")
    for e in range(n): p(f"v_exp_f32 v{T+e}, v{T+e}")
    for e in range(n): p(f"v_max_f32 v{t+e}, s{sCEPS}, v{t+e}")
    for e in range(n): p(f"v_fma_f32 v{t+e}, v{t+e}, s{sLN2}, v{T+e}")

def B_epi_F(p):
    stamp(p, "B:cnt_done")
    B = BR
    CSV, T, OUT, VA = 128, 176, 192, 200
    p(f"v_lshrrev_b32 v3, 5, v1\nv_lshlrev_b32 v3, 4, v3\nv_add_u32 v3, {L_CSB}, v3")
    for be in range(3):
        p(f"s_add_u32 s{sT0}, s{sW4}, {be}\ns_cmp_ge_u32 s{sT0}, 3\ns_cselect_b32 s{sT1}, 3, 0\ns_sub_u32 s{sT0}, s{sT0}, s{sT1}")
        p(f"s_cmp_ge_u32 s{sT0}, 3\ns_cselect_b32 s{sT1}, 3, 0\ns_sub_u32 s{sTMP+2+be}, s{sT0}, s{sT1}")
        p(f"s_lshl_b32 s{sT0}, s{sTMP+2+be}, 7\nv_add_u32 v{VA+be}, s{sT0}, v3")
        for q in range(4):
            p(f"ds_read_b128 v[{CSV+16*be+4*q}:{CSV+16*be+4*q+3}], v{VA+be} offset:{q*32}")
    p(f"v_lshlrev_b32 v{VA+3}, 4, v1")
    p(f"s_lshl_b32 s{sT2}, s{sI}, 2\ns_add_u32 s{sT2}, s{sT2}, s{sW4}\ns_mul_i32 s{sT2}, s{sT2}, 112\ns_lshr_b32 s{sT3}, s{sCOLB}, 4\ns_add_u32 s{sT2}, s{sT2}, s{sT3}")
    p(f"s_lshl_b32 s{sHB}, s{sT2}, 10\ns_add_u32 s{sHB}, s{sHB}, {WS_H}")
    ch = 0
    for be in range(3):
        p(f"s_waitcnt lgkmcnt({8-4*be})")
        for qp in range(2):
            o = OUT + 4*(ch & 1)
            silu_chunk(p, B.ACC + 16*be + 8*qp, CSV + 16*be + 8*qp, B.RS, B.NMR, T, o)
            stamp(p, f"B:v{ch}")
            p(f"s_lshl_b32 s{sT2}, s{sTMP+2+be}, 11\ns_add_u32 s{sT2}, s{sT2}, s{sHB}\ns_add_u32 s{sT2}, s{sT2}, {qp*1024}")
            p(f"buffer_store_dwordx4 v[{o}:{o+3}], v{VA+3}, s[{S_WS}:{S_WS+3}], s{sT2} offen sc1")
            stamp(p, f"B:s{ch}")
            ch += 1
    stamp(p, "B:epi_valu")
    p("s_waitcnt vmcnt(0)")
    stamp(p, "B:drained")
    store_flag(p, flagB_addr(WS_FB))

def flagB_addr(base):
    return (f"s_lshl_b32 s{sT2}, s{sI}, 1\ns_lshr_b32 s{sT3}, s{sW4}, 1\ns_add_u32 s{sT2}, s{sT2}, s{sT3}\ns_lshl_b32 s{sT2}, s{sT2}, 7\n"
            f"s_lshl_b32 s{sT3}, s{sJ}, 1\ns_and_b32 s{sT4}, s{sW4}, 1\ns_add_u32 s{sT3}, s{sT3}, s{sT4}\ns_lshl_b32 s{sT3}, s{sT3}, 2\n"
            f"s_add_u32 s{sT0}, s{sT2}, s{sT3}\ns_add_u32 s{sT0}, s{sT0}, {base}")

def B_epi_Q(p):
    B = BR
    CSV, T, PQ, VA = 128, 160, 224, 170
    p(f"v_lshrrev_b32 v3, 5, v1\nv_lshlrev_b32 v3, 4, v3\nv_add_u32 v3, {L_CSB}, v3")
    p(f"s_and_b32 s{sT0}, s{sW4}, 1\ns_lshl_b32 s{sT0}, s{sT0}, 7\nv_add_u32 v{VA}, s{sT0}, v3\nv_xor_b32 v{VA+1}, 128, v{VA}")
    for be in range(2):
        for q in range(4):
            p(f"ds_read_b128 v[{CSV+16*be+4*q}:{CSV+16*be+4*q+3}], v{VA+be} offset:{q*32}")
    for be in range(2):
        p(f"s_waitcnt lgkmcnt({4-4*be})")
        for qp in range(2):
            a = B.ACC + 16*be + 8*qp; cs = CSV + 16*be + 8*qp
            for e in range(8): p(f"v_mul_f32 v{T+e}, v{B.NMR}, v{cs+e}")
            for e in range(8): p(f"v_fma_f32 v{a+e}, v{a+e}, v{B.RS}, v{T+e}")
            phi_elems(p, a, 8, T)
            for e in range(4): p(f"v_cvt_pk_bf16_f32 v{PQ+8*be+4*qp+e}, v{a+2*e}, v{a+2*e+1}")
    return PQ

def wait_c2(p):
    L = newlbl("L_c2")
    p(f"s_lshl_b32 s{sT0}, s{sJ}, 8\ns_add_u32 s{sT0}, s{sT0}, {WS_C2}")
    p(f"v_and_b32 v2, 1, v1\nv_lshlrev_b32 v2, 7, v2")
    p(f"s_mov_b32 s3, 0\n{L}:\ns_add_u32 s3, s3, 1\ns_cmp_gt_u32 s3, {SPIN}\ns_cbranch_scc1 {L}x")
    p(f"buffer_load_dword v3, v2, s[{S_WS}:{S_WS+3}], s{sT0} offen sc1\ns_waitcnt vmcnt(0)\nv_cmp_ne_u32 vcc, 32, v3\ns_cbranch_vccz {L}x\ns_sleep 4\ns_branch {L}\n{L}x:")

def o_stage(p, PQ, T0=128):
    LD = T0; KA = T0 + 32; D4 = T0 + 48; OUT = T0 + 80; VA = T0 + 88
    p(f"v_and_b32 v2, 31, v1\nv_lshrrev_b32 v3, 5, v1")
    p(f"v_lshlrev_b32 v4, 5, v3\nv_add_u32 v4, v4, v2\nv_lshlrev_b32 v4, 2, v4")
    p(f"v_lshlrev_b32 v5, 2, v3\nv_add_u32 v5, 2048, v5")
    p(f"v_cmp_gt_u32 vcc, 16, v2")
    p(f"v_cndmask_b32 v{VA}, v5, v4, vcc")
    p(f"v_add_u32 v4, 64, v4\nv_add_u32 v5, 8, v5")
    p(f"v_cndmask_b32 v{VA+1}, v5, v4, vcc")
    p(f"v_lshlrev_b32 v{VA+2}, 4, v1")
    p(f"s_lshl_b32 s{sT0}, s{sJ}, 13\ns_add_u32 s{sT0}, s{sT0}, {WS_KVZ}")
    p(f"s_and_b32 s{sT1}, s{sW4}, 1\ns_lshl_b32 s{sT1}, s{sT1}, 12")
    p(f"s_add_u32 s{sTMP}, s{sT0}, s{sT1}\ns_xor_b32 s{sT1}, s{sT1}, 4096\ns_add_u32 s{sTMP+1}, s{sT0}, s{sT1}")
    p(f"s_lshl_b32 s{sT4}, s{sI}, 2\ns_add_u32 s{sT4}, s{sT4}, s{sW4}\ns_lshl_b32 s{sT4}, s{sT4}, 5\ns_lshl_b32 s{sT5}, s{sJ}, 2\ns_add_u32 s{sT4}, s{sT4}, s{sT5}")
    p(f"s_lshl_b32 s{sT4}, s{sT4}, 10\ns_add_u32 s{sHB}, s{sT4}, {WS_O}")
    p(f"s_and_b32 s{sT1}, s{sW4}, 1\ns_lshl_b32 s{sT1}, s{sT1}, 11")
    p(f"s_add_u32 s{sTMP+2}, s{sHB}, s{sT1}\ns_xor_b32 s{sT1}, s{sT1}, 2048\ns_add_u32 s{sTMP+3}, s{sHB}, s{sT1}")
    wait_c2(p)
    stamp(p, "B:c2")
    for be in range(2):
        for hh in range(2):
            h = 2*be + hh
            for r in range(8):
                p(f"buffer_load_dword v{LD+8*h+r}, v{VA+hh}, s[{S_WS}:{S_WS+3}], s{sTMP+be} offen offset:{r*256} sc1")
    for h in range(4):
        be, hh = h >> 1, h & 1
        d = D4 + 16 * (h & 1)
        p(f"s_waitcnt vmcnt({(3-h)*8 + max(0, h-2)})")
        for e in range(4): p(f"v_cvt_pk_bf16_f32 v{KA+4*h+e}, v{LD+8*h+2*e}, v{LD+8*h+2*e+1}")
        p(f"v_mfma_f32_32x32x16_bf16 v[{d}:{d+15}], v[{KA+4*h}:{KA+4*h+3}], v[{PQ+8*be+4*hh}:{PQ+8*be+4*hh+3}], 0")
        if h >= 1: o_fin(p, h - 1, D4, OUT, VA)
    o_fin(p, 3, D4, OUT, VA)
    p("s_waitcnt vmcnt(0)")
    store_flag(p, flagB_addr(WS_FO))

def o_fin(p, h, D4, OUT, VA):
    be, hh = h >> 1, h & 1
    d = D4 + 16 * (h & 1); o = OUT + 4 * (h & 1)
    p(f"v_add_f32 v{d+8}, {fhex(1e-6)}, v{d+8}")
    p(f"v_rcp_f32 v{d+8}, v{d+8}")
    for e in range(8): p(f"v_mul_f32 v{d+e}, v{d+e}, v{d+8}")
    for e in range(4): p(f"v_cvt_pk_bf16_f32 v{o+e}, v{d+2*e}, v{d+2*e+1}")
    p(f"s_add_u32 s{sT5}, s{sTMP+2+be}, {hh*1024}")
    p(f"buffer_store_dwordx4 v[{o}:{o+3}], v{VA+2}, s[{S_WS}:{S_WS+3}], s{sT5} offen sc1")

class AR:
    ACC = 16; XF = 80; WF = 184; CS = 112; SEL = 120; SEL2 = 236
    AX = 124; AX2 = 128; AW = 132; AW2 = 134
    E = 136
    CL = 136
    STL = 168
    POLL = 172
    VCL = 173
    VSL = 174
    PF = 255
    CSO = 176

def zero_ctrl(p):
    L = newlbl("L_nz")
    p(f"s_cmp_ge_u32 s2, 8\ns_cbranch_scc1 {L}")
    L2 = newlbl("L_nn")
    p(f"s_or_b32 s{sT0}, s2, s{sW4}\ns_cmp_lg_u32 s{sT0}, 0\ns_cbranch_scc1 {L2}")
    p(f"s_load_dword s{sT3}, s[{sWSP}:{sWSP+1}], {WS_NONCE} glc")
    p(f"{L2}:")
    p("v_mov_b32 v8, 0\nv_mov_b32 v9, 0\nv_mov_b32 v10, 0\nv_mov_b32 v11, 0\nv_lshlrev_b32 v2, 4, v1")
    p(f"s_lshl_b32 s{sT0}, s2, 13\ns_lshl_b32 s{sT1}, s{sW4}, 11\ns_add_u32 s{sT0}, s{sT0}, s{sT1}\ns_add_u32 s{sT0}, s{sT0}, {WS_KVZ}")
    p(f"buffer_store_dwordx4 v[8:11], v2, s[{S_WS}:{S_WS+3}], s{sT0} offen sc1\nbuffer_store_dwordx4 v[8:11], v2, s[{S_WS}:{S_WS+3}], s{sT0} offen offset:1024 sc1")
    p(f"s_lshl_b32 s{sT0}, s2, 8\ns_add_u32 s{sT0}, s{sT0}, {WS_C2}\ns_mov_b64 exec, 0xffff")
    p(f"buffer_store_dwordx4 v[8:11], v2, s[{S_WS}:{S_WS+3}], s{sT0} offen sc1\ns_mov_b64 exec, -1")
    L3 = newlbl("L_nn")
    p(f"s_or_b32 s{sT0}, s2, s{sW4}\ns_cmp_lg_u32 s{sT0}, 0\ns_cbranch_scc1 {L3}")
    p(f"s_waitcnt lgkmcnt(0)\ns_add_u32 s{sT3}, s{sT3}, 1\ns_or_b32 s{sT3}, s{sT3}, 1")
    p(f"v_mov_b32 v3, s{sT3}\nv_mov_b32 v4, {DBG_NONCE}\nv_mov_b32 v5, {WS_NONCE}\ns_mov_b64 exec, 1")
    p(f"buffer_store_dword v3, v4, s[{S_DBG}:{S_DBG+3}], 0 offen sc1\nbuffer_store_dword v3, v5, s[{S_WS}:{S_WS+3}], 0 offen sc1\ns_mov_b64 exec, -1")
    p(f"{L3}:")
    p(f"s_lshl_b32 s{sT0}, s2, 2\ns_add_u32 s{sT0}, s{sT0}, s{sW4}\ns_lshl_b32 s{sT0}, s{sT0}, 2\nv_mov_b32 v2, s{sT0}\nv_mov_b32 v3, 1")
    p("s_waitcnt vmcnt(0)")
    p(f"s_mov_b64 exec, 1\nbuffer_store_dword v3, v2, s[{S_DBG}:{S_DBG+3}], 0 offen sc1\ns_mov_b64 exec, -1")
    p(f"{L}:")

def get_nonce(p):
    L = newlbl("L_gn")
    p(f"v_mov_b32 v2, {DBG_NONCE}")
    p(f"s_mov_b32 s3, 0\n{L}:\ns_add_u32 s3, s3, 1\ns_cmp_gt_u32 s3, {SPIN}\ns_cbranch_scc1 {L}x")
    p(f"buffer_load_dword v3, v2, s[{S_DBG}:{S_DBG+3}], 0 offen sc1\ns_waitcnt vmcnt(0)\nv_readfirstlane_b32 s{sNONCE}, v3\ns_cmp_eq_u32 s{sNONCE}, 0\ns_cbranch_scc1 {L}\n{L}x:")
    p(f"v_mov_b32 v2, {L_NONCE}\nv_mov_b32 v3, s{sNONCE}\nds_write_b32 v2, v3")

def A_stats_issue(p):
    p(f"s_lshl_b32 s{sT0}, s{sROLE}, 3\ns_add_u32 s{sT0}, s{sT0}, s{sJ}\ns_lshl_b32 s{sT0}, s{sT0}, 3\ns_lshl_b32 s{sT1}, s{sW4}, 1\ns_add_u32 s{sT0}, s{sT0}, s{sT1}")
    p(f"s_lshl_b32 s{sT1}, s{sI}, 7\ns_add_u32 s{sZ}, s{sT0}, s{sT1}\ns_lshl_b32 s{sT0}, s{sZ}, 10")
    p(f"v_lshlrev_b32 v2, 4, v1")
    p(f"buffer_load_dwordx4 v[40:43], v2, s[{S_X}:{S_X+3}], s{sT0} offen\nbuffer_load_dwordx4 v[44:47], v2, s[{S_X}:{S_X+3}], s{sT0} offen offset:1024")

def A_prefetch_setup(p):
    p(f"s_cmp_eq_u32 s{sW4}, 0\ns_cselect_b32 s96, s{KQKV}, s{KW1}\ns_cselect_b32 s97, s{KQKV+1}, s{KW1+1}\ns_mov_b32 s{sT0}, 1835008\ns_mov_b32 s{sT1}, 1572864\ns_cselect_b32 s98, s{sT1}, s{sT0}\ns_mov_b32 s{sT2}, 56\ns_mov_b32 s{sT3}, 48\ns_cselect_b32 s{sT2}, s{sT3}, s{sT2}")
    p(f"s_cmp_eq_u32 s{sW4}, 2\ns_cselect_b32 s96, s{KW2}, s96\ns_cselect_b32 s97, s{KW2+1}, s97")
    p(f"s_cmp_eq_u32 s{sW4}, 3\ns_cselect_b32 s96, s{KWO}, s96\ns_cselect_b32 s97, s{KWO+1}, s97\ns_mov_b32 s{sT0}, 524288\ns_cselect_b32 s98, s{sT0}, s98\ns_mov_b32 s{sT3}, 16\ns_cselect_b32 s{sT2}, s{sT3}, s{sT2}")
    p(f"s_mov_b32 s99, 0x20000\ns_mul_i32 s{sT2}, s{sT2}, s2\ns_lshl_b32 s{sPA}, s{sT2}, 7")

def A_stats_compute(p):
    p("s_waitcnt vmcnt(0)")
    for r in range(2):
        for d in range(4):
            x = 40 + 4*r + d
            p(f"v_lshlrev_b32 v48, 16, v{x}\nv_and_b32 v49, 0xffff0000, v{x}")
            if d == 0:
                p(f"v_add_f32 v{50+2*r}, v48, v49\nv_mul_f32 v{51+2*r}, v48, v48\nv_fmac_f32 v{51+2*r}, v49, v49")
            else:
                p(f"v_add_f32 v{50+2*r}, v{50+2*r}, v48\nv_fmac_f32 v{51+2*r}, v48, v48\nv_add_f32 v{50+2*r}, v{50+2*r}, v49\nv_fmac_f32 v{51+2*r}, v49, v49")
    for ctl in ("row_shr:1", "row_shr:2", "row_shr:4", "row_shr:8"):
        for v in range(50, 54): p(f"v_add_f32_dpp v{v}, v{v}, v{v} {ctl} row_mask:0xf bank_mask:0xf bound_ctrl:0")
    for v in range(50, 54): p(f"v_add_f32_dpp v{v}, v{v}, v{v} row_bcast:15 row_mask:0xa bank_mask:0xf")
    for v in range(50, 54): p(f"v_add_f32_dpp v{v}, v{v}, v{v} row_bcast:31 row_mask:0xc bank_mask:0xf")
    for r in range(2):
        s, q = 50 + 2*r, 51 + 2*r
        p(f"v_mul_f32 v{s}, {fhex(1.0/512)}, v{s}\nv_mul_f32 v{q}, {fhex(1.0/512)}, v{q}")
        p(f"v_fma_f32 v{q}, -v{s}, v{s}, v{q}\nv_max_f32 v{q}, 0, v{q}\nv_add_f32 v{q}, {fhex(1e-5)}, v{q}")
        p(f"v_rsq_f32 v{q}, v{q}")
        p(f"v_mul_f32 v{54+2*r}, {fhex(LOG2E)}, v{q}")
        p(f"v_mul_f32 v{55+2*r}, v{54+2*r}, v{s}\nv_sub_f32 v{55+2*r}, 0, v{55+2*r}")
    get_nonce(p)
    p(f"v_mov_b32 v60, v56\nv_mov_b32 v61, v57\nv_mov_b32 v56, s{sNONCE}\nv_mov_b32 v57, s{sNONCE}\nv_mov_b32 v62, s{sNONCE}\nv_mov_b32 v63, s{sNONCE}")
    p(f"s_lshl_b32 s{sT0}, s{sZ}, 4\ns_add_u32 s{sT0}, s{sT0}, {WS_STG}\nv_mov_b32 v2, 0")
    p(f"s_mov_b32 exec_lo, 0\ns_mov_b32 exec_hi, 0x80000000")
    p(f"buffer_store_dwordx4 v[54:57], v2, s[{S_WS}:{S_WS+3}], s{sT0} offen sc1\nbuffer_store_dwordx4 v[60:63], v2, s[{S_WS}:{S_WS+3}], s{sT0} offen offset:16 sc1")
    p(f"s_mov_b64 exec, -1")

def A_setup(p, role):
    A = AR
    p(f"s_and_b32 s{sT0}, s{sW4}, 1\ns_lshr_b32 s{sT1}, s{sW4}, 1")
    p(f"v_and_b32 v2, 31, v1\nv_lshrrev_b32 v3, 5, v1")
    p(f"v_lshrrev_b32 v4, 1, v2\nv_and_b32 v4, 7, v4\nv_xor_b32 v4, v4, v3\nv_lshlrev_b32 v4, 4, v4")
    p(f"v_lshlrev_b32 v5, 7, v2\nv_add_u32 v4, v4, v5\ns_lshl_b32 s{sT2}, s{sT0}, 13\nv_add_u32 v4, s{sT2}, v4")
    for pp in range(4):
        p(f"v_xor_b32 v{A.AX+pp}, {pp*32}, v4\nv_add_u32 v{A.AX2+pp}, 65536, v{A.AX+pp}")
    p(f"v_lshrrev_b32 v2, 5, v1\nv_lshlrev_b32 v2, 3, v2\nv_and_b32 v3, 15, v1\nv_lshrrev_b32 v4, 2, v3\nv_add_u32 v2, v2, v4\nv_lshlrev_b32 v2, 7, v2")
    p(f"v_lshrrev_b32 v4, 3, v3\nv_lshlrev_b32 v4, 6, v4\nv_add_u32 v2, v2, v4")
    p(f"v_lshrrev_b32 v4, 4, v1\nv_and_b32 v4, 1, v4\nv_lshlrev_b32 v4, 5, v4\nv_add_u32 v2, v2, v4\nv_and_b32 v4, 3, v3\nv_lshlrev_b32 v4, 3, v4\nv_add_u32 v2, v2, v4")
    if role == 0:
        p(f"s_lshl_b32 s{sT2}, s{sT0}, 6\nv_xor_b32 v2, s{sT2}, v2\ns_lshl_b32 s{sT2}, s{sT1}, 13\ns_add_u32 s{sT2}, s{sT2}, 16384")
        p(f"v_add_u32 v{A.AW}, s{sT2}, v2\nv_xor_b32 v{A.AW+1}, 64, v{A.AW}")
    else:
        p(f"s_lshl_b32 s{sT2}, s{sT1}, 6\nv_xor_b32 v2, s{sT2}, v2")
        p(f"v_add_u32 v{A.AW}, 16384, v2\nv_add_u32 v{A.AW+1}, {16384+8192}, v2")
    p(f"v_add_u32 v{A.AW2}, 65536, v{A.AW}\nv_add_u32 v{A.AW2+1}, 65536, v{A.AW+1}")
    make_sel(p, A.SEL, 2, 3)
    p(f"s_cmp_ge_u32 s{sI}, 8\ns_cselect_b32 s{sT2}, -1, 0")
    for k in range(4):
        p(f"v_and_b32 v{A.SEL2+k}, s{sT2}, v{A.SEL+k}")
    p(f"s_not_b32 s{sT2}, s{sT2}")
    for k in range(4):
        p(f"v_and_b32 v{A.SEL+k}, s{sT2}, v{A.SEL+k}")
    p(f"v_mov_b32 v2, {L_CNT}\nv_mov_b32 v3, 0\nds_write_b32 v2, v3")
    p(f"v_mov_b32 v2, {L_LF}\nv_mov_b32 v4, 0\nv_mov_b32 v5, 0\nv_mov_b32 v6, 0\nv_mov_b32 v7, 0\nds_write_b128 v2, v[4:7]\nds_write_b128 v2, v[4:7] offset:16")

def poll_check(p, reg, expect, addr_reg, srd_):
    L = newlbl("L_pc")
    p(f"v_cmp_ne_u32 vcc, {expect}, v{reg}\ns_cbranch_vccz {L}x")
    p(f"s_mov_b32 s3, 0\n{L}:\ns_add_u32 s3, s3, 1\ns_cmp_gt_u32 s3, {SPIN}\ns_cbranch_scc1 {L}x")
    p(f"buffer_load_dword v{reg}, v{addr_reg}, s[{srd_}:{srd_+3}], 0 offen sc1\ns_waitcnt vmcnt(0)\nv_cmp_ne_u32 vcc, {expect}, v{reg}\ns_cbranch_vccnz {L}\n{L}x:")

def w2_touch(p, dst):
    p(f"s_lshl_b32 s{sT2}, s{sC}, 7\ns_lshr_b32 s{sT1}, s2, 3\ns_and_b32 s{sT1}, s{sT1}, 7")
    p(f"s_mul_i32 s{sT3}, s{sT1}, 224\ns_mul_i32 s{sT4}, s{sW4}, 56\ns_add_u32 s{sT3}, s{sT3}, s{sT4}\ns_lshl_b32 s{sT3}, s{sT3}, 10\ns_add_u32 s{sT3}, s{sT3}, s{sT2}")
    p(f"v_min_u32 v2, 55, v1\nv_lshlrev_b32 v2, 10, v2\nbuffer_load_dword v{dst}, v2, s[{S_W2}:{S_W2+3}], s{sT3} offen")
    p(f"s_lshl_b32 s{sT3}, s{sT1}, 6\ns_lshl_b32 s{sT4}, s{sW4}, 4\ns_add_u32 s{sT3}, s{sT3}, s{sT4}\ns_lshl_b32 s{sT3}, s{sT3}, 10\ns_add_u32 s{sT3}, s{sT3}, s{sT2}")
    p(f"v_and_b32 v2, 15, v1\nv_lshlrev_b32 v2, 10, v2\ns_mov_b64 exec, 0xffff\nbuffer_load_dword v{dst}, v2, s[{S_WO}:{S_WO+3}], s{sT3} offen\ns_mov_b64 exec, -1")

def w2_touch_piece(p, dst, piece, npieces):
    nw = 56 // npieces; no = 16 // npieces
    p(f"s_lshl_b32 s{sT2}, s{sC}, 7\ns_lshr_b32 s{sT1}, s2, 3\ns_and_b32 s{sT1}, s{sT1}, 7")
    p(f"s_mul_i32 s{sT3}, s{sT1}, 224\ns_mul_i32 s{sT4}, s{sW4}, 56\ns_add_u32 s{sT3}, s{sT3}, s{sT4}\ns_add_u32 s{sT3}, s{sT3}, {piece*nw}\ns_lshl_b32 s{sT3}, s{sT3}, 10\ns_add_u32 s{sT3}, s{sT3}, s{sT2}")
    p(f"v_lshlrev_b32 v2, 10, v1\ns_mov_b64 exec, {hex((1 << nw) - 1)}\nbuffer_load_dword v{dst}, v2, s[{S_W2}:{S_W2+3}], s{sT3} offen")
    p(f"s_lshl_b32 s{sT3}, s{sT1}, 6\ns_lshl_b32 s{sT4}, s{sW4}, 4\ns_add_u32 s{sT3}, s{sT3}, s{sT4}\ns_add_u32 s{sT3}, s{sT3}, {piece*no}\ns_lshl_b32 s{sT3}, s{sT3}, 10\ns_add_u32 s{sT3}, s{sT3}, s{sT2}")
    p(f"s_mov_b64 exec, {hex((1 << no) - 1)}\nbuffer_load_dword v{dst}, v2, s[{S_WO}:{S_WO+3}], s{sT3} offen\ns_mov_b64 exec, -1")

def smem_warm(p):
    n = int(OPT.get("smw", 1))
    p(f"s_mul_i32 s{sT0}, s2, 56\ns_mul_i32 s{sT1}, s{sW4}, 14\ns_add_u32 s{sT0}, s{sT0}, s{sT1}\ns_lshl_b32 s{sT0}, s{sT0}, 7")
    p(f"s_add_u32 s94, s{KW2}, s{sT0}\ns_addc_u32 s95, s{KW2+1}, 0")
    for i in range(14):
        for h in range(n): p(f"s_load_dword s76, s[94:95], {i*128 + h*64}")
    p(f"s_lshl_b32 s{sT0}, s2, 4\ns_lshl_b32 s{sT1}, s{sW4}, 2\ns_add_u32 s{sT0}, s{sT0}, s{sT1}\ns_lshl_b32 s{sT0}, s{sT0}, 7")
    p(f"s_add_u32 s98, s{KWO}, s{sT0}\ns_addc_u32 s99, s{KWO+1}, 0")
    for i in range(4):
        for h in range(n): p(f"s_load_dword s76, s[98:99], {i*128 + h*64}")

def mall_warm(p, dst):
    L = newlbl("L_mw")
    p(f"s_cmp_ge_u32 s{sW4}, 2\ns_cbranch_scc1 {L}a")
    p(f"s_mul_i32 s{sT0}, s2, 56\ns_mul_i32 s{sT1}, s{sW4}, 28\ns_add_u32 s{sT0}, s{sT0}, s{sT1}\ns_lshl_b32 s{sT0}, s{sT0}, 7\nv_min_u32 v2, 27, v1\nv_lshlrev_b32 v2, 7, v2")
    p(f"s_mov_b32 exec_hi, 0\nbuffer_load_dword v{dst}, v2, s[{S_W2}:{S_W2+3}], s{sT0} offen\ns_mov_b32 exec_hi, -1\ns_branch {L}")
    p(f"{L}a:\ns_cmp_lg_u32 s{sW4}, 2\ns_cbranch_scc1 {L}")
    p(f"s_lshl_b32 s{sT0}, s2, 11\nv_lshlrev_b32 v2, 7, v1\ns_mov_b64 exec, 0xffff\nbuffer_load_dword v{dst}, v2, s[{S_WO}:{S_WO+3}], s{sT0} offen\ns_mov_b64 exec, -1")
    p(f"{L}:")

def wb_touch(p, dst):
    p(f"s_and_b32 s{sT0}, s{sI}, 7\ns_lshl_b32 s{sT0}, s{sT0}, 6\ns_lshl_b32 s{sT1}, s{sW4}, 4\ns_add_u32 s{sT0}, s{sT0}, s{sT1}\ns_mul_i32 s{sT0}, s{sT0}, s{sRS}")
    p(f"s_lshl_b32 s{sT1}, s{sCOLB}, 1\ns_and_b32 s{sT1}, s{sT1}, 0xffffff80\ns_add_u32 s{sT0}, s{sT0}, s{sT1}")
    p(f"v_lshrrev_b32 v2, 1, v1\nv_and_b32 v2, 15, v2\nv_mul_lo_u32 v2, v2, s{sRS}\nv_and_b32 v3, 1, v1\nv_lshlrev_b32 v3, 7, v3\nv_add_u32 v2, v2, v3")
    p(f"s_mov_b32 exec_hi, 0\nbuffer_load_dword v{dst}, v2, s[{S_W}:{S_W+3}], s{sT0} offen\ns_mov_b32 exec_hi, -1")

def A_phaseA(p, role):
    A = AR
    nsm = 1 if role == 0 else 2
    def reads(k):
        s_, pp = k // 4, k % 4
        slot = s_ % 4; b = k % 3
        ax = (A.AX2 if slot >= 2 else A.AX) + pp
        aw = (A.AW2 if slot >= 2 else A.AW)
        so = (slot & 1) * SLOT
        r = []
        for be in range(2):
            for u in range(2):
                r.append(f"ds_read_b64_tr_b16 v[{A.WF+8*b+4*be+2*u}:{A.WF+8*b+4*be+2*u+1}], v{aw+be} offset:{so + pp*2048 + u*512}")
        for tt in range(2):
            r.append(f"ds_read_b128 v[{A.XF+8*b+4*tt}:{A.XF+8*b+4*tt+3}], v{ax} offset:{so + tt*4096}")
        if OPT.get("noAreads"): r = ["s_nop 0"] * 6
        return r
    def mfmas(k):
        b = k % 3; m = []
        if OPT.get("noAmfma"): return ["s_nop 0"] * 4
        for tt in range(2):
            for be in range(2):
                acc = A.ACC + 32*tt + 16*be
                c = "0" if k == 0 else f"v[{acc}:{acc+15}]"
                w = f"v[{A.WF+8*b+4*be}:{A.WF+8*b+4*be+3}]"; x = f"v[{A.XF+8*b+4*tt}:{A.XF+8*b+4*tt+3}]"
                m.append(f"v_mfma_f32_32x32x16_bf16 v[{acc}:{acc+15}], {w}, {x}, {c}" if role == 0 else f"v_mfma_f32_32x32x16_bf16 v[{acc}:{acc+15}], {x}, {w}, {c}")
        if k < 4:
            sel = A.SEL if k < 2 else A.SEL2
            for be in range(nsm):
                c = "0" if k == 0 else f"v[{A.CS+4*be}:{A.CS+4*be+3}]"
                m.append(f"v_mfma_f32_16x16x32_bf16 v[{A.CS+4*be}:{A.CS+4*be+3}], v[{A.WF+8*b+4*be}:{A.WF+8*b+4*be+3}], v[{sel}:{sel+3}], {c}")
        return m
    p("s_waitcnt lgkmcnt(0)")
    stamp(p, "A:pre0")
    p("s_barrier")
    stamp(p, "A:post0")
    for r in reads(0) + reads(1): p(r)
    for k in range(32):
        m = mfmas(k)
        bar = (k + 2) % 4 == 0 and k + 2 < 32
        p(f"s_waitcnt lgkmcnt({0 if (bar or k >= 30) else 6})")
        if k in (4, 8, 16, 24): stamp(p, f"A:k{k}")
        p(m[0])
        if k == int(OPT.get("mwk", -1)): mall_warm(p, A.PF)
        if k == int(OPT.get("wbk", 4)) and not OPT.get("ntWB"): wb_touch(p, A.PF)
        if OPT.get("w2ks"):
            ks = [int(x) for x in OPT["w2ks"].split(",")]
            if k in ks: w2_touch_piece(p, A.PF, ks.index(k), len(ks))
        elif k == int(OPT.get("w2k", 16)) and not OPT.get("ntW2"): w2_touch(p, A.PF)
        if k == 5:
            p(f"v_and_b32 v2, 15, v1\nv_lshrrev_b32 v3, 4, v1\nv_cmp_gt_u32 vcc, 2, v2")
            p(f"v_lshlrev_b32 v2, 6, v2\nv_lshlrev_b32 v3, 4, v3\nv_add_u32 v2, v2, v3")
            if role == 0: p(f"s_lshl_b32 s{sT0}, s{sW4}, 7")
            else:         p(f"s_lshr_b32 s{sT0}, s{sW4}, 1\ns_lshl_b32 s{sT0}, s{sT0}, 7")
            p(f"s_add_u32 s{sT0}, s{sT0}, {L_CSPL}\nv_add_u32 v2, s{sT0}, v2")
            p(f"s_and_saveexec_b64 s[{sTMP}:{sTMP+1}], vcc")
            for be in range(nsm):
                p(f"ds_write_b128 v2, v[{A.CS+4*be}:{A.CS+4*be+3}] offset:{be*256}")
            p(f"s_mov_b64 exec, s[{sTMP}:{sTMP+1}]")
        if k + 2 < 32:
            if bar: p("s_barrier")
            rr = reads(k + 2)
            rest = m[1:]
            ri = 0
            for mm in rest:
                for _ in range(2):
                    if ri < len(rr): p(rr[ri]); ri += 1
                p(mm)
            while ri < len(rr): p(rr[ri]); ri += 1
        else:
            for mm in m[1:]: p(mm)

def A_epi_F(p, fill):
    p("L_Aepi0:")
    A = AR; E = A.E
    E = 80
    RS, NMR, CSV, T, OUT, VA = E, E+2, E+4, E+36, E+52, E+60
    stamp(p, "A:pre8")
    p("s_barrier")
    stamp(p, "A:post8")
    p(f"s_and_b32 s{sT0}, s{sW4}, 1\ns_lshr_b32 s{sT1}, s{sW4}, 1")
    p(f"v_and_b32 v2, 31, v1\nv_lshlrev_b32 v2, 2, v2\ns_lshl_b32 s{sT2}, s{sT0}, 8\ns_add_u32 s{sT2}, s{sT2}, {L_RS}\nv_add_u32 v2, s{sT2}, v2")
    for tt in range(2):
        p(f"ds_read_b32 v{RS+tt}, v2 offset:{tt*128}\nds_read_b32 v{NMR+tt}, v2 offset:{512+tt*128}")
    p(f"v_lshrrev_b32 v3, 5, v1\nv_lshlrev_b32 v3, 4, v3\ns_lshl_b32 s{sT2}, s{sT1}, 8\ns_add_u32 s{sT2}, s{sT2}, {L_CSA}\nv_add_u32 v3, s{sT2}, v3")
    p(f"s_lshl_b32 s{sT2}, s{sT0}, 7\nv_xor_b32 v{VA}, s{sT2}, v3\nv_xor_b32 v{VA+1}, 128, v{VA}")
    for be in range(2):
        for q in range(4):
            p(f"ds_read_b128 v[{CSV+16*be+4*q}:{CSV+16*be+4*q+3}], v{VA+be} offset:{q*32}")
    p(f"v_lshlrev_b32 v{VA+2}, 4, v1")
    p(f"s_lshl_b32 s{sT2}, s{sI}, 2\ns_lshl_b32 s{sT3}, s{sT0}, 1\ns_add_u32 s{sT2}, s{sT2}, s{sT3}\ns_mul_i32 s{sT2}, s{sT2}, 112")
    p(f"s_lshr_b32 s{sT3}, s{sCOLA}, 4\ns_lshl_b32 s{sT4}, s{sT1}, 2\ns_add_u32 s{sT3}, s{sT3}, s{sT4}\ns_add_u32 s{sT2}, s{sT2}, s{sT3}")
    p(f"s_lshl_b32 s{sHB}, s{sT2}, 10\ns_add_u32 s{sHB}, s{sHB}, {WS_H}")
    p(f"s_lshl_b32 s{sT5}, s{sT0}, 11\ns_add_u32 s{sTMP}, s{sHB}, s{sT5}\ns_xor_b32 s{sT5}, s{sT5}, 2048\ns_add_u32 s{sTMP+1}, s{sHB}, s{sT5}")
    p("s_waitcnt lgkmcnt(0)")
    stamp(p, "A:epi_start")
    def fa_addr(base):
        return (f"s_lshl_b32 s{sT2}, s{sI}, 1\ns_and_b32 s{sT3}, s{sW4}, 1\ns_add_u32 s{sT2}, s{sT2}, s{sT3}\ns_lshl_b32 s{sT2}, s{sT2}, 7\n"
                f"s_lshl_b32 s{sT3}, s{sJ}, 1\ns_lshr_b32 s{sT4}, s{sW4}, 1\ns_add_u32 s{sT3}, s{sT3}, s{sT4}\ns_lshl_b32 s{sT3}, s{sT3}, 2\n"
                f"s_add_u32 s{sT0}, s{sT2}, s{sT3}\ns_add_u32 s{sT0}, s{sT0}, {base}")
    ch = 0
    nops_after4 = 0
    for be in range(2):
        for qp in range(2):
            for tt in range(2):
                acc = A.ACC + 32*tt + 16*be + 8*qp
                o = OUT + 4*(ch & 1)
                silu_chunk(p, acc, CSV + 16*be + 8*qp, RS+tt, NMR+tt, T, o)
                if ch in (1, 3, 5, 7): stamp(p, f"A:ch{ch}")
                if ch == 6:
                    p(f"s_waitcnt vmcnt({nops_after4})")
                    store_flag(p, fa_addr(WS_FA))
                    stamp(p, "A:FA1set")
                p(f"s_add_u32 s{sT2}, s{sTMP+be}, {tt*112*1024 + qp*1024}")
                p(f"buffer_store_dwordx4 v[{o}:{o+3}], v{VA+2}, s[{S_WS}:{S_WS+3}], s{sT2} offen sc1")
                if ch >= 4: nops_after4 += 1
                fi = ch - (8 - len(fill) - 1)
                if 0 <= fi < len(fill) and ch < 7:
                    p(fill[fi])
                    if ch >= 3: nops_after4 += 2
                ch += 1
                pass
    p(fa_addr(WS_FA2))
    p(f"s_mov_b32 s{sHB}, s{sT0}")

def A_epi_Q(p, fill):
    p("L_Aepi1:")
    A = AR; E = A.E
    ST = E; CSK, CSVv = E+32, E+33; T = E+34; PK = E+42; VV = E+58; Z = E+74; D2 = E+76; VA = E+92
    stamp(p, "A:pre8")
    p("s_barrier")
    stamp(p, "A:post8")
    p(f"s_and_b32 s{sT0}, s{sW4}, 1\ns_lshr_b32 s{sT1}, s{sW4}, 1")
    p(f"v_and_b32 v2, 31, v1\nv_lshlrev_b32 v2, 2, v2\ns_lshl_b32 s{sT2}, s{sT1}, 7\ns_add_u32 s{sT2}, s{sT2}, {L_CSA}\nv_add_u32 v2, s{sT2}, v2")
    p(f"ds_read_b32 v{CSK}, v2\nds_read_b32 v{CSVv}, v2 offset:256")
    p(f"v_lshrrev_b32 v3, 5, v1\nv_lshlrev_b32 v3, 4, v3\ns_lshl_b32 s{sT2}, s{sT0}, 8\ns_add_u32 s{sT2}, s{sT2}, {L_RS}\nv_add_u32 v{VA}, s{sT2}, v3")
    p(f"v_mov_b32 v{Z}, 0")
    def streads(g):
        tt, hf = g >> 1, g & 1
        b = ST + 16*(g & 1)
        for q2 in range(2):
            off = (32*tt + 8*(2*hf+q2)) * 4
            p(f"ds_read_b128 v[{b+4*q2}:{b+4*q2+3}], v{VA} offset:{off}\nds_read_b128 v[{b+8+4*q2}:{b+8+4*q2+3}], v{VA} offset:{off+512}")
    streads(0)
    nf = 0
    for g in range(4):
        tt, hf = g >> 1, g & 1
        if g < 3: streads(g + 1); p("s_waitcnt lgkmcnt(4)")
        else: p("s_waitcnt lgkmcnt(0)")
        RSV = ST + 16*(g & 1); NMV = RSV + 8
        k = A.ACC + 32*tt + 8*hf; v = A.ACC + 32*tt + 16 + 8*hf
        for e in range(8): p(f"v_mul_f32 v{T+e}, v{NMV+e}, v{CSVv}")
        for e in range(8): p(f"v_fma_f32 v{v+e}, v{v+e}, v{RSV+e}, v{T+e}")
        for e in range(4): p(f"v_cvt_pk_bf16_f32 v{VV+8*tt+4*hf+e}, v{v+2*e}, v{v+2*e+1}")
        if nf < len(fill): p(fill[nf]); nf += 1
        for e in range(8): p(f"v_mul_f32 v{T+e}, v{NMV+e}, v{CSK}")
        for e in range(8): p(f"v_fma_f32 v{k+e}, v{k+e}, v{RSV+e}, v{T+e}")
        phi_elems(p, k, 8, T)
        for e in range(8): p(f"v_add_f32 v{Z}, v{Z}, v{k+e}")
        for e in range(4): p(f"v_cvt_pk_bf16_f32 v{PK+8*tt+4*hf+e}, v{k+2*e}, v{k+2*e+1}")
        c = "0" if g == 0 else f"v[{D2}:{D2+15}]"
        p(f"v_mfma_f32_32x32x16_bf16 v[{D2}:{D2+15}], v[{PK+8*tt+4*hf}:{PK+8*tt+4*hf+3}], v[{VV+8*tt+4*hf}:{VV+8*tt+4*hf+3}], {c}")
        if nf < len(fill): p(fill[nf]); nf += 1
        pass
    p(f"v_mov_b32 v{T}, v{Z}")
    p(f"v_permlane32_swap_b32 v{T}, v{Z}")
    p(f"v_add_f32 v{Z}, v{Z}, v{T}")
    p(f"s_mov_b32 s{sMASKH}, 0xffff0000\ns_mov_b32 s{sMASKH+1}, 0xffff0000")
    for r in range(8): p(f"v_cndmask_b32 v{T+r}, v{D2+r}, v{D2+8+r}, s[{sMASKH}:{sMASKH+1}]")
    p(f"s_lshl_b32 s{sT2}, s{sJ}, 1\ns_lshr_b32 s{sT1}, s{sW4}, 1\ns_add_u32 s{sZ}, s{sT2}, s{sT1}\ns_lshl_b32 s{sT2}, s{sZ}, 12\ns_add_u32 s{sHB}, s{sT2}, {WS_KVZ}")
    p(f"v_lshlrev_b32 v{VA+1}, 2, v1")
    for r in range(8):
        p(f"buffer_atomic_add_f32 v{T+r}, v{VA+1}, s[{S_WS}:{S_WS+3}], s{sHB} offen offset:{r*256}")
    p(f"v_lshrrev_b32 v2, 3, v1\nv_and_b32 v2, 1, v2\nv_lshlrev_b32 v2, 2, v2\nv_and_b32 v3, 3, v1\nv_add_u32 v2, v2, v3\nv_lshlrev_b32 v2, 8, v2")
    p(f"v_lshrrev_b32 v3, 4, v1\nv_and_b32 v3, 1, v3\nv_lshlrev_b32 v3, 1, v3\nv_lshrrev_b32 v4, 2, v1\nv_and_b32 v4, 1, v4\nv_add_u32 v3, v3, v4\nv_lshlrev_b32 v3, 2, v3")
    p(f"v_add_u32 v2, v2, v3")
    p(f"s_mov_b32 exec_hi, 0")
    p(f"buffer_atomic_add_f32 v{Z}, v2, s[{S_WS}:{S_WS+3}], s{sHB} offen offset:2048")
    p(f"s_mov_b32 exec_hi, -1")
    while nf < len(fill): p(fill[nf]); nf += 1
    p(f"s_lshl_b32 s{sT0}, s{sZ}, 7\ns_add_u32 s{sT0}, s{sT0}, {WS_C2}\nv_mov_b32 v2, 0\nv_mov_b32 v3, 1")
    p("s_waitcnt vmcnt(0)")
    p(f"s_mov_b64 exec, 1\nbuffer_atomic_add v3, v2, s[{S_WS}:{S_WS+3}], s{sT0} offen sc1\ns_mov_b64 exec, -1")

class P2:
    ACCF = 16; ACCS = 80; AF = 144; BF = 200
    T = 216; XR = 240; VL16 = 250; VW2 = 251; VBR = 252; VX = 254; VW2B = 249; VBR2 = 236; VTMPB = 248
DA = DB = 6; NA = 7; NST = 36
L_REDF = 0; L_REDS = 49152

def p2_setup(p):
    P = P2
    p(f"s_and_b32 s{sT0}, s2, 7\ns_lshr_b32 s{sT1}, s2, 3")
    if OPT.get("map2", "512x256") == "512x256":
        p(f"s_lshr_b32 s{sT2}, s{sT0}, 1\ns_lshl_b32 s{sT2}, s{sT2}, 3\ns_and_b32 s{sT3}, s{sT1}, 7\ns_add_u32 s{sT2i}, s{sT2}, s{sT3}")
        p(f"s_and_b32 s{sT2}, s{sT0}, 1\ns_lshl_b32 s{sT2}, s{sT2}, 2\ns_lshr_b32 s{sT3}, s{sT1}, 3\ns_add_u32 s{sC}, s{sT2}, s{sT3}")
    else:
        p(f"s_lshl_b32 s{sT2}, s{sT0}, 2\ns_and_b32 s{sT3}, s{sT1}, 3\ns_add_u32 s{sT2i}, s{sT2}, s{sT3}\ns_lshr_b32 s{sC}, s{sT1}, 2")
    p(f"s_lshr_b32 s{sT0}, s{sW4}, 1\ns_lshl_b32 s{sT1}, s{sT2i}, 1")
    p(f"s_add_u32 s{sT2}, s{sT1}, s{sT0}\ns_xor_b32 s{sT3}, s{sT2}, 1")
    p(f"s_mul_i32 s{sT4}, s{sW4}, 28")
    for (d, src) in ((sAH, sT2), (sAH1, sT3)):
        p(f"s_mul_i32 s{sT5}, s{src}, 112\ns_add_u32 s{sT5}, s{sT5}, s{sT4}\ns_lshl_b32 s{sT5}, s{sT5}, 10\ns_add_u32 s{d}, s{sT5}, {WS_H}")
    p(f"s_lshl_b32 s{sT4}, s{sW4}, 3")
    for (d, src) in ((sAO, sT2), (sAO1, sT3)):
        p(f"s_lshl_b32 s{sT5}, s{src}, 5\ns_add_u32 s{sT5}, s{sT5}, s{sT4}\ns_lshl_b32 s{sT5}, s{sT5}, 10\ns_add_u32 s{d}, s{sT5}, {WS_O}")
    p(f"s_lshl_b32 s{sT0}, s{sC}, 7\ns_mul_i32 s{sT1}, s{sW4}, {28*16*1024}\ns_add_u32 s{sBW}, s{sT0}, s{sT1}")
    p(f"s_lshl_b32 s{sT1}, s{sW4}, 17\ns_add_u32 s{sBO}, s{sT0}, s{sT1}")
    p(f"s_mul_i32 s{sLB}, s{sW4}, {NS*2048}\ns_add_u32 s{sLB}, s{sLB}, {L_P2}")
    p(f"v_lshlrev_b32 v{P.VL16}, 4, v1")
    p(f"v_lshrrev_b32 v2, 3, v1\nv_lshlrev_b32 v2, 10, v2\nv_and_b32 v3, 7, v1\nv_lshrrev_b32 v4, 4, v1\nv_and_b32 v4, 1, v4\nv_lshlrev_b32 v4, 2, v4\nv_xor_b32 v3, v3, v4\nv_lshlrev_b32 v3, 4, v3\nv_add_u32 v{P.VW2}, v2, v3\nv_add_u32 v{P.VW2B}, 7168, v{P.VW2}")
    p(f"v_lshrrev_b32 v2, 5, v1\nv_lshlrev_b32 v2, 2, v2\nv_and_b32 v3, 15, v1\nv_lshrrev_b32 v4, 2, v3\nv_add_u32 v2, v2, v4\nv_lshlrev_b32 v2, 7, v2")
    p(f"v_lshrrev_b32 v4, 3, v3\nv_lshlrev_b32 v4, 6, v4\nv_add_u32 v2, v2, v4")
    p(f"v_lshrrev_b32 v4, 4, v1\nv_and_b32 v4, 1, v4\nv_lshlrev_b32 v4, 5, v4\nv_add_u32 v2, v2, v4\nv_and_b32 v4, 3, v3\nv_lshlrev_b32 v4, 3, v4\nv_add_u32 v2, v2, v4")
    p(f"s_and_b32 s{sT0}, s{sW4}, 1\ns_lshl_b32 s{sT0}, s{sT0}, 6\nv_xor_b32 v2, s{sT0}, v2\nv_add_u32 v{P.VBR}, s{sLB}, v2\nv_xor_b32 v{P.VBR+1}, 64, v{P.VBR}")
    p(f"s_mul_i32 s{sLB2}, s{sW4}, {NDEEP*2048}")
    p(f"v_mov_b32 v{P.VTMPB}, v2")
    p(f"s_and_b32 s{sBB2}, s{sT2i}, 1\ns_lshl_b32 s{sBB2}, s{sBB2}, 1")
    p(f"s_lshl_b32 s{sT0}, s{sBB2}, 10\ns_xor_b32 s{sT1}, s{sT0}, 2048")
    for tau in range(2):
        p(f"s_add_u32 s{sAHa+tau}, s{sAH+tau}, s{sT0}\ns_add_u32 s{sAHb+tau}, s{sAH+tau}, s{sT1}")
    p(f"s_lshl_b32 s{sT0}, s{sBB2}, 14\ns_xor_b32 s{sT1}, s{sT0}, 32768\ns_add_u32 s{sBWa}, s{sBW}, s{sT0}\ns_add_u32 s{sBWb}, s{sBW}, s{sT1}")
    p(f"v_and_b32 v2, 31, v1\nv_lshlrev_b32 v2, 10, v2\nv_lshrrev_b32 v3, 5, v1\nv_lshlrev_b32 v3, 4, v3\nv_add_u32 v{P.VX}, v2, v3")

def xres_soff():
    return (f"s_lshl_b32 s{sT0}, s{sT2i}, 6\ns_lshr_b32 s{sT1}, s{sW4}, 1\ns_lshl_b32 s{sT1}, s{sT1}, 5\ns_add_u32 s{sT0}, s{sT0}, s{sT1}\ns_lshl_b32 s{sT0}, s{sT0}, 10\n"
            f"s_lshl_b32 s{sT1}, s{sC}, 7\ns_add_u32 s{sT0}, s{sT0}, s{sT1}\ns_and_b32 s{sT1}, s{sW4}, 1\ns_lshl_b32 s{sT1}, s{sT1}, 6\ns_add_u32 s{sT0}, s{sT0}, s{sT1}")
def xres_load():
    P = P2
    return xres_soff() + "\n" + "\n".join(f"buffer_load_dwordx4 v[{P.XR+4*qp}:{P.XR+4*qp+3}], v{P.VX}, s[{S_X}:{S_X+3}], s{sT0} offen offset:{qp*32}" for qp in range(2))

def step_p(n):
    if n < 16:
        q = n & 7
        return (q >> 2) * 20 + ((q >> 1) & 1) * 4 + (q & 1), (0 if n < 8 else 1)
    if n < 28: return 8 + (n - 16), None
    return n - 28, None

sAHa, sAHb, sBWa, sBWb = 74, 98, 73, 97
sLB2 = 96
NDEEP = 0
def b_slot(n):
    if NDEEP == 0: return sLB, (n % NS) * 2048
    if n < NS: return sLB, n * 2048
    if n < NS + NDEEP: return sLB2, (n - NS) * 2048
    return sLB, ((n - NS - NDEEP) % NS) * 2048
def fB(n, split=False):
    P = P2
    sb, so = b_slot(n)
    p_, par = step_p(n)
    if n < 28:
        base = sBW if par is None else (sBWa if par == 0 else sBWb); srd_ = S_W2
    else:
        base = sBO; srd_ = S_WO
    o = p_ * 16384
    a = f"s_add_u32 m0, s{sb}, {so}\ns_add_u32 s{sT0}, s{base}, {o}\nbuffer_load_dwordx4 v{P.VW2}, s[{srd_}:{srd_+3}], s{sT0} offen lds"
    b = f"buffer_load_dwordx4 v{P.VW2B}, s[{srd_}:{srd_+3}], s{sT0} offen offset:1024 lds"
    return (a, b) if split else a + "\n" + b

def fA(n, split=False):
    P = P2
    buf = P.AF + 8 * (n % NA)
    p_, par = step_p(n)
    out = []
    for tau in range(2):
        if n < 28:
            base = (sAH + tau) if par is None else ((sAHa if par == 0 else sAHb) + tau)
        else:
            base = sAO + tau
        if p_ * 1024 < 4096:
            out.append(f"buffer_load_dwordx4 v[{buf+4*tau}:{buf+4*tau+3}], v{P.VL16}, s[{S_WS}:{S_WS+3}], s{base} offen offset:{p_*1024} sc1")
        else:
            out.append(f"s_add_u32 s{sT1+tau}, s{base}, {p_*1024}\nbuffer_load_dwordx4 v[{buf+4*tau}:{buf+4*tau+3}], v{P.VL16}, s[{S_WS}:{S_WS+3}], s{sT1+tau} offen sc1")
    return out if split else "\n".join(out)

def p2_reads(n):
    P = P2
    sb, so = b_slot(n); buf = P.BF + 8 * (n & 1)
    vb = P.VBR if sb == sLB else P.VBR2
    return [f"ds_read_b64_tr_b16 v[{buf+4*be+2*u}:{buf+4*be+2*u+1}], v{vb+be} offset:{so + u*1024}" for be in range(2) for u in range(2)]

def f_mfmas(n):
    P = P2
    acc0 = P.ACCF if n < 28 else P.ACCS
    first = n in (0, 28)
    a = P.AF + 8 * (n % NA); b = P.BF + 8 * (n & 1)
    m = []
    for tau in range(2):
        for be in range(2):
            acc = acc0 + 16 * (2*tau + be)
            c = "0" if first else f"v[{acc}:{acc+15}]"
            m.append(f"v_mfma_f32_32x32x16_bf16 v[{acc}:{acc+15}], v[{b+4*be}:{b+4*be+3}], v[{a+4*tau}:{a+4*tau+3}], {c}")
    return m

def fa1_issue(p):
    p(f"s_lshl_b32 s{sT3}, s{sT2i}, 7\ns_lshl_b32 s{sT4}, s{sW4}, 4\ns_add_u32 s{sT3}, s{sT3}, s{sT4}\ns_add_u32 s{sT3}, s{sT3}, {WS_FA}")
    p(f"s_add_u32 s94, s{sWSP}, s{sT3}\ns_addc_u32 s95, s{sWSP+1}, 0")
    p(f"s_load_dwordx4 s[96:99], s[94:95], 0 glc")

def fa1_check(p):
    L = newlbl("L_f1")
    p(f"s_mov_b32 s3, 0\n{L}:\ns_waitcnt lgkmcnt(0)")
    for q in range(4): p(f"s_xor_b32 s{96+q}, s{96+q}, s{sNONCE}")
    p(f"s_or_b32 s96, s96, s97\ns_or_b32 s98, s98, s99\ns_or_b32 s96, s96, s98\ns_cmp_eq_u32 s96, 0\ns_cbranch_scc1 {L}x")
    p(f"s_add_u32 s3, s3, 1\ns_cmp_gt_u32 s3, {SPIN}\ns_cbranch_scc1 {L}x")
    p(f"s_load_dwordx4 s[96:99], s[94:95], 0 glc\ns_branch {L}\n{L}x:")

def relay_poll(p, base, kind, wave):
    L = newlbl("L_rp")
    p(f"s_cmp_lg_u32 s{sW4}, {wave}\ns_cbranch_scc1 {L}e")
    p(f"s_lshl_b32 s{sT3}, s{sT2i}, 7\ns_add_u32 s{sT3}, s{sT3}, {base}\ns_add_u32 s94, s{sWSP}, s{sT3}\ns_addc_u32 s95, s{sWSP+1}, 0")
    p(f"s_mov_b32 s3, 0\n{L}:\ns_load_dwordx16 s[76:91], s[94:95], 0 glc\ns_waitcnt lgkmcnt(0)")
    for q in range(16): p(f"s_xor_b32 s{76+q}, s{76+q}, s{sNONCE}")
    for st in (8, 4, 2, 1):
        for q in range(st): p(f"s_or_b32 s{76+q}, s{76+q}, s{76+q+st}")
    p(f"s_cmp_eq_u32 s76, 0\ns_cbranch_scc1 {L}x\ns_sleep 2\ns_add_u32 s3, s3, 1\ns_cmp_gt_u32 s3, {SPIN}\ns_cbranch_scc0 {L}\n{L}x:")
    p(f"v_mov_b32 v2, {L_LF + 4*kind}\nv_mov_b32 v3, 1\nds_write_b32 v2, v3\n{L}e:")

def relay_check(p, kind, vreg):
    L = newlbl("L_rc")
    p(f"v_readfirstlane_b32 s{sT3}, v{vreg}\ns_cmp_lg_u32 s{sT3}, 0\ns_cbranch_scc1 {L}x")
    p(f"s_mov_b32 s3, 0\nv_mov_b32 v2, {L_LF + 4*kind}\n{L}:\nds_read_b32 v3, v2\ns_waitcnt lgkmcnt(0)\nv_readfirstlane_b32 s{sT3}, v3\ns_cmp_lg_u32 s{sT3}, 0\ns_cbranch_scc1 {L}x")
    p(f"s_sleep 1\ns_add_u32 s3, s3, 1\ns_cmp_gt_u32 s3, {SPIN*8}\ns_cbranch_scc0 {L}\n{L}x:")

def lds_cnt_wait(p, addr, n):
    L = newlbl("L_cw")
    p(f"v_mov_b32 v2, {addr}\ns_mov_b32 s3, 0\n{L}:\nds_read_b32 v3, v2\ns_waitcnt lgkmcnt(0)\nv_readfirstlane_b32 s{sT3}, v3\ns_cmp_ge_u32 s{sT3}, {n}\ns_cbranch_scc1 {L}x")
    p(f"s_sleep 1\ns_add_u32 s3, s3, 1\ns_cmp_gt_u32 s3, {SPIN*8}\ns_cbranch_scc0 {L}\n{L}x:")

def lds_cnt_inc_nowait(p, addr):
    p(f"v_mov_b32 v2, {addr}\nv_mov_b32 v3, 1\ns_mov_b64 exec, 1\nds_add_u32 v2, v3\ns_mov_b64 exec, -1")

def lds_cnt_inc(p, addr):
    p(f"v_mov_b32 v2, {addr}\nv_mov_b32 v3, 1\ns_waitcnt lgkmcnt(0)\ns_mov_b64 exec, 1\nds_add_u32 v2, v3\ns_mov_b64 exec, -1")

def red_write(p, acc0, base):
    P = P2
    for dl in range(1, 4):
        p(f"s_xor_b32 s{sT0}, s{sW4}, {dl}\ns_mul_i32 s{sT0}, s{sT0}, 12288\ns_add_u32 s{sT0}, s{sT0}, {base + (dl-1)*4096}")
        p(f"v_add_u32 v{P.T+dl}, s{sT0}, v{P.VL16}")
        for q in range(4):
            r = acc0 + 16*dl + 4*q
            p(f"ds_write_b128 v{P.T+dl}, v[{r}:{r+3}] offset:{q*1024}")

def red_read(p, base, T):
    P = P2
    p(f"s_mul_i32 s{sT0}, s{sW4}, 12288\ns_add_u32 s{sT0}, s{sT0}, {base}\nv_add_u32 v{P.T}, s{sT0}, v{P.VL16}")
    for sl in range(3):
        for q in range(4):
            p(f"ds_read_b128 v[{T+16*sl+4*q}:{T+16*sl+4*q+3}], v{P.T} offset:{sl*4096 + q*1024}")

VLF = 239
VTD = 238
def h_touch(p, kind):
    nq = 2 if kind != 2 else 3
    p(f"s_and_b32 s{sT0}, s{sC}, 3")
    if kind < 3:
        p(f"s_mul_i32 s{sT0}, s{sT0}, 28\ns_lshl_b32 s{sT1}, s{sT2i}, 1\ns_mul_i32 s{sT1}, s{sT1}, 112\ns_add_u32 s{sT0}, s{sT0}, s{sT1}\ns_lshl_b32 s{sT0}, s{sT0}, 10\ns_add_u32 s{sT0}, s{sT0}, {WS_H}")
        tile_stride = 112 * 1024
    else:
        p(f"s_lshl_b32 s{sT0}, s{sT0}, 3\ns_lshl_b32 s{sT1}, s{sT2i}, 6\ns_add_u32 s{sT0}, s{sT0}, s{sT1}\ns_lshl_b32 s{sT0}, s{sT0}, 10\ns_add_u32 s{sT0}, s{sT0}, {WS_O}")
        tile_stride = 32 * 1024
    p(f"v_and_b32 v2, 7, v1\nv_lshlrev_b32 v2, 7, v2\nv_lshrrev_b32 v3, 3, v1\nv_and_b32 v3, 1, v3\ns_mov_b32 s{sT1}, {tile_stride}\nv_mul_lo_u32 v3, v3, s{sT1}\nv_add_u32 v2, v2, v3\nv_lshrrev_b32 v3, 4, v1")
    if kind in (0, 1):
        x = "" if kind == 0 else f"\ns_xor_b32 s{sT2}, s{sT2}, 2"
        p(f"s_lshr_b32 s{sT1}, s{sW4}, 1\ns_mul_i32 s{sT1}, s{sT1}, 20\ns_and_b32 s{sT2}, s{sW4}, 1\ns_lshl_b32 s{sT2}, s{sT2}, 2\ns_add_u32 s{sT1}, s{sT1}, s{sT2}\ns_mov_b32 s{sT2}, s{sBB2}{x}\ns_add_u32 s{sT1}, s{sT1}, s{sT2}")
    elif kind == 2:
        p(f"s_mul_i32 s{sT1}, s{sW4}, 3\ns_add_u32 s{sT1}, s{sT1}, 8")
    else:
        p(f"s_lshl_b32 s{sT1}, s{sW4}, 1")
    p(f"s_lshl_b32 s{sT1}, s{sT1}, 10\ns_add_u32 s{sT0}, s{sT0}, s{sT1}\nv_lshlrev_b32 v3, 10, v3\nv_add_u32 v2, v2, v3")
    mask = "0xffffffff" if nq == 2 else "0xffffffffffff"
    if nq == 2: p("s_mov_b32 exec_lo, -1\ns_mov_b32 exec_hi, 0")
    else:       p("s_mov_b32 exec_lo, -1\ns_mov_b32 exec_hi, 0xffff")
    p(f"buffer_load_dword v{VTD}, v2, s[{S_WS}:{S_WS+3}], s{sT0} offen sc1\ns_mov_b64 exec, -1")

def phase2(p):
    P = P2
    N = NST
    LEAD = int(OPT.get("lead", 3))
    touch = not OPT.get("notouch") and not OPT.get("ntH")
    ops = []
    BL = 6
    def wait_for(tag):
        last = max(i for i, t in enumerate(ops) if t == tag)
        return len(ops) - 1 - last
    def wait_both(n):
        w = wait_for(f"A{n}")
        if f"B{n}" in ops: w = min(w, wait_for(f"B{n}"))
        return w
    p("L_P2loop:")
    stamp(p, "P2:start")
    p(f"v_add_u32 v{P.VBR2}, s{sLB2}, v{P.VTMPB}\nv_xor_b32 v{P.VBR2+1}, 64, v{P.VBR2}")
    relay_poll(p, WS_FA, 0, 0)
    p(f"v_mov_b32 v2, {L_LF}\nds_read_b32 v{VLF}, v2\ns_waitcnt lgkmcnt(0)")
    relay_check(p, 0, VLF)
    stamp(p, "P2:FA1")
    if touch: h_touch(p, 0); ops += ["t"]
    for n in range(DA): p(fA(n)); ops += [f"A{n}"] * 2
    if NDEEP:
        lds_cnt_wait(p, L_CNT, 4)
        for n in range(DB, NS + NDEEP): p(fB(n)); ops += [f"B{n}"] * 2
        stamp(p, "P2:deep")
    p(f"s_waitcnt vmcnt({len(ops)})")
    L = newlbl("L_fa2")
    p(f"s_cmp_lg_u32 s{sROLE}, 0\ns_cbranch_scc1 {L}")
    store_flag(p, f"s_mov_b32 s{sT0}, s{sHB}")
    p(f"{L}:")
    stamp(p, "P2:drain")
    p(f"s_waitcnt vmcnt({wait_both(0)})")
    for r in p2_reads(0): p(r)
    parts = {8: (1, WS_FA2, 1, 1), 16: (2, WS_FB, 2, 2), 28: (3, WS_FO, 3, 3)}
    chk_at = {}; poll_at = {}
    for nn, v in parts.items():
        c = max(0, nn - DA - LEAD); chk_at[c] = v; poll_at[max(0, c - 2)] = v
    for n in range(N):
        m = f_mfmas(n)
        if n > 0: p(f"s_waitcnt vmcnt({wait_for(f'A{n}')}) lgkmcnt(0)")
        else:     p("s_waitcnt lgkmcnt(0)")
        if n in (0, 4, 8, 12, 16, 20, 24, 28, 32, 35): stamp(p, f"P2:n{n}")
        p(m[0])
        if n + 1 < N:
            if f"B{n+1}" in ops and wait_for(f"B{n+1}") < wait_for(f"A{n}"):
                p(f"s_waitcnt vmcnt({wait_for(f'B{n+1}')})")
            for r in p2_reads(n + 1): p(r)
            if (n + 1) in chk_at and (n + 1) not in poll_at:
                p(f"v_mov_b32 v2, {L_LF + 4*chk_at[n+1][0]}\nds_read_b32 v{VLF}, v2")
        if n in poll_at:
            kind, fl, wv, tk = poll_at[n]; relay_poll(p, fl, kind, wv)
        if n in chk_at:
            kind, fl, wv, tk = chk_at[n]
            if n in poll_at or n == 0:
                p(f"v_mov_b32 v2, {L_LF + 4*kind}\nds_read_b32 v{VLF}, v2\ns_waitcnt lgkmcnt(0)")
            stamp(p, f"P2:pre{kind}"); relay_check(p, kind, VLF); stamp(p, f"P2:chk{kind}")
            if touch: h_touch(p, tk); ops += ["t"]
        vm = []
        nb_ = (n + BL) if NDEEP else (n + DB)
        lo = (NS + NDEEP) if NDEEP else DB
        if lo <= nb_ < N:
            a_, b_ = fB(nb_, True); vm += [a_, b_]; ops += [f"B{nb_}"] * 2
        if n + DA < N:
            vm += fA(n + DA, True); ops += [f"A{n+DA}"] * 2
        rest = m[1:]
        for i_ in range(max(len(vm), len(rest))):
            if i_ < len(vm): p(vm[i_])
            if i_ < len(rest): p(rest[i_])
        if n == 28:
            lds_cnt_wait(p, L_CNT, 4)
            red_write(p, P.ACCF, L_REDF)
            lds_cnt_inc(p, L_CF)
        if n == 32:
            lds_cnt_wait(p, L_CF, 4)
            red_read(p, L_REDF, P.ACCF + 16)
        if n == 33:
            a = P.ACCF
            for sl in range(3):
                for e in range(16): p(f"v_add_f32 v{a+e}, v{a+e}, v{a+16+16*sl+e}")
            TT = a + 16
            for e in range(16): p(f"v_exp_f32 v{TT+e}, -v{a+e}")
            for e in range(16): p(f"v_add_f32 v{TT+e}, 1.0, v{TT+e}")
            for e in range(16): p(f"v_rcp_f32 v{TT+e}, v{TT+e}")
            for e in range(16): p(f"v_mul_f32 v{a+e}, v{a+e}, v{TT+e}")

def final_epilogue(p):
    p("L_FINAL:")
    P = P2
    stamp(p, "F:start")
    red_write(p, P.ACCS, L_REDS)
    lds_cnt_inc(p, L_CS2)
    stamp(p, "F:written")
    TT = P.AF
    for qp in range(2):
        x = P.XR + 4*qp
        p(f"v_permlane32_swap_b32 v{x}, v{x+2}\nv_permlane32_swap_b32 v{x+1}, v{x+3}")
    XU = P.AF + 48
    lds_cnt_wait(p, L_CS2, 4)
    stamp(p, "F:sync")
    red_read(p, L_REDS, TT)
    a = P.ACCF; s = P.ACCS
    p(xres_soff())
    p(f"s_mov_b32 s{sT1}, {fhex(LN2*LN2)}")
    for sl in range(3):
        p(f"s_waitcnt lgkmcnt({8-4*sl})")
        for e in range(16): p(f"v_add_f32 v{s+e}, v{s+e}, v{TT+16*sl+e}")
    for e in range(16): p(f"v_mul_f32 v{a+e}, v{a+e}, v{s+e}")
    for qp in range(2):
        x = P.XR + 4*qp
        for d in range(4):
            e0 = 8*qp + 2*d
            t = TT + 2*d
            p(f"v_lshlrev_b32 v{t}, 16, v{x+d}\nv_and_b32 v{t+1}, 0xffff0000, v{x+d}")
        for d in range(4):
            e0 = 8*qp + 2*d
            t = TT + 2*d
            p(f"v_fma_f32 v{t}, v{a+e0}, s{sT1}, v{t}\nv_fma_f32 v{t+1}, v{a+e0+1}, s{sT1}, v{t+1}")
        for d in range(4):
            t = TT + 2*d
            p(f"v_cvt_pk_bf16_f32 v{x+d}, v{t}, v{t+1}")
        p(f"v_permlane32_swap_b32 v{x}, v{x+2}\nv_permlane32_swap_b32 v{x+1}, v{x+3}")
        p(f"buffer_store_dwordx4 v[{x}:{x+3}], v{P.VX}, s[{S_OUT}:{S_OUT+3}], s{sT0} offen offset:{qp*32}")

def fused():
    p = Prog()
    if STAMPS["on"]: p("s_memrealtime s[100:101]\ns_memtime s[96:97]")
    if OPT.get("dbgtime"): p("s_memrealtime s[100:101]\ns_memtime s[96:97]")
    prologue(p)
    if OPT.get("dbgtime"): p("s_mov_b32 s101, s96")
    if STAMPS["on"]: p(f"v_mov_b32 v{VSTAMP}, 0\nv_writelane_b32 v{VSTAMP}, s96, 0\nv_writelane_b32 v{VSTAMP}, s100, 62")
    p(f"s_cmp_ge_u32 s{sW8}, 4\ns_cbranch_scc0 L_A")
    p(f"s_cmp_eq_u32 s{sROLE}, 0\ns_cbranch_scc0 L_BQ")
    for role in (0, 1):
        if role == 1: p("L_BQ:")
        stamp_reset(1, f"B{role}")
        B_setup(p, role)
        ops = B_phaseA(p, role)
        B_phaseB(p, role, ops)
        if role == 0:
            B_epi_F(p)
        else:
            PQ = B_epi_Q(p); stamp(p, "B:epiQ"); o_stage(p, PQ)
        stamp(p, "B:end"); stamp_dump(p)
        p("s_endpgm")
        p(f"L_Bend{role}:")
    p("L_A:")
    prologue2(p)
    A_stats_issue(p)
    if OPT.get("smw"): smem_warm(p)
    zero_ctrl_(p)
    p2_setup(p)
    fill = [fB(n) for n in range(DB)] + [xres_load()]
    p(f"s_cmp_eq_u32 s{sROLE}, 0\ns_cbranch_scc0 L_AQ")
    stamp_reset(1, "A0")
    A_setup(p, 0); A_stats_compute(p); A_phaseA(p, 0); A_epi_F(p, fill)
    p("s_branch L_P2")
    p("L_AQ:")
    stamp_reset(1, "A1")
    A_setup(p, 1); A_stats_compute(p); A_phaseA(p, 1); A_epi_Q(p, fill)
    p("L_P2:")
    stamp_reset(30, "P2")
    phase2(p)
    final_epilogue(p)
    stamp(p, "F:end"); stamp_dump(p)
    if OPT.get("dbgtime"):
        p("s_memrealtime s[76:77]\ns_memtime s[78:79]\ns_waitcnt lgkmcnt(0)")
        p("s_sub_u32 s76, s76, s100\ns_sub_u32 s78, s78, s101")
        p(f"s_cmp_lg_u32 s{sW4}, 0\ns_cbranch_scc1 L_end\ns_and_b32 s3, s2, 127\ns_cmp_lg_u32 s3, 0\ns_cbranch_scc1 L_end")
        p("s_lshr_b32 s3, s2, 7\ns_lshl_b32 s3, s3, 3\nv_mov_b32 v2, s3\nv_mov_b32 v4, s76\nv_mov_b32 v5, s78\ns_mov_b64 exec, 1")
        p(f"buffer_store_dwordx2 v[4:5], v2, s[{S_DBG}:{S_DBG+3}], 0 offen sc1\ns_mov_b64 exec, -1")
    p("L_end:\ns_endpgm")
    p.fix_hazards()
    e = p.check_waits("fused2")
    return p

def B_phaseA_(p, role):
    B_phaseA(p, role)

def zero_ctrl_(p):
    zero_ctrl(p)

def build(path):
    hdr = open("cdna_kernels/" + NAME + ".s.ref").read().split("\n")
    top = [l for l in hdr if l.startswith(";") and "@launch" not in l and "Override" not in l and "grid=" not in l]
    kn = NAME + "_kernel"
    o = top + [f"; @launch grid=(256,1,1) block=(512,1,1) lds={LDS_BYTES}", '.amdgcn_target "amdgcn-amd-amdhsa--gfx950"\n.text', kernel_header(kn)]
    _lbl[0] = 0
    o.append(fused().text())
    o.append('.section .rodata,"a"\n.p2align 6')
    o.append(kernel_desc(kn, 256, 102, 256))
    open(path, "w").write("\n".join(o) + "\n")

if __name__ == "__main__":
    for a in sys.argv[2:]:
        if a == "diag": STAMPS["on"] = True
        elif "=" in a:
            k_, v_ = a.split("="); OPT[k_] = v_
    if "DA" in OPT: DA = int(OPT["DA"])
    if "deep" in OPT: NDEEP = int(OPT["deep"])
    build(sys.argv[1])
    if STAMPS["on"]:
        import json
        json.dump(STAMPS["names"], open(sys.argv[1] + ".names", "w"))
```

```python
import sys
from prog import *
import struct
def f2u(x): return struct.unpack("<I", struct.pack("<f", x))[0]
def fhex(x): return "0x%08x" % f2u(x)
LOG2E = 1.4426950408889634
LN2 = 0.6931471805599453

OPT = dict(nowarm=1, ntH=1, lead=1, DA=3, w2ch='1', plat=6, rot='', nofillepi=1)

WS_FA, WS_FB, WS_FO = 0, 4096, 8192
WS_C2 = 12288
WS_FA2 = 16384 + 4096
WS_NONCE = 16384
WS_KVZ = 0x10000
WS_STG = 0x30000
WS_CSP = 0x40000
WS_H   = 0x100000
WS_O   = 0x900000
WS_SIZE = 0x1000000
WS_DIAG = 0xF00000

SLOT = 32768
L_P2 = 98304
NS = 7
L_MISC = L_P2 + 4 * NS * 2048
L_RS = L_MISC; L_NMR = L_MISC + 512
L_CSA = L_MISC + 1024
L_CSB = L_MISC + 1536
L_CNT = L_MISC + 2040
L_NONCE = L_MISC + 2032
L_LF = L_MISC + 2000
L_CF = L_MISC + 2016
L_CS2 = L_MISC + 2020
L_W1 = L_MISC + 2024
L_W2 = L_MISC + 2028
L_SPARE = L_MISC + 2048
L_CSPL = L_SPARE
LDS_BYTES = 163840
assert L_SPARE + 6144 == LDS_BYTES

S_X, S_W, S_WS, S_W2, S_WO, S_OUT, S_DBG = 4, 8, 12, 16, 20, 24, 28
sW8, sW4, sI, sJ, sROLE, sR0, sRS = 32, 33, 34, 35, 36, 37, 38
sBO = 39
sT0, sT1, sT2, sT3, sT4, sT5 = 40, 41, 42, 43, 44, 45
sXB, sWB_, sLX, sLW, sXK, sWK, sWBB, sLWB, sK64, sHB = 46, 47, 48, 49, 50, 51, 52, 53, 54, 55
sMASKH = 56
sCOLA, sCOLB = 58, 59
sTMP = 60
sT2i, sC, sAH, sAH1, sBW, sLB, sAO, sAO1 = 62, 63, 64, 65, 66, 67, 68, 69
sLN2, sCEPS = 70, 71
sZ, sROT, sPA, sPB = 72, 73, 74, 75
sBB2 = 0
sNONCE = 57 + 0
sWSP = 92
sPOLL = 96
SPIN = 100000
sNONCE = 3 + 0
sNONCE = 1
DBG_NONCE = 128

STAMPS = {"on": False, "n": 0, "names": {}}
VSTAMP = 12
def stamp(p, name=""):
    if not STAMPS["on"]: return
    if OPT.get("dbgsel"):
        sel = OPT["dbgsel"].split(",")
        if name not in sel: return
        p(f"s_memrealtime s[100:101]\ns_waitcnt lgkmcnt(0)\nv_writelane_b32 v{VSTAMP}, s100, {1 + sel.index(name)}")
        return
    n = STAMPS["n"]; STAMPS["n"] += 1
    assert n < 62
    STAMPS["names"].setdefault(STAMPS.get("path", ""), {})[n] = name
    p(f"{'s_memrealtime' if OPT.get('rt') else 's_memtime'} s[100:101]\ns_waitcnt lgkmcnt(0)\nv_writelane_b32 v{VSTAMP}, s100, {n}")
def stamp_reset(n=0, path=None):
    STAMPS["n"] = n
    if path is not None: STAMPS["path"] = path
def stamp_dump(p):
    if not STAMPS["on"]: return
    if OPT.get("dbgsel"):
        L = newlbl("L_dd")
        p(f"s_or_b32 s3, s2, s{sW8}\ns_cmp_lg_u32 s3, {OPT.get('dbgw', 0)}\ns_cbranch_scc1 {L}")
        p(f"v_readlane_b32 s3, v{VSTAMP}, 62\ns_nop 1\nv_subrev_u32 v{VSTAMP}, s3, v{VSTAMP}\nv_lshlrev_b32 v2, 2, v1\ns_mov_b64 exec, 0xffff")
        p(f"buffer_store_dword v{VSTAMP}, v2, s[{S_DBG}:{S_DBG+3}], 0 offen sc1\ns_mov_b64 exec, -1\n{L}:")
        return
    p(f"s_memrealtime s[100:101]\ns_waitcnt lgkmcnt(0)\nv_writelane_b32 v{VSTAMP}, s100, 63")
    p(f"s_lshl_b32 s{sT0}, s2, 11\ns_lshl_b32 s{sT1}, s{sW8}, 8\ns_add_u32 s{sT0}, s{sT0}, s{sT1}\ns_add_u32 s{sT0}, s{sT0}, {WS_DIAG}")
    p(f"v_lshlrev_b32 v2, 2, v1\nbuffer_store_dword v{VSTAMP}, v2, s[{S_WS}:{S_WS+3}], s{sT0} offen")

_lbl = [0]
def newlbl(s):
    _lbl[0] += 1
    return f"{s}_{_lbl[0]}"

def srd(p, dst, lo, nbytes):
    p(f"s_mov_b32 s{dst}, s{lo}\ns_mov_b32 s{dst+1}, s{lo+1}\ns_mov_b32 s{dst+2}, {nbytes}\ns_mov_b32 s{dst+3}, 0x20000")

KX, KQKV, KWO, KW1, KW2, KOUT, KDBG = 76, 78, 80, 84, 86, 88, 90

def prologue(p):
    p("s_cmp_ge_u32 s2, 256\ns_cbranch_scc1 L_end")
    p(f"s_load_dwordx4 s[{KX}:{KX+3}], s[0:1], 0")
    p(f"s_load_dwordx4 s[{KW1}:{KW1+3}], s[0:1], 32")
    p(f"s_load_dwordx2 s[{sWSP}:{sWSP+1}], s[0:1], 64")
    p(f"s_load_dwordx2 s[{KWO}:{KWO+1}], s[0:1], 16")
    p(f"s_load_dwordx4 s[{KOUT}:{KOUT+3}], s[0:1], 48")
    p("v_and_b32 v1, 63, v0\nv_lshrrev_b32 v2, 6, v0")
    p("s_getpc_b64 s[94:95]")
    p(f"L_pc:\ns_lshr_b32 s3, s2, 3\ns_mul_i32 s3, s3, (L_end-L_pc+4095)/4096*128\nv_lshlrev_b32 v14, 7, v0\nv_add_u32 v14, s3, v14\nv_min_u32 v14, L_end-L_pc, v14\nv_cmp_gt_u32 vcc, (L_end-L_pc+4095)/4096, v0")
    p("s_and_saveexec_b64 s[98:99], vcc\ns_cbranch_execz L_nopf")
    p("global_load_dword v15, v14, s[94:95]")
    p("L_nopf:\ns_mov_b64 exec, s[98:99]")
    p(f"v_readfirstlane_b32 s{sW8}, v2")
    p(f"s_and_b32 s{sT0}, s2, 7\ns_lshr_b32 s{sT1}, s2, 3")
    p(f"s_and_b32 s{sT2}, s{sT0}, 1\ns_lshl_b32 s{sT2}, s{sT2}, 3\ns_and_b32 s{sT3}, s{sT1}, 7\ns_add_u32 s{sI}, s{sT2}, s{sT3}")
    p(f"s_lshr_b32 s{sT3}, s{sT1}, 3\ns_lshr_b32 s{sROLE}, s{sT3}, 1")
    p(f"s_lshr_b32 s{sT2}, s{sT0}, 1\ns_lshl_b32 s{sT2}, s{sT2}, 1\ns_and_b32 s{sT4}, s{sT3}, 1\ns_add_u32 s{sJ}, s{sT2}, s{sT4}")
    rm = OPT.get("r0mode", "8")
    if rm == "8":   p(f"s_lshl_b32 s{sT4}, s{sT3}, 1\ns_add_u32 s{sR0}, s{sI}, s{sT4}\ns_and_b32 s{sR0}, s{sR0}, 7")
    elif rm == "4": p(f"s_add_u32 s{sR0}, s{sI}, s{sT3}\ns_and_b32 s{sR0}, s{sR0}, 3\ns_lshl_b32 s{sR0}, s{sR0}, 1")
    elif rm == "2": p(f"s_add_u32 s{sR0}, s{sI}, s{sT3}\ns_and_b32 s{sR0}, s{sR0}, 1\ns_lshl_b32 s{sR0}, s{sR0}, 2")
    else:           p(f"s_mov_b32 s{sR0}, 0")
    p(f"s_and_b32 s{sW4}, s{sW8}, 3")
    p(f"s_mul_i32 s{sT0}, s{sJ}, 224\ns_and_b32 s{sT1}, s{sJ}, 1\ns_mul_i32 s{sT2}, s{sT1}, 96\ns_add_u32 s{sCOLA}, s{sT0}, s{sT2}")
    p(f"s_xor_b32 s{sT1}, s{sT1}, 1\ns_lshl_b32 s{sT1}, s{sT1}, 7\ns_add_u32 s{sCOLB}, s{sT0}, s{sT1}")
    p(f"s_lshl_b32 s{sT0}, s{sJ}, 6\ns_add_u32 s{sT1}, s{sT0}, 512")
    p(f"s_cmp_eq_u32 s{sROLE}, 0")
    p(f"s_cselect_b32 s{sCOLA}, s{sCOLA}, s{sT1}\ns_cselect_b32 s{sCOLB}, s{sCOLB}, s{sT0}")
    p(f"s_mov_b32 s{sT0}, 3584\ns_mov_b32 s{sT1}, 3072\ns_cselect_b32 s{sRS}, s{sT0}, s{sT1}")
    p(f"s_mov_b32 s{sT0}, 1835008\ns_mov_b32 s{sT1}, 1572864\ns_cselect_b32 s{S_W+2}, s{sT0}, s{sT1}\ns_mov_b32 s{S_W+3}, 0x20000")
    p(f"s_lshl_b32 s{sK64}, s{sRS}, 6")
    p("s_waitcnt lgkmcnt(0)")
    p(f"s_cmp_eq_u32 s{sROLE}, 0")
    p(f"s_cselect_b32 s{S_W}, s{KW1}, s{KQKV}\ns_cselect_b32 s{S_W+1}, s{KW1+1}, s{KQKV+1}")
    srd(p, S_X, KX, 2097152)

def prologue2(p):
    srd(p, S_WS, sWSP, WS_SIZE)
    srd(p, S_W2, KW2, 1835008)
    srd(p, S_WO, KWO, 524288)
    srd(p, S_OUT, KOUT, 2097152)
    srd(p, S_DBG, KDBG, 256)
    p(f"s_mov_b32 s{sLN2}, {fhex(LN2)}\ns_mov_b32 s{sCEPS}, {fhex(1e-6/LN2)}")

def make_sel(p, base, t0, t1):
    p(f"v_and_b32 v{t0}, 15, v1\nv_lshrrev_b32 v{t1}, 4, v1\nv_and_b32 v{t1}, 1, v{t1}")
    p(f"v_cmp_eq_u32 vcc, v{t0}, v{t1}")
    p(f"v_mov_b32 v{t0}, 0x3f803f80")
    p(f"v_cndmask_b32 v{base}, 0, v{t0}, vcc")
    for k in range(1, 4): p(f"v_mov_b32 v{base+k}, v{base}")

def code_touch(p, start, end, vdst):
    L = newlbl("L_ct")
    kn = NAME + "_kernel"
    p(f"s_getpc_b64 s[94:95]\n{L}:")
    p(f"s_sub_u32 s94, s94, {L}-{kn}\ns_subb_u32 s95, s95, 0\ns_add_u32 s94, s94, {start}-{kn}\ns_addc_u32 s95, s95, 0")
    p(f"s_mov_b32 s{sT0}, ({end}-{start}+511)/512\ns_mul_i32 s{sT1}, s{sT0}, s{sW4}\ns_sub_u32 s{sT0}, s{sT0}, 1")
    p(f"v_min_u32 v2, s{sT0}, v1\nv_add_u32 v2, s{sT1}, v2\nv_lshlrev_b32 v2, 7, v2")
    p(f"global_load_dword v{vdst}, v2, s[94:95]")

def interleave(p, main, fill):
    n = len(main); m = len(fill); k = 0
    for i, s in enumerate(main):
        while k < m and k * n <= i * m:
            p(fill[k]); k += 1
        p(s)
    while k < m:
        p(fill[k]); k += 1

def store_flag(p, soff_code):
    p(soff_code)
    p(f"v_mov_b32 v2, 0\nv_mov_b32 v3, s{sNONCE}\ns_mov_b64 exec, 1\nbuffer_store_dword v3, v2, s[{S_WS}:{S_WS+3}], s{sT0} offen sc1\ns_mov_b64 exec, -1")

class BR:
    ACC = 16; WF = 64
    CS = 100
    XOFF0, XOFF1, WOFF = 104, 105, 106
    WBOFF = 107; XR = 110; WBL = 114
    SEL = 118; RS, NMR = 122, 123
    TA = 124; WBA = 124
    PFD = 117
    XO = 48
    WO = 52
    WQ1 = 103 + 0
    X = 128

def wb_base(role, k):
    return k * (3072 if role == 0 else 2048)

def B_setup(p, role):
    B = BR
    p(f"v_lshrrev_b32 v2, 3, v1\nv_lshlrev_b32 v5, 10, v2")
    p(f"v_and_b32 v3, 7, v1\nv_lshrrev_b32 v4, 4, v1\nv_xor_b32 v6, v3, v4\nv_lshlrev_b32 v6, 4, v6")
    p(f"v_add_u32 v{B.XOFF0}, v5, v6\nv_xor_b32 v{B.XOFF1}, 64, v{B.XOFF0}")
    p(f"v_mul_lo_u32 v2, v2, s{sRS}")
    p(f"v_and_b32 v4, 1, v4\nv_lshlrev_b32 v4, 2, v4\nv_xor_b32 v3, v3, v4\nv_lshlrev_b32 v3, 4, v3")
    p(f"v_add_u32 v{B.WOFF}, v2, v3")
    p(f"v_mov_b32 v{B.XO}, v{B.XOFF0}\nv_add_u32 v{B.XO+1}, 7168, v{B.XOFF1}\nv_add_u32 v{B.XO+2}, {2*7168}, v{B.XOFF0}\nv_add_u32 v{B.XO+3}, {3*7168}, v{B.XOFF1}")
    p(f"s_lshl_b32 s{sT5}, s{sRS}, 3\ns_sub_u32 s{sT5}, s{sT5}, 1024\nv_mov_b32 v{B.WO}, v{B.WOFF}")
    for t in range(1, 4): p(f"v_add_u32 v{B.WO+t}, s{sT5}, v{B.WO+t-1}")
    p(f"s_lshl_b32 s{sT0}, s{sI}, 7\ns_lshl_b32 s{sT1}, s{sW4}, 5\ns_add_u32 s{sT0}, s{sT0}, s{sT1}\ns_lshl_b32 s{sXB}, s{sT0}, 10")
    p(f"s_lshl_b32 s{sLX}, s{sW4}, 12")
    p(f"s_lshr_b32 s{sT0}, s{sW4}, 1\ns_and_b32 s{sT1}, s{sW4}, 1")
    p(f"s_lshl_b32 s{sT2}, s{sT1}, 5\ns_mul_i32 s{sT2}, s{sT2}, s{sRS}")
    p(f"s_lshl_b32 s{sT3}, s{sCOLA}, 1\ns_lshl_b32 s{sT4}, s{sT0}, {7 if role == 0 else 10}\ns_add_u32 s{sT3}, s{sT3}, s{sT4}")
    p(f"s_add_u32 s{sWB_}, s{sT2}, s{sT3}")
    p(f"s_lshl_b32 s{sT2}, s{sT0}, 13\ns_lshl_b32 s{sT3}, s{sT1}, 12\ns_add_u32 s{sLW}, s{sT2}, s{sT3}\ns_add_u32 s{sLW}, s{sLW}, 16384")

def B_setup2(p, role):
    B = BR
    p(f"v_and_b32 v2, 31, v1\nv_lshrrev_b32 v3, 5, v1")
    p(f"v_lshrrev_b32 v4, 1, v2\nv_and_b32 v4, 7, v4\nv_xor_b32 v4, v4, v3\nv_lshlrev_b32 v4, 4, v4")
    p(f"v_lshlrev_b32 v5, 7, v2\nv_add_u32 v4, v4, v5\nv_add_u32 v4, s{sLX}, v4")
    for pp in range(4): p(f"v_xor_b32 v{B.XR+pp}, {pp*32}, v4")
    p(f"s_lshl_b32 s{sT0}, s{sW4}, 4\ns_mul_i32 s{sT0}, s{sT0}, s{sRS}\ns_lshl_b32 s{sT1}, s{sCOLB}, 1\ns_add_u32 s{sWBB}, s{sT0}, s{sT1}")
    if role == 0:
        for t in range(3):
            p(f"v_add_u32 v2, {64*t}, v1\ns_mov_b32 s{sT0}, 43691\nv_mul_lo_u32 v3, v2, s{sT0}\nv_lshrrev_b32 v3, 19, v3")
            p(f"v_mul_u32_u24 v4, 12, v3\nv_sub_u32 v4, v2, v4\nv_lshlrev_b32 v4, 4, v4\nv_mul_lo_u32 v3, v3, s{sRS}\nv_add_u32 v{B.WBOFF+t}, v3, v4")
            if t: p(f"v_subrev_u32 v{B.WBOFF+t}, {t*1024}, v{B.WBOFF+t}")
        p(f"s_mul_i32 s{sLWB}, s{sW4}, 3072")
        p(f"v_lshrrev_b32 v2, 5, v1\nv_lshlrev_b32 v2, 3, v2\nv_and_b32 v3, 15, v1\nv_lshrrev_b32 v4, 2, v3\nv_add_u32 v2, v2, v4\nv_mul_u32_u24 v2, 192, v2")
        p(f"v_lshrrev_b32 v4, 4, v1\nv_and_b32 v4, 1, v4\nv_lshlrev_b32 v4, 5, v4\nv_add_u32 v2, v2, v4\nv_and_b32 v4, 3, v3\nv_lshlrev_b32 v4, 3, v4\nv_add_u32 v2, v2, v4")
        for be in range(3):
            p(f"s_add_u32 s{sT0}, s{sW4}, {be}\ns_cmp_ge_u32 s{sT0}, 3\ns_cselect_b32 s{sT1}, 3, 0\ns_sub_u32 s{sT0}, s{sT0}, s{sT1}")
            p(f"s_cmp_ge_u32 s{sT0}, 3\ns_cselect_b32 s{sT1}, 3, 0\ns_sub_u32 s{sT0}, s{sT0}, s{sT1}\ns_lshl_b32 s{sT0}, s{sT0}, 6")
            p(f"v_add_u32 v{B.WBL+be}, s{sT0}, v2")
    else:
        p(f"s_lshl_b32 s{sLWB}, s{sW4}, 11")
        p(f"v_mov_b32 v{B.WBOFF}, v{B.WOFF}\ns_lshl_b32 s{sT5}, s{sRS}, 3\ns_sub_u32 s{sT5}, s{sT5}, 1024\nv_add_u32 v{B.WBOFF+1}, s{sT5}, v{B.WOFF}")
        p(f"v_lshrrev_b32 v2, 5, v1\nv_lshlrev_b32 v2, 3, v2\nv_and_b32 v3, 15, v1\nv_lshrrev_b32 v4, 2, v3\nv_add_u32 v2, v2, v4\nv_lshlrev_b32 v2, 7, v2")
        p(f"v_lshrrev_b32 v4, 3, v3\nv_lshlrev_b32 v4, 6, v4\nv_add_u32 v2, v2, v4")
        p(f"v_lshrrev_b32 v4, 4, v1\nv_and_b32 v4, 1, v4\nv_lshlrev_b32 v4, 5, v4\nv_add_u32 v2, v2, v4\nv_and_b32 v4, 3, v3\nv_lshlrev_b32 v4, 3, v4\nv_add_u32 v2, v2, v4")
        p(f"s_and_b32 s{sT0}, s{sW4}, 1\ns_lshl_b32 s{sT0}, s{sT0}, 6\nv_xor_b32 v{B.WBL}, s{sT0}, v2\nv_xor_b32 v{B.WBL+1}, 64, v{B.WBL}")
    make_sel(p, B.SEL, 2, 3)

def dma_stage(stage, xfirst=False):
    B = BR
    slot = (stage % 4) * SLOT
    pre = (f"s_add_u32 s{sT0}, s{sR0}, {stage}\ns_and_b32 s{sT0}, s{sT0}, 7\n"
           f"s_lshl_b32 s{sT1}, s{sT0}, 7\ns_add_u32 s{sXK}, s{sXB}, s{sT1}\n"
           f"s_mul_i32 s{sT1}, s{sT0}, s{sK64}\ns_add_u32 s{sWK}, s{sWB_}, s{sT1}")
    gx = [f"buffer_load_dwordx4 v{B.XO+t}, s[{S_X}:{S_X+3}], s{sXK} offen offset:{t*1024} lds" for t in range(4)]
    gw = [f"buffer_load_dwordx4 v{B.WO+t}, s[{S_W}:{S_W+3}], s{sWK} offen offset:{t*1024} lds" for t in range(4)]
    gx[0] = f"s_add_u32 m0, s{sLX}, {slot}\n" + gx[0]
    gw[0] = f"s_add_u32 m0, s{sLW}, {slot}\n" + gw[0]
    g = gx + gw
    g[0] = pre + "\n" + g[0]
    return g

def dma_wb(t, role):
    B = BR
    b0 = wb_base(role, 4*t)
    pre = (f"s_add_u32 s{sT0}, s{sR0}, {t}\ns_and_b32 s{sT0}, s{sT0}, 7\n"
           f"s_mul_i32 s{sT1}, s{sT0}, s{sK64}\ns_add_u32 s{sWK}, s{sWBB}, s{sT1}\ns_add_u32 m0, s{sLWB}, {b0}")
    n = 3 if role == 0 else 2
    g = [f"buffer_load_dwordx4 v{B.WBOFF+u}, s[{S_W}:{S_W+3}], s{sWK} offen offset:{u*1024} lds" for u in range(n)]
    return [pre + "\n" + "\n".join(g)]

def B_phaseA(p, role):
    B = BR
    nb = 3 if role == 0 else 2
    stamp(p, "B:setup")
    for g in dma_stage(0): p(g)
    stamp(p, "B:dma0")
    for g in dma_stage(1, xfirst=True): p(g)
    for g in dma_stage(2): p(g)
    nwarm = 0
    if not OPT.get("nowarm"):
        A_prefetch_setup(p)
        p(f"v_lshlrev_b32 v2, 7, v1\nbuffer_load_dword v{B.PFD}, v2, s[96:99], s{sPA} offen")
        nwarm = 1
    stamp(p, "B:dma012")
    prologue2(p)
    B_setup2(p, role)
    VST, VCS, LD, ST4, PZ = 16, 17, 20, 36, 40
    p(f"s_lshl_b32 s{sT3}, s{sI}, 11\ns_lshl_b32 s{sT4}, s{sW4}, 9\ns_add_u32 s{sT3}, s{sT3}, s{sT4}\ns_add_u32 s{sT3}, s{sT3}, {WS_STG}\nv_and_b32 v2, 31, v1\nv_lshlrev_b32 v2, 4, v2\nv_add_u32 v{VST}, s{sT3}, v2")
    p(f"s_lshl_b32 s{sT2}, s{sROLE}, 3\ns_add_u32 s{sT2}, s{sT2}, s{sJ}\ns_lshl_b32 s{sT3}, s{sT2}, 14\ns_add_u32 s{sT3}, s{sT3}, {WS_CSP}\ns_lshl_b32 s{sT4}, s{sW4}, 8\ns_add_u32 s{sT3}, s{sT3}, s{sT4}")
    p(f"v_lshrrev_b32 v2, 5, v1\nv_lshlrev_b32 v2, 13, v2\nv_and_b32 v3, 31, v1\nv_lshlrev_b32 v3, 3, v3\nv_add_u32 v2, v2, v3\nv_add_u32 v{VCS}, s{sT3}, v2")
    def preloads():
        o = [f"buffer_load_dwordx4 v[{ST4}:{ST4+3}], v{VST}, s[{S_WS}:{S_WS+3}], 0 offen sc1"]
        for q in range(8):
            so = "0" if q < 4 else f"s{sMASKH}"
            o.append(f"buffer_load_dwordx2 v[{LD+2*q}:{LD+2*q+1}], v{VCS}, s[{S_WS}:{S_WS+3}], {so} offen offset:{(q & 3)*1024} sc1")
        return o
    p(f"s_mov_b32 s{sMASKH}, 4096")
    if role == 0:
        wbs = {5: (0,), 6: (1, 2), 7: (3,)} if not OPT.get("wblate") else {5: (), 6: (0,), 7: (1,)}
        if OPT.get("wball"): wbs = {5: (0, 1), 6: (2, 3, 4), 7: (5, 6, 7)}
    else:
        wbs = {5: (0, 1), 6: (2, 3), 7: ()} if not OPT.get("wblate") else {5: (), 6: (0, 1), 7: (2, 3)}
        if OPT.get("wball"): wbs = {5: (0, 1, 2, 3), 6: (4, 5, 6, 7), 7: ()}
    ops = []
    ops += ["s0"]*8 + ["s1"]*8 + ["s2"]*8 + ["w"]*nwarm
    def wait_for(tag):
        last = max(i for i, t in enumerate(ops) if t == tag)
        return len(ops) - 1 - last
    for s in range(8):
        p(f"s_waitcnt vmcnt({wait_for('s%d' % s)}) lgkmcnt(0)")
        stamp(p, f"B:landed{s}")
        p("s_barrier")
        if s <= 4: fill = dma_stage(s + 3); tags = ["s%d" % (s + 3)] * 8
        else:
            fill = sum((dma_wb(t, role) for t in wbs[s]), []); tags = sum((["b%d" % t] * nb for t in wbs[s]), [])
        slot = (s % 4) * SLOT
        for pp in range(4):
            k = 4 * s + pp
            p(f"v_add_u32 v{B.TA+pp}, {slot}, v{B.XR+pp}\nds_read_b128 v[{B.X+4*k}:{B.X+4*k+3}], v{B.TA+pp}")
        if s == 0:
            p(f"v_mov_b32 v3, {L_NONCE}\nds_read_b32 v4, v3\ns_waitcnt lgkmcnt(0)\nv_readfirstlane_b32 s{sNONCE}, v4")
        for g in fill: p(g)
        ops += tags
        if s == 2:
            p(f"v_and_b32 v2, 15, v1\nv_lshlrev_b32 v3, 3, v2\ns_lshl_b32 s{sT0}, s{sW4}, 7\ns_add_u32 s{sT0}, s{sT0}, {L_CSPL}\nv_add_u32 v3, s{sT0}, v3\nds_read_b64 v[44:45], v3")
            p(f"s_lshl_b32 s{sT0}, s{sROLE}, 3\ns_add_u32 s{sT0}, s{sT0}, s{sJ}\ns_lshl_b32 s{sT0}, s{sT0}, 4\ns_add_u32 s{sT0}, s{sT0}, s{sI}\ns_lshl_b32 s{sT0}, s{sT0}, 10\ns_add_u32 s{sT0}, s{sT0}, {WS_CSP}\ns_lshl_b32 s{sT1}, s{sW4}, 8\ns_add_u32 s{sT0}, s{sT0}, s{sT1}")
            p(f"v_lshlrev_b32 v2, 4, v2\ns_waitcnt lgkmcnt(0)\nv_mov_b32 v46, v45\nv_mov_b32 v45, s{sNONCE}\nv_mov_b32 v47, s{sNONCE}")
            p(f"s_mov_b64 exec, 0xffff\nbuffer_store_dwordx4 v[44:47], v2, s[{S_WS}:{S_WS+3}], s{sT0} offen sc1\ns_mov_b64 exec, -1")
            p(f"v_and_b32 v2, 31, v1\nv_lshlrev_b32 v2, 2, v2\nbuffer_load_dword v{PZ}, v2, s[{S_DBG}:{S_DBG+3}], 0 offen sc1")
            ops += ["c", "z"]
        if s == int(OPT.get("plat", 6)):
            for x_ in preloads(): p(x_)
            ops += ["p"] * 9
        if OPT.get("touch"):
            if s == 3:
                code_touch(p, f"L_Aepi{role}", "L_AQ" if role == 0 else "L_P2", B.PFD); ops += ["t"]
                code_touch(p, f"L_Bpb{role}", f"L_Bend{role}", B.PFD); ops += ["t"]
            if s == 6:
                code_touch(p, "L_P2", "L_end", B.PFD); ops += ["t"]
    L = newlbl("L_tg")
    p(f"s_waitcnt vmcnt({wait_for('p')})")
    p(f"s_mov_b32 s3, 0\n{L}:")
    p(f"v_xor_b32 v2, s{sNONCE}, v{ST4+2}")
    for q in range(8): p(f"v_xor_b32 v3, s{sNONCE}, v{LD+2*q+1}\nv_or_b32 v2, v2, v3")
    p(f"v_cmp_ne_u32 vcc, 0, v2\ns_cbranch_vccz {L}x")
    p(f"s_add_u32 s3, s3, 1\ns_cmp_gt_u32 s3, {SPIN}\ns_cbranch_scc1 {L}x")
    for x_ in preloads(): p(x_)
    p(f"s_waitcnt vmcnt(0)\ns_branch {L}\n{L}x:")
    p(f"v_and_b32 v2, 31, v1\nv_lshlrev_b32 v2, 2, v2")
    poll_check(p, PZ, 1, 2, S_DBG)
    p(f"s_lshl_b32 s{sT0}, s{sW4}, 7\ns_add_u32 s{sT0}, s{sT0}, {L_RS}\nv_add_u32 v3, s{sT0}, v2\nds_write_b32 v3, v{ST4}\nds_write_b32 v3, v{ST4+1} offset:512")
    for st in (4, 2, 1):
        for q in range(st): p(f"v_add_f32 v{LD+2*q}, v{LD+2*q}, v{LD+2*(q+st)}")
    p(f"v_mov_b32 v4, v{LD}\nv_permlane32_swap_b32 v4, v{LD}\nv_add_f32 v{LD}, v{LD}, v4")
    p(f"s_lshl_b32 s{sT0}, s{sW4}, 7\ns_add_u32 s{sT0}, s{sT0}, {L_CSA}\nv_add_u32 v3, s{sT0}, v2\nds_write_b32 v3, v{LD}")
    return ops

def B_phaseB(p, role, ops):
    p(f"L_Bpb{role}:")
    B = BR
    nb = 3 if role == 0 else 2
    ustride = 768 if role == 0 else 512
    def reads(k):
        buf = B.WF + (k % 3) * 12
        base = wb_base(role, k)
        hi = base // 32768; lo = base - hi * 32768
        s = []
        for be in range(nb):
            for u in range(2):
                s.append(f"ds_read_b64_tr_b16 v[{buf+4*be+2*u}:{buf+4*be+2*u+1}], v{B.WBA+be} offset:{lo + u*ustride}")
        return hi, s
    cur = [None]
    def setaddr(hi):
        if cur[0] == hi: return ""
        cur[0] = hi
        return "\n".join(f"v_add_u32 v{B.WBA+be}, {hi*32768}, v{B.WBL+be}" for be in range(nb))
    def mfmas(k):
        buf = B.WF + (k % 3) * 12; x = B.X + 4 * k; first = k == 0
        s = []
        for be in range(nb):
            c = "0" if first else f"v[{B.ACC+16*be}:{B.ACC+16*be+15}]"
            s.append(f"v_mfma_f32_32x32x16_bf16 v[{B.ACC+16*be}:{B.ACC+16*be+15}], v[{buf+4*be}:{buf+4*be+3}], v[{x}:{x+3}], {c}")
        c = "0" if first else f"v[{B.CS}:{B.CS+3}]"
        s.append(f"v_mfma_f32_16x16x32_bf16 v[{B.CS}:{B.CS+3}], v[{buf}:{buf+3}], v[{B.SEL}:{B.SEL+3}], {c}")
        return s
    def wait_for(tag):
        last = max(i for i, t in enumerate(ops) if t == tag)
        return len(ops) - 1 - last
    rest_wb = list(range(2, 8)) if (role == 0 and OPT.get('wblate')) else list(range(4, 8))
    if OPT.get('wball'): rest_wb = []
    w8 = wait_for("b1")
    for t in rest_wb: ops += ["b%d" % t] * nb
    w9 = wait_for("b3")
    nrd = 2 * nb
    p(f"s_waitcnt vmcnt({w8}) lgkmcnt(0)")
    stamp(p, "B:pre8")
    p("s_barrier")
    stamp(p, "B:post8")
    if OPT.get("prioBm"): p(f"s_setprio {OPT['prioBm']}")
    for k0 in range(2):
        hi, rr = reads(k0)
        a = setaddr(hi)
        if a: p(a)
        for r in rr: p(r)
    for k in range(32):
        m = mfmas(k)
        p(f"s_waitcnt lgkmcnt({nrd if k < 31 else 0})")
        if k in (2, 4, 6, 8, 12, 14, 16, 24): stamp(p, f"B:b{k}")
        p(m[0])
        if k < len(rest_wb):
            for g in dma_wb(rest_wb[k], role): p(g)
        if k + 2 < 32:
            if k + 4 == 8:  p(f"s_waitcnt vmcnt({w9})"); lds_cnt_inc_nowait(p, L_W1)
            if k + 4 == 16: p(f"s_waitcnt vmcnt(0)"); lds_cnt_inc_nowait(p, L_W2)
            if k + 2 == 8:  lds_cnt_wait(p, L_W1, 4)
            if k + 2 == 16: lds_cnt_wait(p, L_W2, 4)
            hi, rr = reads(k + 2)
            a = setaddr(hi)
            if a:
                p("s_waitcnt lgkmcnt(0)") if False else None
                p(a)
            rest = m[1:]
            per = (len(rr) + len(rest) - 1) // len(rest)
            ri = 0
            for mm in rest:
                for _ in range(per):
                    if ri < len(rr): p(rr[ri]); ri += 1
                p(mm)
            while ri < len(rr): p(rr[ri]); ri += 1
        else:
            for mm in m[1:]: p(mm)
    stamp(p, "B:mfma_end")
    if OPT.get("prioBm"): p(f"s_setprio {OPT.get('prioBe', 0)}")
    if OPT.get("prioBe"): p(f"s_setprio {OPT['prioBe']}")
    T = 2
    p(f"v_and_b32 v{T}, 15, v1\nv_lshrrev_b32 v{T+1}, 4, v1")
    p(f"v_cmp_gt_u32 vcc, 2, v{T}")
    p(f"v_lshlrev_b32 v{T}, 6, v{T}\nv_lshlrev_b32 v{T+1}, 4, v{T+1}\nv_add_u32 v{T}, v{T}, v{T+1}")
    if role == 0: p(f"s_cmp_eq_u32 s{sW4}, 3\ns_cselect_b32 s{sT0}, 0, s{sW4}\ns_lshl_b32 s{sT0}, s{sT0}, 7\ns_add_u32 s{sT0}, s{sT0}, {L_CSB}")
    else:         p(f"s_and_b32 s{sT0}, s{sW4}, 1\ns_lshl_b32 s{sT0}, s{sT0}, 7\ns_add_u32 s{sT0}, s{sT0}, {L_CSB}")
    p(f"v_add_u32 v{T}, s{sT0}, v{T}")
    p(f"s_and_saveexec_b64 s[{sTMP}:{sTMP+1}], vcc")
    p(f"ds_write_b128 v{T}, v[{B.CS}:{B.CS+3}]")
    p(f"s_mov_b64 exec, s[{sTMP}:{sTMP+1}]")
    L = newlbl("L_cnt")
    p(f"v_mov_b32 v4, {L_CNT}\nv_mov_b32 v5, 1\ns_waitcnt lgkmcnt(0)\ns_mov_b64 exec, 1\nds_add_u32 v4, v5\ns_mov_b64 exec, -1")
    p(f"s_mov_b32 s3, 0\n{L}:\ns_add_u32 s3, s3, 1\ns_cmp_gt_u32 s3, {SPIN}\ns_cbranch_scc1 {L}x")
    p(f"ds_read_b32 v5, v4\ns_waitcnt lgkmcnt(0)\nv_cmp_gt_u32 vcc, 4, v5\ns_cbranch_vccnz {L}\n{L}x:")
    p(f"v_and_b32 v2, 31, v1\nv_lshlrev_b32 v2, 2, v2\ns_lshl_b32 s{sT0}, s{sW4}, 7\ns_add_u32 s{sT0}, s{sT0}, {L_RS}\nv_add_u32 v2, s{sT0}, v2")
    p(f"ds_read_b32 v{B.RS}, v2\nds_read_b32 v{B.NMR}, v2 offset:512")

def silu_chunk(p, acc, cs, rs, nmr, T, out):
    for e in range(8): p(f"v_mul_f32 v{T+e}, v{nmr}, v{cs+e}")
    for e in range(8): p(f"v_fma_f32 v{T+e}, v{acc+e}, v{rs}, v{T+e}")
    for e in range(8): p(f"v_exp_f32 v{T+8+e}, -v{T+e}")
    for e in range(8): p(f"v_add_f32 v{T+8+e}, 1.0, v{T+8+e}")
    for e in range(8): p(f"v_rcp_f32 v{T+8+e}, v{T+8+e}")
    for e in range(8): p(f"v_mul_f32 v{T+e}, v{T+e}, v{T+8+e}")
    for e in range(4): p(f"v_cvt_pk_bf16_f32 v{out+e}, v{T+2*e}, v{T+2*e+1}")

def phi_elems(p, t, n, T):
    for e in range(n): p(f"v_min_f32 v{T+e}, 0, v{t+e}")
    for e in range(n): p(f"v_exp_f32 v{T+e}, v{T+e}")
    for e in range(n): p(f"v_max_f32 v{t+e}, s{sCEPS}, v{t+e}")
    for e in range(n): p(f"v_fma_f32 v{t+e}, v{t+e}, s{sLN2}, v{T+e}")

def B_epi_F(p):
    stamp(p, "B:cnt_done")
    B = BR
    CSV, T, OUT, VA = 128, 176, 192, 200
    p(f"v_lshrrev_b32 v3, 5, v1\nv_lshlrev_b32 v3, 4, v3\nv_add_u32 v3, {L_CSB}, v3")
    for be in range(3):
        p(f"s_add_u32 s{sT0}, s{sW4}, {be}\ns_cmp_ge_u32 s{sT0}, 3\ns_cselect_b32 s{sT1}, 3, 0\ns_sub_u32 s{sT0}, s{sT0}, s{sT1}")
        p(f"s_cmp_ge_u32 s{sT0}, 3\ns_cselect_b32 s{sT1}, 3, 0\ns_sub_u32 s{sTMP+2+be}, s{sT0}, s{sT1}")
        p(f"s_lshl_b32 s{sT0}, s{sTMP+2+be}, 7\nv_add_u32 v{VA+be}, s{sT0}, v3")
        for q in range(4):
            p(f"ds_read_b128 v[{CSV+16*be+4*q}:{CSV+16*be+4*q+3}], v{VA+be} offset:{q*32}")
    p(f"v_lshlrev_b32 v{VA+3}, 4, v1")
    p(f"s_lshl_b32 s{sT2}, s{sI}, 2\ns_add_u32 s{sT2}, s{sT2}, s{sW4}\ns_mul_i32 s{sT2}, s{sT2}, 112\ns_lshr_b32 s{sT3}, s{sCOLB}, 4\ns_add_u32 s{sT2}, s{sT2}, s{sT3}")
    p(f"s_lshl_b32 s{sHB}, s{sT2}, 10\ns_add_u32 s{sHB}, s{sHB}, {WS_H}")
    ch = 0
    for be in range(3):
        p(f"s_waitcnt lgkmcnt({8-4*be})")
        for qp in range(2):
            o = OUT + 4*(ch & 1)
            silu_chunk(p, B.ACC + 16*be + 8*qp, CSV + 16*be + 8*qp, B.RS, B.NMR, T, o)
            stamp(p, f"B:v{ch}")
            p(f"s_lshl_b32 s{sT2}, s{sTMP+2+be}, 11\ns_add_u32 s{sT2}, s{sT2}, s{sHB}\ns_add_u32 s{sT2}, s{sT2}, {qp*1024}")
            p(f"buffer_store_dwordx4 v[{o}:{o+3}], v{VA+3}, s[{S_WS}:{S_WS+3}], s{sT2} offen sc1")
            stamp(p, f"B:s{ch}")
            ch += 1
    stamp(p, "B:epi_valu")
    p("s_waitcnt vmcnt(0)")
    stamp(p, "B:drained")
    store_flag(p, flagB_addr(WS_FB))

def flagB_addr(base):
    return (f"s_lshl_b32 s{sT2}, s{sI}, 1\ns_lshr_b32 s{sT3}, s{sW4}, 1\ns_add_u32 s{sT2}, s{sT2}, s{sT3}\ns_lshl_b32 s{sT2}, s{sT2}, 7\n"
            f"s_lshl_b32 s{sT3}, s{sJ}, 1\ns_and_b32 s{sT4}, s{sW4}, 1\ns_add_u32 s{sT3}, s{sT3}, s{sT4}\ns_lshl_b32 s{sT3}, s{sT3}, 2\n"
            f"s_add_u32 s{sT0}, s{sT2}, s{sT3}\ns_add_u32 s{sT0}, s{sT0}, {base}")

def B_epi_Q(p):
    B = BR
    CSV, T, PQ, VA = 128, 160, 224, 170
    p(f"v_lshrrev_b32 v3, 5, v1\nv_lshlrev_b32 v3, 4, v3\nv_add_u32 v3, {L_CSB}, v3")
    p(f"s_and_b32 s{sT0}, s{sW4}, 1\ns_lshl_b32 s{sT0}, s{sT0}, 7\nv_add_u32 v{VA}, s{sT0}, v3\nv_xor_b32 v{VA+1}, 128, v{VA}")
    for be in range(2):
        for q in range(4):
            p(f"ds_read_b128 v[{CSV+16*be+4*q}:{CSV+16*be+4*q+3}], v{VA+be} offset:{q*32}")
    for be in range(2):
        p(f"s_waitcnt lgkmcnt({4-4*be})")
        for qp in range(2):
            a = B.ACC + 16*be + 8*qp; cs = CSV + 16*be + 8*qp
            for e in range(8): p(f"v_mul_f32 v{T+e}, v{B.NMR}, v{cs+e}")
            for e in range(8): p(f"v_fma_f32 v{a+e}, v{a+e}, v{B.RS}, v{T+e}")
            phi_elems(p, a, 8, T)
            for e in range(4): p(f"v_cvt_pk_bf16_f32 v{PQ+8*be+4*qp+e}, v{a+2*e}, v{a+2*e+1}")
    return PQ

def wait_c2(p):
    L = newlbl("L_c2")
    p(f"s_lshl_b32 s{sT0}, s{sJ}, 8\ns_add_u32 s{sT0}, s{sT0}, {WS_C2}")
    p(f"v_and_b32 v2, 1, v1\nv_lshlrev_b32 v2, 7, v2")
    p(f"s_mov_b32 s3, 0\n{L}:\ns_add_u32 s3, s3, 1\ns_cmp_gt_u32 s3, {SPIN}\ns_cbranch_scc1 {L}x")
    p(f"buffer_load_dword v3, v2, s[{S_WS}:{S_WS+3}], s{sT0} offen sc1\ns_waitcnt vmcnt(0)\nv_cmp_ne_u32 vcc, 32, v3\ns_cbranch_vccz {L}x\ns_sleep 4\ns_branch {L}\n{L}x:")

def o_stage(p, PQ, T0=128):
    LD = T0; KA = T0 + 32; D4 = T0 + 48; OUT = T0 + 80; VA = T0 + 88
    p(f"v_and_b32 v2, 31, v1\nv_lshrrev_b32 v3, 5, v1")
    p(f"v_lshlrev_b32 v4, 5, v3\nv_add_u32 v4, v4, v2\nv_lshlrev_b32 v4, 2, v4")
    p(f"v_lshlrev_b32 v5, 2, v3\nv_add_u32 v5, 2048, v5")
    p(f"v_cmp_gt_u32 vcc, 16, v2")
    p(f"v_cndmask_b32 v{VA}, v5, v4, vcc")
    p(f"v_add_u32 v4, 64, v4\nv_add_u32 v5, 8, v5")
    p(f"v_cndmask_b32 v{VA+1}, v5, v4, vcc")
    p(f"v_lshlrev_b32 v{VA+2}, 4, v1")
    p(f"s_lshl_b32 s{sT0}, s{sJ}, 13\ns_add_u32 s{sT0}, s{sT0}, {WS_KVZ}")
    p(f"s_and_b32 s{sT1}, s{sW4}, 1\ns_lshl_b32 s{sT1}, s{sT1}, 12")
    p(f"s_add_u32 s{sTMP}, s{sT0}, s{sT1}\ns_xor_b32 s{sT1}, s{sT1}, 4096\ns_add_u32 s{sTMP+1}, s{sT0}, s{sT1}")
    p(f"s_lshl_b32 s{sT4}, s{sI}, 2\ns_add_u32 s{sT4}, s{sT4}, s{sW4}\ns_lshl_b32 s{sT4}, s{sT4}, 5\ns_lshl_b32 s{sT5}, s{sJ}, 2\ns_add_u32 s{sT4}, s{sT4}, s{sT5}")
    p(f"s_lshl_b32 s{sT4}, s{sT4}, 10\ns_add_u32 s{sHB}, s{sT4}, {WS_O}")
    p(f"s_and_b32 s{sT1}, s{sW4}, 1\ns_lshl_b32 s{sT1}, s{sT1}, 11")
    p(f"s_add_u32 s{sTMP+2}, s{sHB}, s{sT1}\ns_xor_b32 s{sT1}, s{sT1}, 2048\ns_add_u32 s{sTMP+3}, s{sHB}, s{sT1}")
    wait_c2(p)
    stamp(p, "B:c2")
    for be in range(2):
        for hh in range(2):
            h = 2*be + hh
            for r in range(8):
                p(f"buffer_load_dword v{LD+8*h+r}, v{VA+hh}, s[{S_WS}:{S_WS+3}], s{sTMP+be} offen offset:{r*256} sc1")
    for h in range(4):
        be, hh = h >> 1, h & 1
        d = D4 + 16 * (h & 1)
        p(f"s_waitcnt vmcnt({(3-h)*8 + max(0, h-2)})")
        for e in range(4): p(f"v_cvt_pk_bf16_f32 v{KA+4*h+e}, v{LD+8*h+2*e}, v{LD+8*h+2*e+1}")
        p(f"v_mfma_f32_32x32x16_bf16 v[{d}:{d+15}], v[{KA+4*h}:{KA+4*h+3}], v[{PQ+8*be+4*hh}:{PQ+8*be+4*hh+3}], 0")
        if h >= 1: o_fin(p, h - 1, D4, OUT, VA)
    o_fin(p, 3, D4, OUT, VA)
    p("s_waitcnt vmcnt(0)")
    store_flag(p, flagB_addr(WS_FO))

def o_fin(p, h, D4, OUT, VA):
    be, hh = h >> 1, h & 1
    d = D4 + 16 * (h & 1); o = OUT + 4 * (h & 1)
    p(f"v_add_f32 v{d+8}, {fhex(1e-6)}, v{d+8}")
    p(f"v_rcp_f32 v{d+8}, v{d+8}")
    for e in range(8): p(f"v_mul_f32 v{d+e}, v{d+e}, v{d+8}")
    for e in range(4): p(f"v_cvt_pk_bf16_f32 v{o+e}, v{d+2*e}, v{d+2*e+1}")
    p(f"s_add_u32 s{sT5}, s{sTMP+2+be}, {hh*1024}")
    p(f"buffer_store_dwordx4 v[{o}:{o+3}], v{VA+2}, s[{S_WS}:{S_WS+3}], s{sT5} offen sc1")

class AR:
    ACC = 16; XF = 80; WF = 184; CS = 112; SEL = 120; SEL2 = 236
    AX = 124; AX2 = 128; AW = 132; AW2 = 134
    E = 136
    CL = 136
    STL = 168
    POLL = 172
    VCL = 173
    VSL = 174
    PF = 255
    CSO = 176

def zero_ctrl(p):
    L = newlbl("L_nz")
    p(f"s_cmp_ge_u32 s2, 8\ns_cbranch_scc1 {L}")
    L2 = newlbl("L_nn")
    p(f"s_or_b32 s{sT0}, s2, s{sW4}\ns_cmp_lg_u32 s{sT0}, 0\ns_cbranch_scc1 {L2}")
    p(f"s_load_dword s{sT3}, s[{sWSP}:{sWSP+1}], {WS_NONCE} glc")
    p(f"{L2}:")
    p("v_mov_b32 v8, 0\nv_mov_b32 v9, 0\nv_mov_b32 v10, 0\nv_mov_b32 v11, 0\nv_lshlrev_b32 v2, 4, v1")
    p(f"s_lshl_b32 s{sT0}, s2, 13\ns_lshl_b32 s{sT1}, s{sW4}, 11\ns_add_u32 s{sT0}, s{sT0}, s{sT1}\ns_add_u32 s{sT0}, s{sT0}, {WS_KVZ}")
    p(f"buffer_store_dwordx4 v[8:11], v2, s[{S_WS}:{S_WS+3}], s{sT0} offen sc1\nbuffer_store_dwordx4 v[8:11], v2, s[{S_WS}:{S_WS+3}], s{sT0} offen offset:1024 sc1")
    p(f"s_lshl_b32 s{sT0}, s2, 8\ns_add_u32 s{sT0}, s{sT0}, {WS_C2}\ns_mov_b64 exec, 0xffff")
    p(f"buffer_store_dwordx4 v[8:11], v2, s[{S_WS}:{S_WS+3}], s{sT0} offen sc1\ns_mov_b64 exec, -1")
    L3 = newlbl("L_nn")
    p(f"s_or_b32 s{sT0}, s2, s{sW4}\ns_cmp_lg_u32 s{sT0}, 0\ns_cbranch_scc1 {L3}")
    p(f"s_waitcnt lgkmcnt(0)\ns_add_u32 s{sT3}, s{sT3}, 1\ns_or_b32 s{sT3}, s{sT3}, 1")
    p(f"v_mov_b32 v3, s{sT3}\nv_mov_b32 v4, {DBG_NONCE}\nv_mov_b32 v5, {WS_NONCE}\ns_mov_b64 exec, 1")
    p(f"buffer_store_dword v3, v4, s[{S_DBG}:{S_DBG+3}], 0 offen sc1\nbuffer_store_dword v3, v5, s[{S_WS}:{S_WS+3}], 0 offen sc1\ns_mov_b64 exec, -1")
    p(f"{L3}:")
    p(f"s_lshl_b32 s{sT0}, s2, 2\ns_add_u32 s{sT0}, s{sT0}, s{sW4}\ns_lshl_b32 s{sT0}, s{sT0}, 2\nv_mov_b32 v2, s{sT0}\nv_mov_b32 v3, 1")
    p("s_waitcnt vmcnt(0)")
    p(f"s_mov_b64 exec, 1\nbuffer_store_dword v3, v2, s[{S_DBG}:{S_DBG+3}], 0 offen sc1\ns_mov_b64 exec, -1")
    p(f"{L}:")

def get_nonce(p):
    L = newlbl("L_gn")
    p(f"v_mov_b32 v2, {DBG_NONCE}")
    p(f"s_mov_b32 s3, 0\n{L}:\ns_add_u32 s3, s3, 1\ns_cmp_gt_u32 s3, {SPIN}\ns_cbranch_scc1 {L}x")
    p(f"buffer_load_dword v3, v2, s[{S_DBG}:{S_DBG+3}], 0 offen sc1\ns_waitcnt vmcnt(0)\nv_readfirstlane_b32 s{sNONCE}, v3\ns_cmp_eq_u32 s{sNONCE}, 0\ns_cbranch_scc1 {L}\n{L}x:")
    p(f"v_mov_b32 v2, {L_NONCE}\nv_mov_b32 v3, s{sNONCE}\nds_write_b32 v2, v3")

def A_stats_issue(p):
    p(f"s_lshl_b32 s{sT0}, s{sROLE}, 3\ns_add_u32 s{sT0}, s{sT0}, s{sJ}\ns_lshl_b32 s{sT0}, s{sT0}, 3\ns_lshl_b32 s{sT1}, s{sW4}, 1\ns_add_u32 s{sT0}, s{sT0}, s{sT1}")
    p(f"s_lshl_b32 s{sT1}, s{sI}, 7\ns_add_u32 s{sZ}, s{sT0}, s{sT1}\ns_lshl_b32 s{sT0}, s{sZ}, 10")
    p(f"v_lshlrev_b32 v2, 4, v1")
    p(f"buffer_load_dwordx4 v[40:43], v2, s[{S_X}:{S_X+3}], s{sT0} offen\nbuffer_load_dwordx4 v[44:47], v2, s[{S_X}:{S_X+3}], s{sT0} offen offset:1024")

def A_prefetch_setup(p):
    p(f"s_cmp_eq_u32 s{sW4}, 0\ns_cselect_b32 s96, s{KQKV}, s{KW1}\ns_cselect_b32 s97, s{KQKV+1}, s{KW1+1}\ns_mov_b32 s{sT0}, 1835008\ns_mov_b32 s{sT1}, 1572864\ns_cselect_b32 s98, s{sT1}, s{sT0}\ns_mov_b32 s{sT2}, 56\ns_mov_b32 s{sT3}, 48\ns_cselect_b32 s{sT2}, s{sT3}, s{sT2}")
    p(f"s_cmp_eq_u32 s{sW4}, 2\ns_cselect_b32 s96, s{KW2}, s96\ns_cselect_b32 s97, s{KW2+1}, s97")
    p(f"s_cmp_eq_u32 s{sW4}, 3\ns_cselect_b32 s96, s{KWO}, s96\ns_cselect_b32 s97, s{KWO+1}, s97\ns_mov_b32 s{sT0}, 524288\ns_cselect_b32 s98, s{sT0}, s98\ns_mov_b32 s{sT3}, 16\ns_cselect_b32 s{sT2}, s{sT3}, s{sT2}")
    p(f"s_mov_b32 s99, 0x20000\ns_mul_i32 s{sT2}, s{sT2}, s2\ns_lshl_b32 s{sPA}, s{sT2}, 7")

def A_stats_compute(p):
    p("s_waitcnt vmcnt(0)")
    for r in range(2):
        for d in range(4):
            x = 40 + 4*r + d
            p(f"v_lshlrev_b32 v48, 16, v{x}\nv_and_b32 v49, 0xffff0000, v{x}")
            if d == 0:
                p(f"v_add_f32 v{50+2*r}, v48, v49\nv_mul_f32 v{51+2*r}, v48, v48\nv_fmac_f32 v{51+2*r}, v49, v49")
            else:
                p(f"v_add_f32 v{50+2*r}, v{50+2*r}, v48\nv_fmac_f32 v{51+2*r}, v48, v48\nv_add_f32 v{50+2*r}, v{50+2*r}, v49\nv_fmac_f32 v{51+2*r}, v49, v49")
    for ctl in ("row_shr:1", "row_shr:2", "row_shr:4", "row_shr:8"):
        for v in range(50, 54): p(f"v_add_f32_dpp v{v}, v{v}, v{v} {ctl} row_mask:0xf bank_mask:0xf bound_ctrl:0")
    for v in range(50, 54): p(f"v_add_f32_dpp v{v}, v{v}, v{v} row_bcast:15 row_mask:0xa bank_mask:0xf")
    for v in range(50, 54): p(f"v_add_f32_dpp v{v}, v{v}, v{v} row_bcast:31 row_mask:0xc bank_mask:0xf")
    for r in range(2):
        s, q = 50 + 2*r, 51 + 2*r
        p(f"v_mul_f32 v{s}, {fhex(1.0/512)}, v{s}\nv_mul_f32 v{q}, {fhex(1.0/512)}, v{q}")
        p(f"v_fma_f32 v{q}, -v{s}, v{s}, v{q}\nv_max_f32 v{q}, 0, v{q}\nv_add_f32 v{q}, {fhex(1e-5)}, v{q}")
        p(f"v_rsq_f32 v{q}, v{q}")
        p(f"v_mul_f32 v{54+2*r}, {fhex(LOG2E)}, v{q}")
        p(f"v_mul_f32 v{55+2*r}, v{54+2*r}, v{s}\nv_sub_f32 v{55+2*r}, 0, v{55+2*r}")
    get_nonce(p)
    p(f"v_mov_b32 v60, v56\nv_mov_b32 v61, v57\nv_mov_b32 v56, s{sNONCE}\nv_mov_b32 v57, s{sNONCE}\nv_mov_b32 v62, s{sNONCE}\nv_mov_b32 v63, s{sNONCE}")
    p(f"s_lshl_b32 s{sT0}, s{sZ}, 4\ns_add_u32 s{sT0}, s{sT0}, {WS_STG}\nv_mov_b32 v2, 0")
    p(f"s_mov_b32 exec_lo, 0\ns_mov_b32 exec_hi, 0x80000000")
    p(f"buffer_store_dwordx4 v[54:57], v2, s[{S_WS}:{S_WS+3}], s{sT0} offen sc1\nbuffer_store_dwordx4 v[60:63], v2, s[{S_WS}:{S_WS+3}], s{sT0} offen offset:16 sc1")
    p(f"s_mov_b64 exec, -1")

def A_setup(p, role):
    A = AR
    p(f"s_and_b32 s{sT0}, s{sW4}, 1\ns_lshr_b32 s{sT1}, s{sW4}, 1")
    p(f"v_and_b32 v2, 31, v1\nv_lshrrev_b32 v3, 5, v1")
    p(f"v_lshrrev_b32 v4, 1, v2\nv_and_b32 v4, 7, v4\nv_xor_b32 v4, v4, v3\nv_lshlrev_b32 v4, 4, v4")
    p(f"v_lshlrev_b32 v5, 7, v2\nv_add_u32 v4, v4, v5\ns_lshl_b32 s{sT2}, s{sT0}, 13\nv_add_u32 v4, s{sT2}, v4")
    for pp in range(4):
        p(f"v_xor_b32 v{A.AX+pp}, {pp*32}, v4\nv_add_u32 v{A.AX2+pp}, 65536, v{A.AX+pp}")
    p(f"v_lshrrev_b32 v2, 5, v1\nv_lshlrev_b32 v2, 3, v2\nv_and_b32 v3, 15, v1\nv_lshrrev_b32 v4, 2, v3\nv_add_u32 v2, v2, v4\nv_lshlrev_b32 v2, 7, v2")
    p(f"v_lshrrev_b32 v4, 3, v3\nv_lshlrev_b32 v4, 6, v4\nv_add_u32 v2, v2, v4")
    p(f"v_lshrrev_b32 v4, 4, v1\nv_and_b32 v4, 1, v4\nv_lshlrev_b32 v4, 5, v4\nv_add_u32 v2, v2, v4\nv_and_b32 v4, 3, v3\nv_lshlrev_b32 v4, 3, v4\nv_add_u32 v2, v2, v4")
    if role == 0:
        p(f"s_lshl_b32 s{sT2}, s{sT0}, 6\nv_xor_b32 v2, s{sT2}, v2\ns_lshl_b32 s{sT2}, s{sT1}, 13\ns_add_u32 s{sT2}, s{sT2}, 16384")
        p(f"v_add_u32 v{A.AW}, s{sT2}, v2\nv_xor_b32 v{A.AW+1}, 64, v{A.AW}")
    else:
        p(f"s_lshl_b32 s{sT2}, s{sT1}, 6\nv_xor_b32 v2, s{sT2}, v2")
        p(f"v_add_u32 v{A.AW}, 16384, v2\nv_add_u32 v{A.AW+1}, {16384+8192}, v2")
    p(f"v_add_u32 v{A.AW2}, 65536, v{A.AW}\nv_add_u32 v{A.AW2+1}, 65536, v{A.AW+1}")
    make_sel(p, A.SEL, 2, 3)
    p(f"s_cmp_ge_u32 s{sI}, 8\ns_cselect_b32 s{sT2}, -1, 0")
    for k in range(4):
        p(f"v_and_b32 v{A.SEL2+k}, s{sT2}, v{A.SEL+k}")
    p(f"s_not_b32 s{sT2}, s{sT2}")
    for k in range(4):
        p(f"v_and_b32 v{A.SEL+k}, s{sT2}, v{A.SEL+k}")
    p(f"v_mov_b32 v2, {L_CNT}\nv_mov_b32 v3, 0\nds_write_b32 v2, v3")
    p(f"v_mov_b32 v2, {L_LF}\nv_mov_b32 v4, 0\nv_mov_b32 v5, 0\nv_mov_b32 v6, 0\nv_mov_b32 v7, 0\nds_write_b128 v2, v[4:7]\nds_write_b128 v2, v[4:7] offset:16")

def poll_check(p, reg, expect, addr_reg, srd_):
    L = newlbl("L_pc")
    p(f"v_cmp_ne_u32 vcc, {expect}, v{reg}\ns_cbranch_vccz {L}x")
    p(f"s_mov_b32 s3, 0\n{L}:\ns_add_u32 s3, s3, 1\ns_cmp_gt_u32 s3, {SPIN}\ns_cbranch_scc1 {L}x")
    p(f"buffer_load_dword v{reg}, v{addr_reg}, s[{srd_}:{srd_+3}], 0 offen sc1\ns_waitcnt vmcnt(0)\nv_cmp_ne_u32 vcc, {expect}, v{reg}\ns_cbranch_vccnz {L}\n{L}x:")

def w2_touch(p, dst):
    p(f"s_lshl_b32 s{sT2}, s{sC}, 7\ns_lshr_b32 s{sT1}, s2, 3\ns_and_b32 s{sT1}, s{sT1}, 7")
    p(f"s_mul_i32 s{sT3}, s{sT1}, 224\ns_mul_i32 s{sT4}, s{sW4}, 56\ns_add_u32 s{sT3}, s{sT3}, s{sT4}\ns_lshl_b32 s{sT3}, s{sT3}, 10\ns_add_u32 s{sT3}, s{sT3}, s{sT2}")
    p(f"v_min_u32 v2, 55, v1\nv_lshlrev_b32 v2, 10, v2\nbuffer_load_dword v{dst}, v2, s[{S_W2}:{S_W2+3}], s{sT3} offen")
    p(f"s_lshl_b32 s{sT3}, s{sT1}, 6\ns_lshl_b32 s{sT4}, s{sW4}, 4\ns_add_u32 s{sT3}, s{sT3}, s{sT4}\ns_lshl_b32 s{sT3}, s{sT3}, 10\ns_add_u32 s{sT3}, s{sT3}, s{sT2}")
    p(f"v_and_b32 v2, 15, v1\nv_lshlrev_b32 v2, 10, v2\ns_mov_b64 exec, 0xffff\nbuffer_load_dword v{dst}, v2, s[{S_WO}:{S_WO+3}], s{sT3} offen\ns_mov_b64 exec, -1")

def w2_touch_piece(p, dst, piece, npieces):
    nw = 56 // npieces; no = 16 // npieces
    p(f"s_lshl_b32 s{sT2}, s{sC}, 7\ns_lshr_b32 s{sT1}, s2, 3\ns_and_b32 s{sT1}, s{sT1}, 7")
    p(f"s_mul_i32 s{sT3}, s{sT1}, 224\ns_mul_i32 s{sT4}, s{sW4}, 56\ns_add_u32 s{sT3}, s{sT3}, s{sT4}\ns_add_u32 s{sT3}, s{sT3}, {piece*nw}\ns_lshl_b32 s{sT3}, s{sT3}, 10\ns_add_u32 s{sT3}, s{sT3}, s{sT2}")
    p(f"v_lshlrev_b32 v2, 10, v1\ns_mov_b64 exec, {hex((1 << nw) - 1)}\nbuffer_load_dword v{dst}, v2, s[{S_W2}:{S_W2+3}], s{sT3} offen")
    p(f"s_lshl_b32 s{sT3}, s{sT1}, 6\ns_lshl_b32 s{sT4}, s{sW4}, 4\ns_add_u32 s{sT3}, s{sT3}, s{sT4}\ns_add_u32 s{sT3}, s{sT3}, {piece*no}\ns_lshl_b32 s{sT3}, s{sT3}, 10\ns_add_u32 s{sT3}, s{sT3}, s{sT2}")
    p(f"s_mov_b64 exec, {hex((1 << no) - 1)}\nbuffer_load_dword v{dst}, v2, s[{S_WO}:{S_WO+3}], s{sT3} offen\ns_mov_b64 exec, -1")

def smem_warm(p):
    n = int(OPT.get("smw", 1))
    p(f"s_mul_i32 s{sT0}, s2, 56\ns_mul_i32 s{sT1}, s{sW4}, 14\ns_add_u32 s{sT0}, s{sT0}, s{sT1}\ns_lshl_b32 s{sT0}, s{sT0}, 7")
    p(f"s_add_u32 s94, s{KW2}, s{sT0}\ns_addc_u32 s95, s{KW2+1}, 0")
    for i in range(14):
        for h in range(n): p(f"s_load_dword s76, s[94:95], {i*128 + h*64}")
    p(f"s_lshl_b32 s{sT0}, s2, 4\ns_lshl_b32 s{sT1}, s{sW4}, 2\ns_add_u32 s{sT0}, s{sT0}, s{sT1}\ns_lshl_b32 s{sT0}, s{sT0}, 7")
    p(f"s_add_u32 s98, s{KWO}, s{sT0}\ns_addc_u32 s99, s{KWO+1}, 0")
    for i in range(4):
        for h in range(n): p(f"s_load_dword s76, s[98:99], {i*128 + h*64}")

def w2_touch_split(p, dst, which):
    p(f"s_lshl_b32 s{sT2}, s{sC}, 7\ns_lshr_b32 s{sT1}, s2, 3\ns_and_b32 s{sT1}, s{sT1}, 7\ns_mul_i32 s{sT4}, s{sW4}, 448")
    if which == 0:
        p(f"s_lshl_b32 s{sT3}, s{sT1}, 5\nv_and_b32 v2, 31, v1\nv_add_u32 v2, s{sT3}, v2\nv_add_u32 v3, 192, v2\nv_cmp_gt_u32 vcc, 128, v2\nv_cndmask_b32 v2, v3, v2, vcc")
        p(f"v_add_u32 v2, s{sT4}, v2\nv_lshlrev_b32 v2, 10, v2\ns_mov_b32 exec_hi, 0\nbuffer_load_dword v{dst}, v2, s[{S_W2}:{S_W2+3}], s{sT2} offen\ns_mov_b32 exec_hi, -1")
    else:
        p(f"s_mul_i32 s{sT3}, s{sT1}, 24\ns_add_u32 s{sT3}, s{sT3}, s{sT4}\ns_add_u32 s{sT3}, s{sT3}, 128\ns_lshl_b32 s{sT3}, s{sT3}, 10\ns_add_u32 s{sT3}, s{sT3}, s{sT2}")
        p(f"v_lshlrev_b32 v2, 10, v1\ns_mov_b64 exec, 0xffffff\nbuffer_load_dword v{dst}, v2, s[{S_W2}:{S_W2+3}], s{sT3} offen")
        p(f"s_lshl_b32 s{sT3}, s{sW4}, 7\ns_lshl_b32 s{sT4}, s{sT1}, 4\ns_add_u32 s{sT3}, s{sT3}, s{sT4}\ns_lshl_b32 s{sT3}, s{sT3}, 10\ns_add_u32 s{sT3}, s{sT3}, s{sT2}")
        p(f"s_mov_b64 exec, 0xffff\nbuffer_load_dword v{dst}, v2, s[{S_WO}:{S_WO+3}], s{sT3} offen\ns_mov_b64 exec, -1")

def mall_warm(p, dst):
    L = newlbl("L_mw")
    p(f"s_cmp_ge_u32 s{sW4}, 2\ns_cbranch_scc1 {L}a")
    p(f"s_mul_i32 s{sT0}, s2, 56\ns_mul_i32 s{sT1}, s{sW4}, 28\ns_add_u32 s{sT0}, s{sT0}, s{sT1}\ns_lshl_b32 s{sT0}, s{sT0}, 7\nv_min_u32 v2, 27, v1\nv_lshlrev_b32 v2, 7, v2")
    p(f"s_mov_b32 exec_hi, 0\nbuffer_load_dword v{dst}, v2, s[{S_W2}:{S_W2+3}], s{sT0} offen\ns_mov_b32 exec_hi, -1\ns_branch {L}")
    p(f"{L}a:\ns_cmp_lg_u32 s{sW4}, 2\ns_cbranch_scc1 {L}")
    p(f"s_lshl_b32 s{sT0}, s2, 11\nv_lshlrev_b32 v2, 7, v1\ns_mov_b64 exec, 0xffff\nbuffer_load_dword v{dst}, v2, s[{S_WO}:{S_WO+3}], s{sT0} offen\ns_mov_b64 exec, -1")
    p(f"{L}:")

def wb_touch(p, dst):
    p(f"s_and_b32 s{sT0}, s{sI}, 7\ns_lshl_b32 s{sT0}, s{sT0}, 6\ns_lshl_b32 s{sT1}, s{sW4}, 4\ns_add_u32 s{sT0}, s{sT0}, s{sT1}\ns_mul_i32 s{sT0}, s{sT0}, s{sRS}")
    p(f"s_lshl_b32 s{sT1}, s{sCOLB}, 1\ns_and_b32 s{sT1}, s{sT1}, 0xffffff80\ns_add_u32 s{sT0}, s{sT0}, s{sT1}")
    p(f"v_lshrrev_b32 v2, 1, v1\nv_and_b32 v2, 15, v2\nv_mul_lo_u32 v2, v2, s{sRS}\nv_and_b32 v3, 1, v1\nv_lshlrev_b32 v3, 7, v3\nv_add_u32 v2, v2, v3")
    p(f"s_mov_b32 exec_hi, 0\nbuffer_load_dword v{dst}, v2, s[{S_W}:{S_W+3}], s{sT0} offen\ns_mov_b32 exec_hi, -1")

def A_phaseA(p, role):
    A = AR
    nsm = 1 if role == 0 else 2
    def reads(k):
        s_, pp = k // 4, k % 4
        slot = s_ % 4; b = k % 3
        ax = (A.AX2 if slot >= 2 else A.AX) + pp
        aw = (A.AW2 if slot >= 2 else A.AW)
        so = (slot & 1) * SLOT
        r = []
        for be in range(2):
            for u in range(2):
                r.append(f"ds_read_b64_tr_b16 v[{A.WF+8*b+4*be+2*u}:{A.WF+8*b+4*be+2*u+1}], v{aw+be} offset:{so + pp*2048 + u*512}")
        for tt in range(2):
            r.append(f"ds_read_b128 v[{A.XF+8*b+4*tt}:{A.XF+8*b+4*tt+3}], v{ax} offset:{so + tt*4096}")
        if OPT.get("noAreads"): r = ["s_nop 0"] * 6
        return r
    def mfmas(k):
        b = k % 3; m = []
        if OPT.get("noAmfma"): return ["s_nop 0"] * 4
        for tt in range(2):
            for be in range(2):
                acc = A.ACC + 32*tt + 16*be
                c = "0" if k == 0 else f"v[{acc}:{acc+15}]"
                w = f"v[{A.WF+8*b+4*be}:{A.WF+8*b+4*be+3}]"; x = f"v[{A.XF+8*b+4*tt}:{A.XF+8*b+4*tt+3}]"
                m.append(f"v_mfma_f32_32x32x16_bf16 v[{acc}:{acc+15}], {w}, {x}, {c}" if role == 0 else f"v_mfma_f32_32x32x16_bf16 v[{acc}:{acc+15}], {x}, {w}, {c}")
        if k < 4:
            sel = A.SEL if k < 2 else A.SEL2
            for be in range(nsm):
                c = "0" if k == 0 else f"v[{A.CS+4*be}:{A.CS+4*be+3}]"
                m.append(f"v_mfma_f32_16x16x32_bf16 v[{A.CS+4*be}:{A.CS+4*be+3}], v[{A.WF+8*b+4*be}:{A.WF+8*b+4*be+3}], v[{sel}:{sel+3}], {c}")
        return m
    p("s_waitcnt lgkmcnt(0)")
    stamp(p, "A:pre0")
    p("s_barrier")
    stamp(p, "A:post0")
    for r in reads(0) + reads(1): p(r)
    for k in range(32):
        m = mfmas(k)
        bar = (k + 2) % 4 == 0 and k + 2 < 32
        p(f"s_waitcnt lgkmcnt({0 if (bar or k >= 30) else 6})")
        if k in (4, 8, 16, 24): stamp(p, f"A:k{k}")
        p(m[0])
        if k == int(OPT.get("mwk", -1)): mall_warm(p, A.PF)
        if k == int(OPT.get("wbk", 4)) and not OPT.get("ntWB"): wb_touch(p, A.PF)
        if OPT.get("w2ks"):
            ks = [int(x) for x in OPT["w2ks"].split(",")]
            if k in ks: w2_touch_piece(p, A.PF, ks.index(k), len(ks))
        elif OPT.get("w2split"):
            if k == int(OPT.get("w2k", 28)): w2_touch_split(p, A.PF, 0)
        elif k == int(OPT.get("w2k", 16)) and not OPT.get("ntW2") and not OPT.get("w2ch"): w2_touch(p, A.PF)
        if k == 5:
            p(f"v_and_b32 v2, 15, v1\nv_lshrrev_b32 v3, 4, v1\nv_cmp_gt_u32 vcc, 2, v2")
            p(f"v_lshlrev_b32 v2, 6, v2\nv_lshlrev_b32 v3, 4, v3\nv_add_u32 v2, v2, v3")
            if role == 0: p(f"s_lshl_b32 s{sT0}, s{sW4}, 7")
            else:         p(f"s_lshr_b32 s{sT0}, s{sW4}, 1\ns_lshl_b32 s{sT0}, s{sT0}, 7")
            p(f"s_add_u32 s{sT0}, s{sT0}, {L_CSPL}\nv_add_u32 v2, s{sT0}, v2")
            p(f"s_and_saveexec_b64 s[{sTMP}:{sTMP+1}], vcc")
            for be in range(nsm):
                p(f"ds_write_b128 v2, v[{A.CS+4*be}:{A.CS+4*be+3}] offset:{be*256}")
            p(f"s_mov_b64 exec, s[{sTMP}:{sTMP+1}]")
        if k + 2 < 32:
            if bar: p("s_barrier")
            rr = reads(k + 2)
            rest = m[1:]
            ri = 0
            for mm in rest:
                for _ in range(2):
                    if ri < len(rr): p(rr[ri]); ri += 1
                p(mm)
            while ri < len(rr): p(rr[ri]); ri += 1
        else:
            for mm in m[1:]: p(mm)

def A_epi_F(p, fill):
    p("L_Aepi0:")
    A = AR; E = A.E
    E = 80
    RS, NMR, CSV, T, OUT, VA = E, E+2, E+4, E+36, E+52, E+60
    stamp(p, "A:pre8")
    p("s_barrier")
    stamp(p, "A:post8")
    p(f"s_and_b32 s{sT0}, s{sW4}, 1\ns_lshr_b32 s{sT1}, s{sW4}, 1")
    p(f"v_and_b32 v2, 31, v1\nv_lshlrev_b32 v2, 2, v2\ns_lshl_b32 s{sT2}, s{sT0}, 8\ns_add_u32 s{sT2}, s{sT2}, {L_RS}\nv_add_u32 v2, s{sT2}, v2")
    for tt in range(2):
        p(f"ds_read_b32 v{RS+tt}, v2 offset:{tt*128}\nds_read_b32 v{NMR+tt}, v2 offset:{512+tt*128}")
    p(f"v_lshrrev_b32 v3, 5, v1\nv_lshlrev_b32 v3, 4, v3\ns_lshl_b32 s{sT2}, s{sT1}, 8\ns_add_u32 s{sT2}, s{sT2}, {L_CSA}\nv_add_u32 v3, s{sT2}, v3")
    p(f"s_lshl_b32 s{sT2}, s{sT0}, 7\nv_xor_b32 v{VA}, s{sT2}, v3\nv_xor_b32 v{VA+1}, 128, v{VA}")
    for be in range(2):
        for q in range(4):
            p(f"ds_read_b128 v[{CSV+16*be+4*q}:{CSV+16*be+4*q+3}], v{VA+be} offset:{q*32}")
    p(f"v_lshlrev_b32 v{VA+2}, 4, v1")
    p(f"s_lshl_b32 s{sT2}, s{sI}, 2\ns_lshl_b32 s{sT3}, s{sT0}, 1\ns_add_u32 s{sT2}, s{sT2}, s{sT3}\ns_mul_i32 s{sT2}, s{sT2}, 112")
    p(f"s_lshr_b32 s{sT3}, s{sCOLA}, 4\ns_lshl_b32 s{sT4}, s{sT1}, 2\ns_add_u32 s{sT3}, s{sT3}, s{sT4}\ns_add_u32 s{sT2}, s{sT2}, s{sT3}")
    p(f"s_lshl_b32 s{sHB}, s{sT2}, 10\ns_add_u32 s{sHB}, s{sHB}, {WS_H}")
    p(f"s_lshl_b32 s{sT5}, s{sT0}, 11\ns_add_u32 s{sTMP}, s{sHB}, s{sT5}\ns_xor_b32 s{sT5}, s{sT5}, 2048\ns_add_u32 s{sTMP+1}, s{sHB}, s{sT5}")
    p("s_waitcnt lgkmcnt(0)")
    stamp(p, "A:epi_start")
    def fa_addr(base):
        return (f"s_lshl_b32 s{sT2}, s{sI}, 1\ns_and_b32 s{sT3}, s{sW4}, 1\ns_add_u32 s{sT2}, s{sT2}, s{sT3}\ns_lshl_b32 s{sT2}, s{sT2}, 7\n"
                f"s_lshl_b32 s{sT3}, s{sJ}, 1\ns_lshr_b32 s{sT4}, s{sW4}, 1\ns_add_u32 s{sT3}, s{sT3}, s{sT4}\ns_lshl_b32 s{sT3}, s{sT3}, 2\n"
                f"s_add_u32 s{sT0}, s{sT2}, s{sT3}\ns_add_u32 s{sT0}, s{sT0}, {base}")
    ch = 0
    nops_after4 = 0
    for be in range(2):
        for qp in range(2):
            for tt in range(2):
                acc = A.ACC + 32*tt + 16*be + 8*qp
                o = OUT + 4*(ch & 1)
                silu_chunk(p, acc, CSV + 16*be + 8*qp, RS+tt, NMR+tt, T, o)
                if ch in (1, 3, 5, 7): stamp(p, f"A:ch{ch}")
                if ch == 6:
                    p(f"s_waitcnt vmcnt({nops_after4})")
                    store_flag(p, fa_addr(WS_FA))
                    stamp(p, "A:FA1set")
                p(f"s_add_u32 s{sT2}, s{sTMP+be}, {tt*112*1024 + qp*1024}")
                p(f"buffer_store_dwordx4 v[{o}:{o+3}], v{VA+2}, s[{S_WS}:{S_WS+3}], s{sT2} offen sc1")
                if ch >= 4: nops_after4 += 1
                if OPT.get("w2ch") and ch == int(OPT["w2ch"]):
                    w2_touch(p, A.PF)
                    if ch >= 3: nops_after4 += 2
                fi = ch - (8 - len(fill) - 1)
                if fill and 0 <= fi < len(fill) and ch < 7:
                    p(fill[fi])
                    if ch >= 3: nops_after4 += 2
                ch += 1
                pass
    p(fa_addr(WS_FA2))
    p(f"s_mov_b32 s{sHB}, s{sT0}")

def A_epi_Q(p, fill):
    p("L_Aepi1:")
    A = AR; E = A.E
    ST = E; CSK, CSVv = E+32, E+33; T = E+34; PK = E+42; VV = E+58; Z = E+74; D2 = E+76; VA = E+92
    stamp(p, "A:pre8")
    p("s_barrier")
    stamp(p, "A:post8")
    p(f"s_and_b32 s{sT0}, s{sW4}, 1\ns_lshr_b32 s{sT1}, s{sW4}, 1")
    p(f"v_and_b32 v2, 31, v1\nv_lshlrev_b32 v2, 2, v2\ns_lshl_b32 s{sT2}, s{sT1}, 7\ns_add_u32 s{sT2}, s{sT2}, {L_CSA}\nv_add_u32 v2, s{sT2}, v2")
    p(f"ds_read_b32 v{CSK}, v2\nds_read_b32 v{CSVv}, v2 offset:256")
    p(f"v_lshrrev_b32 v3, 5, v1\nv_lshlrev_b32 v3, 4, v3\ns_lshl_b32 s{sT2}, s{sT0}, 8\ns_add_u32 s{sT2}, s{sT2}, {L_RS}\nv_add_u32 v{VA}, s{sT2}, v3")
    p(f"v_mov_b32 v{Z}, 0")
    def streads(g):
        tt, hf = g >> 1, g & 1
        b = ST + 16*(g & 1)
        for q2 in range(2):
            off = (32*tt + 8*(2*hf+q2)) * 4
            p(f"ds_read_b128 v[{b+4*q2}:{b+4*q2+3}], v{VA} offset:{off}\nds_read_b128 v[{b+8+4*q2}:{b+8+4*q2+3}], v{VA} offset:{off+512}")
    streads(0)
    nf = 0
    for g in range(4):
        tt, hf = g >> 1, g & 1
        if g < 3: streads(g + 1); p("s_waitcnt lgkmcnt(4)")
        else: p("s_waitcnt lgkmcnt(0)")
        RSV = ST + 16*(g & 1); NMV = RSV + 8
        k = A.ACC + 32*tt + 8*hf; v = A.ACC + 32*tt + 16 + 8*hf
        for e in range(8): p(f"v_mul_f32 v{T+e}, v{NMV+e}, v{CSVv}")
        for e in range(8): p(f"v_fma_f32 v{v+e}, v{v+e}, v{RSV+e}, v{T+e}")
        for e in range(4): p(f"v_cvt_pk_bf16_f32 v{VV+8*tt+4*hf+e}, v{v+2*e}, v{v+2*e+1}")
        if nf < len(fill): p(fill[nf]); nf += 1
        if OPT.get("w2ch") and g == min(3, int(OPT["w2ch"]) // 2): w2_touch(p, A.PF)
        for e in range(8): p(f"v_mul_f32 v{T+e}, v{NMV+e}, v{CSK}")
        for e in range(8): p(f"v_fma_f32 v{k+e}, v{k+e}, v{RSV+e}, v{T+e}")
        phi_elems(p, k, 8, T)
        for e in range(8): p(f"v_add_f32 v{Z}, v{Z}, v{k+e}")
        for e in range(4): p(f"v_cvt_pk_bf16_f32 v{PK+8*tt+4*hf+e}, v{k+2*e}, v{k+2*e+1}")
        c = "0" if g == 0 else f"v[{D2}:{D2+15}]"
        p(f"v_mfma_f32_32x32x16_bf16 v[{D2}:{D2+15}], v[{PK+8*tt+4*hf}:{PK+8*tt+4*hf+3}], v[{VV+8*tt+4*hf}:{VV+8*tt+4*hf+3}], {c}")
        if nf < len(fill): p(fill[nf]); nf += 1
        pass
    p(f"v_mov_b32 v{T}, v{Z}")
    p(f"v_permlane32_swap_b32 v{T}, v{Z}")
    p(f"v_add_f32 v{Z}, v{Z}, v{T}")
    p(f"s_mov_b32 s{sMASKH}, 0xffff0000\ns_mov_b32 s{sMASKH+1}, 0xffff0000")
    for r in range(8): p(f"v_cndmask_b32 v{T+r}, v{D2+r}, v{D2+8+r}, s[{sMASKH}:{sMASKH+1}]")
    p(f"s_lshl_b32 s{sT2}, s{sJ}, 1\ns_lshr_b32 s{sT1}, s{sW4}, 1\ns_add_u32 s{sZ}, s{sT2}, s{sT1}\ns_lshl_b32 s{sT2}, s{sZ}, 12\ns_add_u32 s{sHB}, s{sT2}, {WS_KVZ}")
    p(f"v_lshlrev_b32 v{VA+1}, 2, v1")
    for r in range(8):
        p(f"buffer_atomic_add_f32 v{T+r}, v{VA+1}, s[{S_WS}:{S_WS+3}], s{sHB} offen offset:{r*256}")
    p(f"v_lshrrev_b32 v2, 3, v1\nv_and_b32 v2, 1, v2\nv_lshlrev_b32 v2, 2, v2\nv_and_b32 v3, 3, v1\nv_add_u32 v2, v2, v3\nv_lshlrev_b32 v2, 8, v2")
    p(f"v_lshrrev_b32 v3, 4, v1\nv_and_b32 v3, 1, v3\nv_lshlrev_b32 v3, 1, v3\nv_lshrrev_b32 v4, 2, v1\nv_and_b32 v4, 1, v4\nv_add_u32 v3, v3, v4\nv_lshlrev_b32 v3, 2, v3")
    p(f"v_add_u32 v2, v2, v3")
    p(f"s_mov_b32 exec_hi, 0")
    p(f"buffer_atomic_add_f32 v{Z}, v2, s[{S_WS}:{S_WS+3}], s{sHB} offen offset:2048")
    p(f"s_mov_b32 exec_hi, -1")
    while nf < len(fill): p(fill[nf]); nf += 1
    p(f"s_lshl_b32 s{sT0}, s{sZ}, 7\ns_add_u32 s{sT0}, s{sT0}, {WS_C2}\nv_mov_b32 v2, 0\nv_mov_b32 v3, 1")
    p("s_waitcnt vmcnt(0)")
    p(f"s_mov_b64 exec, 1\nbuffer_atomic_add v3, v2, s[{S_WS}:{S_WS+3}], s{sT0} offen sc1\ns_mov_b64 exec, -1")

class P2:
    ACCF = 16; ACCS = 80; AF = 144; BF = 200
    T = 216; XR = 240; VL16 = 250; VW2 = 251; VBR = 252; VX = 254; VW2B = 249; VBR2 = 236; VTMPB = 248
DA = DB = 6; NA = 7; NST = 36
L_REDF = 0; L_REDS = 49152

def p2_setup(p):
    P = P2
    p(f"s_and_b32 s{sT0}, s2, 7\ns_lshr_b32 s{sT1}, s2, 3")
    if OPT.get("map2", "512x256") == "512x256":
        p(f"s_lshr_b32 s{sT2}, s{sT0}, 1\ns_lshl_b32 s{sT2}, s{sT2}, 3\ns_and_b32 s{sT3}, s{sT1}, 7\ns_add_u32 s{sT2i}, s{sT2}, s{sT3}")
        p(f"s_and_b32 s{sT2}, s{sT0}, 1\ns_lshl_b32 s{sT2}, s{sT2}, 2\ns_lshr_b32 s{sT3}, s{sT1}, 3\ns_add_u32 s{sC}, s{sT2}, s{sT3}")
    else:
        p(f"s_lshl_b32 s{sT2}, s{sT0}, 2\ns_and_b32 s{sT3}, s{sT1}, 3\ns_add_u32 s{sT2i}, s{sT2}, s{sT3}\ns_lshr_b32 s{sC}, s{sT1}, 2")
    p(f"s_lshr_b32 s{sT0}, s{sW4}, 1\ns_lshl_b32 s{sT1}, s{sT2i}, 1")
    p(f"s_add_u32 s{sT2}, s{sT1}, s{sT0}\ns_xor_b32 s{sT3}, s{sT2}, 1")
    p(f"s_mul_i32 s{sT4}, s{sW4}, 28")
    for (d, src) in ((sAH, sT2), (sAH1, sT3)):
        p(f"s_mul_i32 s{sT5}, s{src}, 112\ns_add_u32 s{sT5}, s{sT5}, s{sT4}\ns_lshl_b32 s{sT5}, s{sT5}, 10\ns_add_u32 s{d}, s{sT5}, {WS_H}")
    p(f"s_lshl_b32 s{sT4}, s{sW4}, 3")
    for (d, src) in ((sAO, sT2), (sAO1, sT3)):
        p(f"s_lshl_b32 s{sT5}, s{src}, 5\ns_add_u32 s{sT5}, s{sT5}, s{sT4}\ns_lshl_b32 s{sT5}, s{sT5}, 10\ns_add_u32 s{d}, s{sT5}, {WS_O}")
    p(f"s_lshl_b32 s{sT0}, s{sC}, 7\ns_mul_i32 s{sT1}, s{sW4}, {28*16*1024}\ns_add_u32 s{sBW}, s{sT0}, s{sT1}")
    p(f"s_lshl_b32 s{sT1}, s{sW4}, 17\ns_add_u32 s{sBO}, s{sT0}, s{sT1}")
    p(f"s_mul_i32 s{sLB}, s{sW4}, {NS*2048}\ns_add_u32 s{sLB}, s{sLB}, {L_P2}")
    p(f"v_lshlrev_b32 v{P.VL16}, 4, v1")
    p(f"v_lshrrev_b32 v2, 3, v1\nv_lshlrev_b32 v2, 10, v2\nv_and_b32 v3, 7, v1\nv_lshrrev_b32 v4, 4, v1\nv_and_b32 v4, 1, v4\nv_lshlrev_b32 v4, 2, v4\nv_xor_b32 v3, v3, v4\nv_lshlrev_b32 v3, 4, v3\nv_add_u32 v{P.VW2}, v2, v3\nv_add_u32 v{P.VW2B}, 7168, v{P.VW2}")
    p(f"v_lshrrev_b32 v2, 5, v1\nv_lshlrev_b32 v2, 2, v2\nv_and_b32 v3, 15, v1\nv_lshrrev_b32 v4, 2, v3\nv_add_u32 v2, v2, v4\nv_lshlrev_b32 v2, 7, v2")
    p(f"v_lshrrev_b32 v4, 3, v3\nv_lshlrev_b32 v4, 6, v4\nv_add_u32 v2, v2, v4")
    p(f"v_lshrrev_b32 v4, 4, v1\nv_and_b32 v4, 1, v4\nv_lshlrev_b32 v4, 5, v4\nv_add_u32 v2, v2, v4\nv_and_b32 v4, 3, v3\nv_lshlrev_b32 v4, 3, v4\nv_add_u32 v2, v2, v4")
    p(f"s_and_b32 s{sT0}, s{sW4}, 1\ns_lshl_b32 s{sT0}, s{sT0}, 6\nv_xor_b32 v2, s{sT0}, v2\nv_add_u32 v{P.VBR}, s{sLB}, v2\nv_xor_b32 v{P.VBR+1}, 64, v{P.VBR}")
    p(f"s_mul_i32 s{sLB2}, s{sW4}, {NDEEP*2048}")
    p(f"v_mov_b32 v{P.VTMPB}, v2")
    p(f"s_and_b32 s{sBB2}, s{sT2i}, 1\ns_lshl_b32 s{sBB2}, s{sBB2}, 1")
    p(f"s_and_b32 s{sROTH}, s{sC}, 3")
    p(calc_p0(0)); p(calc_rb(0)); p(calc_ra(0))
    p(f"v_and_b32 v2, 31, v1\nv_lshlrev_b32 v2, 10, v2\nv_lshrrev_b32 v3, 5, v1\nv_lshlrev_b32 v3, 4, v3\nv_add_u32 v{P.VX}, v2, v3")

def xres_soff():
    return (f"s_lshl_b32 s{sT0}, s{sT2i}, 6\ns_lshr_b32 s{sT1}, s{sW4}, 1\ns_lshl_b32 s{sT1}, s{sT1}, 5\ns_add_u32 s{sT0}, s{sT0}, s{sT1}\ns_lshl_b32 s{sT0}, s{sT0}, 10\n"
            f"s_lshl_b32 s{sT1}, s{sC}, 7\ns_add_u32 s{sT0}, s{sT0}, s{sT1}\ns_and_b32 s{sT1}, s{sW4}, 1\ns_lshl_b32 s{sT1}, s{sT1}, 6\ns_add_u32 s{sT0}, s{sT0}, s{sT1}")
def xres_load():
    P = P2
    return xres_soff() + "\n" + "\n".join(f"buffer_load_dwordx4 v[{P.XR+4*qp}:{P.XR+4*qp+3}], v{P.VX}, s[{S_X}:{S_X+3}], s{sT0} offen offset:{qp*32}" for qp in range(2))

PARTS = [(0, 8, 2), (8, 8, 2), (16, 12, 3), (28, 8, 2)]
def step_info(n):
    for pi, (f, cnt, sb) in enumerate(PARTS):
        if f <= n < f + cnt: return pi, (n - f) // sb, (n - f) % sb
sRA = 46
sRB = 73
RBREG = [73, 74, 75, 97]
sP0L = [58, 59, 60, 61]
sP0S = [76, 77, 78, 79]
def P0regs(part): return sP0S if part == 0 else sP0L
def calc_p0(part):
    o = []
    sP0 = P0regs(part)
    for u in range(4):
        d = sP0[u]
        o.append(f"s_add_u32 s{d}, s{sROTH}, {u}\ns_and_b32 s{d}, s{d}, 3" if OPT.get("rot") else f"s_mov_b32 s{d}, {u}")
        if part < 2:
            x = f"s_mov_b32 s{sT4}, s{sBB2}" if part == 0 else f"s_xor_b32 s{sT4}, s{sBB2}, 2"
            o.append(f"s_and_b32 s{sT3}, s{d}, 1\ns_lshl_b32 s{sT3}, s{sT3}, 2\ns_and_b32 s{d}, s{d}, 2\ns_mul_i32 s{d}, s{d}, 10\ns_add_u32 s{d}, s{d}, s{sT3}\n{x}\ns_add_u32 s{d}, s{d}, s{sT4}")
        elif part == 2:
            o.append(f"s_mul_i32 s{d}, s{d}, 3\ns_add_u32 s{d}, s{d}, 8")
        else:
            o.append(f"s_lshl_b32 s{d}, s{d}, 1")
    return "\n".join(o)
def calc_rb(part):
    base = sBO if part == 3 else sBW
    sP0 = P0regs(part)
    return "\n".join(f"s_lshl_b32 s{RBREG[u]}, s{sP0[u]}, 14\ns_add_u32 s{RBREG[u]}, s{RBREG[u]}, s{base}" for u in range(4))
def calc_ra(part):
    base = sAO if part == 3 else sAH
    sP0 = P0regs(part)
    o = []
    for u in range(4):
        o.append(f"s_lshl_b32 s{sT3}, s{sP0[u]}, 10\ns_add_u32 s{sRA+2*u}, s{sT3}, s{base}\ns_add_u32 s{sRA+2*u+1}, s{sT3}, s{base+1}")
    return "\n".join(o)
sROTH = 98
sLB2 = 96
NDEEP = 0
def b_slot(n):
    if NDEEP == 0: return sLB, (n % NS) * 2048
    if n < NS: return sLB, n * 2048
    if n < NS + NDEEP: return sLB2, (n - NS) * 2048
    return sLB, ((n - NS - NDEEP) % NS) * 2048
def fB(n, split=False):
    P = P2
    sb, so = b_slot(n)
    part, u, e = step_info(n)
    srd_ = S_WO if part == 3 else S_W2
    pre = ""
    if u == 0 and e == 0 and part > 0: pre = calc_p0(part) + "\n" + calc_rb(part) + "\n"
    if e == 0: soff = f"s{RBREG[u]}"; add = ""
    else: soff = f"s{sT0}"; add = f"s_add_u32 s{sT0}, s{RBREG[u]}, {e*16384}\n"
    a = f"{pre}s_add_u32 m0, s{sb}, {so}\n{add}buffer_load_dwordx4 v{P.VW2}, s[{srd_}:{srd_+3}], {soff} offen lds"
    b = f"buffer_load_dwordx4 v{P.VW2B}, s[{srd_}:{srd_+3}], {soff} offen offset:1024 lds"
    return (a, b) if split else a + "\n" + b

def fA(n, split=False):
    P = P2
    buf = P.AF + 8 * (n % NA)
    part, u, e = step_info(n)
    out = []
    for tau in range(2):
        pre = (calc_ra(part) + "\n") if (u == 0 and e == 0 and part > 0 and tau == 0) else ""
        out.append(f"{pre}buffer_load_dwordx4 v[{buf+4*tau}:{buf+4*tau+3}], v{P.VL16}, s[{S_WS}:{S_WS+3}], s{sRA+2*u+tau} offen offset:{e*1024} sc1")
    return out if split else "\n".join(out)

def p2_reads(n):
    P = P2
    sb, so = b_slot(n); buf = P.BF + 8 * (n & 1)
    vb = P.VBR if sb == sLB else P.VBR2
    return [f"ds_read_b64_tr_b16 v[{buf+4*be+2*u}:{buf+4*be+2*u+1}], v{vb+be} offset:{so + u*1024}" for be in range(2) for u in range(2)]

def f_mfmas(n):
    P = P2
    acc0 = P.ACCF if n < 28 else P.ACCS
    first = n in (0, 28)
    a = P.AF + 8 * (n % NA); b = P.BF + 8 * (n & 1)
    m = []
    for tau in range(2):
        for be in range(2):
            acc = acc0 + 16 * (2*tau + be)
            c = "0" if first else f"v[{acc}:{acc+15}]"
            m.append(f"v_mfma_f32_32x32x16_bf16 v[{acc}:{acc+15}], v[{b+4*be}:{b+4*be+3}], v[{a+4*tau}:{a+4*tau+3}], {c}")
    return m

def fa1_issue(p):
    p(f"s_lshl_b32 s{sT3}, s{sT2i}, 7\ns_lshl_b32 s{sT4}, s{sW4}, 4\ns_add_u32 s{sT3}, s{sT3}, s{sT4}\ns_add_u32 s{sT3}, s{sT3}, {WS_FA}")
    p(f"s_add_u32 s94, s{sWSP}, s{sT3}\ns_addc_u32 s95, s{sWSP+1}, 0")
    p(f"s_load_dwordx4 s[96:99], s[94:95], 0 glc")

def fa1_check(p):
    L = newlbl("L_f1")
    p(f"s_mov_b32 s3, 0\n{L}:\ns_waitcnt lgkmcnt(0)")
    for q in range(4): p(f"s_xor_b32 s{96+q}, s{96+q}, s{sNONCE}")
    p(f"s_or_b32 s96, s96, s97\ns_or_b32 s98, s98, s99\ns_or_b32 s96, s96, s98\ns_cmp_eq_u32 s96, 0\ns_cbranch_scc1 {L}x")
    p(f"s_add_u32 s3, s3, 1\ns_cmp_gt_u32 s3, {SPIN}\ns_cbranch_scc1 {L}x")
    p(f"s_load_dwordx4 s[96:99], s[94:95], 0 glc\ns_branch {L}\n{L}x:")

def relay_poll(p, base, kind, wave):
    L = newlbl("L_rp")
    p(f"s_cmp_lg_u32 s{sW4}, {wave}\ns_cbranch_scc1 {L}e")
    p(f"s_lshl_b32 s{sT3}, s{sT2i}, 7\ns_add_u32 s{sT3}, s{sT3}, {base}\ns_add_u32 s94, s{sWSP}, s{sT3}\ns_addc_u32 s95, s{sWSP+1}, 0")
    p(f"s_mov_b32 s3, 0\n{L}:\ns_load_dwordx16 s[76:91], s[94:95], 0 glc\ns_waitcnt lgkmcnt(0)")
    for q in range(16): p(f"s_xor_b32 s{76+q}, s{76+q}, s{sNONCE}")
    for st in (8, 4, 2, 1):
        for q in range(st): p(f"s_or_b32 s{76+q}, s{76+q}, s{76+q+st}")
    p(f"s_cmp_eq_u32 s76, 0\ns_cbranch_scc1 {L}x\ns_sleep 2\ns_add_u32 s3, s3, 1\ns_cmp_gt_u32 s3, {SPIN}\ns_cbranch_scc0 {L}\n{L}x:")
    p(f"v_mov_b32 v2, {L_LF + 4*kind}\nv_mov_b32 v3, 1\nds_write_b32 v2, v3\n{L}e:")

def relay_check(p, kind, vreg):
    L = newlbl("L_rc")
    p(f"v_readfirstlane_b32 s{sT3}, v{vreg}\ns_cmp_lg_u32 s{sT3}, 0\ns_cbranch_scc1 {L}x")
    p(f"s_mov_b32 s3, 0\nv_mov_b32 v2, {L_LF + 4*kind}\n{L}:\nds_read_b32 v3, v2\ns_waitcnt lgkmcnt(0)\nv_readfirstlane_b32 s{sT3}, v3\ns_cmp_lg_u32 s{sT3}, 0\ns_cbranch_scc1 {L}x")
    p(f"s_sleep 1\ns_add_u32 s3, s3, 1\ns_cmp_gt_u32 s3, {SPIN*8}\ns_cbranch_scc0 {L}\n{L}x:")

def lds_cnt_wait(p, addr, n):
    L = newlbl("L_cw")
    p(f"v_mov_b32 v2, {addr}\ns_mov_b32 s3, 0\n{L}:\nds_read_b32 v3, v2\ns_waitcnt lgkmcnt(0)\nv_readfirstlane_b32 s{sT3}, v3\ns_cmp_ge_u32 s{sT3}, {n}\ns_cbranch_scc1 {L}x")
    p(f"s_sleep 1\ns_add_u32 s3, s3, 1\ns_cmp_gt_u32 s3, {SPIN*8}\ns_cbranch_scc0 {L}\n{L}x:")

def lds_cnt_inc_nowait(p, addr):
    p(f"v_mov_b32 v2, {addr}\nv_mov_b32 v3, 1\ns_mov_b64 exec, 1\nds_add_u32 v2, v3\ns_mov_b64 exec, -1")

def lds_cnt_inc(p, addr):
    p(f"v_mov_b32 v2, {addr}\nv_mov_b32 v3, 1\ns_waitcnt lgkmcnt(0)\ns_mov_b64 exec, 1\nds_add_u32 v2, v3\ns_mov_b64 exec, -1")

def red_write(p, acc0, base):
    P = P2
    for dl in range(1, 4):
        p(f"s_xor_b32 s{sT0}, s{sW4}, {dl}\ns_mul_i32 s{sT0}, s{sT0}, 12288\ns_add_u32 s{sT0}, s{sT0}, {base + (dl-1)*4096}")
        p(f"v_add_u32 v{P.T+dl}, s{sT0}, v{P.VL16}")
        for q in range(4):
            r = acc0 + 16*dl + 4*q
            p(f"ds_write_b128 v{P.T+dl}, v[{r}:{r+3}] offset:{q*1024}")

def red_read(p, base, T):
    P = P2
    p(f"s_mul_i32 s{sT0}, s{sW4}, 12288\ns_add_u32 s{sT0}, s{sT0}, {base}\nv_add_u32 v{P.T}, s{sT0}, v{P.VL16}")
    for sl in range(3):
        for q in range(4):
            p(f"ds_read_b128 v[{T+16*sl+4*q}:{T+16*sl+4*q+3}], v{P.T} offset:{sl*4096 + q*1024}")

VLF = 239
VTD = 238
def h_touch(p, kind):
    nq = 2 if kind != 2 else 3
    p(f"s_and_b32 s{sT0}, s{sC}, 3")
    if kind < 3:
        p(f"s_mul_i32 s{sT0}, s{sT0}, 28\ns_lshl_b32 s{sT1}, s{sT2i}, 1\ns_mul_i32 s{sT1}, s{sT1}, 112\ns_add_u32 s{sT0}, s{sT0}, s{sT1}\ns_lshl_b32 s{sT0}, s{sT0}, 10\ns_add_u32 s{sT0}, s{sT0}, {WS_H}")
        tile_stride = 112 * 1024
    else:
        p(f"s_lshl_b32 s{sT0}, s{sT0}, 3\ns_lshl_b32 s{sT1}, s{sT2i}, 6\ns_add_u32 s{sT0}, s{sT0}, s{sT1}\ns_lshl_b32 s{sT0}, s{sT0}, 10\ns_add_u32 s{sT0}, s{sT0}, {WS_O}")
        tile_stride = 32 * 1024
    p(f"v_and_b32 v2, 7, v1\nv_lshlrev_b32 v2, 7, v2\nv_lshrrev_b32 v3, 3, v1\nv_and_b32 v3, 1, v3\ns_mov_b32 s{sT1}, {tile_stride}\nv_mul_lo_u32 v3, v3, s{sT1}\nv_add_u32 v2, v2, v3\nv_lshrrev_b32 v3, 4, v1")
    if kind in (0, 1):
        x = "" if kind == 0 else f"\ns_xor_b32 s{sT2}, s{sT2}, 2"
        p(f"s_lshr_b32 s{sT1}, s{sW4}, 1\ns_mul_i32 s{sT1}, s{sT1}, 20\ns_and_b32 s{sT2}, s{sW4}, 1\ns_lshl_b32 s{sT2}, s{sT2}, 2\ns_add_u32 s{sT1}, s{sT1}, s{sT2}\ns_mov_b32 s{sT2}, s{sBB2}{x}\ns_add_u32 s{sT1}, s{sT1}, s{sT2}")
    elif kind == 2:
        p(f"s_mul_i32 s{sT1}, s{sW4}, 3\ns_add_u32 s{sT1}, s{sT1}, 8")
    else:
        p(f"s_lshl_b32 s{sT1}, s{sW4}, 1")
    p(f"s_lshl_b32 s{sT1}, s{sT1}, 10\ns_add_u32 s{sT0}, s{sT0}, s{sT1}\nv_lshlrev_b32 v3, 10, v3\nv_add_u32 v2, v2, v3")
    mask = "0xffffffff" if nq == 2 else "0xffffffffffff"
    if nq == 2: p("s_mov_b32 exec_lo, -1\ns_mov_b32 exec_hi, 0")
    else:       p("s_mov_b32 exec_lo, -1\ns_mov_b32 exec_hi, 0xffff")
    p(f"buffer_load_dword v{VTD}, v2, s[{S_WS}:{S_WS+3}], s{sT0} offen sc1\ns_mov_b64 exec, -1")

def phase2(p):
    P = P2
    N = NST
    LEAD = int(OPT.get("lead", 3))
    touch = not OPT.get("notouch") and not OPT.get("ntH")
    ops = []
    BL = 6
    def wait_for(tag):
        last = max(i for i, t in enumerate(ops) if t == tag)
        return len(ops) - 1 - last
    def wait_both(n):
        w = wait_for(f"A{n}")
        if f"B{n}" in ops: w = min(w, wait_for(f"B{n}"))
        return w
    p("L_P2loop:")
    stamp(p, "P2:start")
    if OPT.get("w2split") == "100": w2_touch_split(p, 255, 1); ops += ["t", "t"]
    if OPT.get("nofillepi"):
        for n in range(DB): p(fB(n)); ops += [f"B{n}"] * 2
        p(xres_load()); ops += ["x"] * 2
    p(f"v_add_u32 v{P.VBR2}, s{sLB2}, v{P.VTMPB}\nv_xor_b32 v{P.VBR2+1}, 64, v{P.VBR2}")
    relay_poll(p, WS_FA, 0, 0)
    p(f"v_mov_b32 v2, {L_LF}\nds_read_b32 v{VLF}, v2\ns_waitcnt lgkmcnt(0)")
    relay_check(p, 0, VLF)
    stamp(p, "P2:FA1")
    if touch: h_touch(p, 0); ops += ["t"]
    for n in range(DA): p(fA(n)); ops += [f"A{n}"] * 2
    if NDEEP:
        lds_cnt_wait(p, L_CNT, 4)
        for n in range(DB, NS + NDEEP): p(fB(n)); ops += [f"B{n}"] * 2
        stamp(p, "P2:deep")
    p(f"s_waitcnt vmcnt({len(ops)})")
    L = newlbl("L_fa2")
    p(f"s_cmp_lg_u32 s{sROLE}, 0\ns_cbranch_scc1 {L}")
    store_flag(p, f"s_mov_b32 s{sT0}, s{sHB}")
    p(f"{L}:")
    stamp(p, "P2:drain")
    p(f"s_waitcnt vmcnt({wait_both(0)})")
    for r in p2_reads(0): p(r)
    parts = {8: (1, WS_FA2, 1, 1), 16: (2, WS_FB, 2, 2), 28: (3, WS_FO, 3, 3)}
    chk_at = {}; poll_at = {}
    for nn, v in parts.items():
        c = max(0, nn - DA - LEAD); chk_at[c] = v; poll_at[max(0, c - 2)] = v
    for n in range(N):
        m = f_mfmas(n)
        if n > 0: p(f"s_waitcnt vmcnt({wait_for(f'A{n}')}) lgkmcnt(0)")
        else:     p("s_waitcnt lgkmcnt(0)")
        if n in (0, 4, 8, 12, 16, 20, 24, 28, 32, 35): stamp(p, f"P2:n{n}")
        p(m[0])
        if n + 1 < N:
            if f"B{n+1}" in ops and wait_for(f"B{n+1}") < wait_for(f"A{n}"):
                p(f"s_waitcnt vmcnt({wait_for(f'B{n+1}')})")
            for r in p2_reads(n + 1): p(r)
            if (n + 1) in chk_at and (n + 1) not in poll_at:
                p(f"v_mov_b32 v2, {L_LF + 4*chk_at[n+1][0]}\nds_read_b32 v{VLF}, v2")
        if OPT.get("w2split") and n == int(OPT["w2split"]) - 1:
            w2_touch_split(p, 255, 1); ops += ["t", "t"]
        if n in poll_at:
            kind, fl, wv, tk = poll_at[n]; relay_poll(p, fl, kind, wv)
        if n in chk_at:
            kind, fl, wv, tk = chk_at[n]
            if n in poll_at or n == 0:
                p(f"v_mov_b32 v2, {L_LF + 4*kind}\nds_read_b32 v{VLF}, v2\ns_waitcnt lgkmcnt(0)")
            stamp(p, f"P2:pre{kind}"); relay_check(p, kind, VLF); stamp(p, f"P2:chk{kind}")
            if touch: h_touch(p, tk); ops += ["t"]
        vm = []
        nb_ = (n + BL) if NDEEP else (n + DB)
        lo = (NS + NDEEP) if NDEEP else DB
        if lo <= nb_ < N:
            a_, b_ = fB(nb_, True); vm += [a_, b_]; ops += [f"B{nb_}"] * 2
        if n + DA < N:
            vm += fA(n + DA, True); ops += [f"A{n+DA}"] * 2
        rest = m[1:]
        for i_ in range(max(len(vm), len(rest))):
            if i_ < len(vm): p(vm[i_])
            if i_ < len(rest): p(rest[i_])
        if n == 28:
            lds_cnt_wait(p, L_CNT, 4)
            red_write(p, P.ACCF, L_REDF)
            lds_cnt_inc(p, L_CF)
        if n == 32:
            lds_cnt_wait(p, L_CF, 4)
            red_read(p, L_REDF, P.ACCF + 16)
        if n == 33:
            a = P.ACCF
            for sl in range(3):
                for e in range(16): p(f"v_add_f32 v{a+e}, v{a+e}, v{a+16+16*sl+e}")
            TT = a + 16
            for e in range(16): p(f"v_exp_f32 v{TT+e}, -v{a+e}")
            for e in range(16): p(f"v_add_f32 v{TT+e}, 1.0, v{TT+e}")
            for e in range(16): p(f"v_rcp_f32 v{TT+e}, v{TT+e}")
            for e in range(16): p(f"v_mul_f32 v{a+e}, v{a+e}, v{TT+e}")

def final_epilogue(p):
    p("L_FINAL:")
    P = P2
    stamp(p, "F:start")
    red_write(p, P.ACCS, L_REDS)
    lds_cnt_inc(p, L_CS2)
    stamp(p, "F:written")
    TT = P.AF
    for qp in range(2):
        x = P.XR + 4*qp
        p(f"v_permlane32_swap_b32 v{x}, v{x+2}\nv_permlane32_swap_b32 v{x+1}, v{x+3}")
    XU = P.AF + 48
    lds_cnt_wait(p, L_CS2, 4)
    stamp(p, "F:sync")
    red_read(p, L_REDS, TT)
    a = P.ACCF; s = P.ACCS
    p(xres_soff())
    p(f"s_mov_b32 s{sT1}, {fhex(LN2*LN2)}")
    for sl in range(3):
        p(f"s_waitcnt lgkmcnt({8-4*sl})")
        for e in range(16): p(f"v_add_f32 v{s+e}, v{s+e}, v{TT+16*sl+e}")
    for e in range(16): p(f"v_mul_f32 v{a+e}, v{a+e}, v{s+e}")
    for qp in range(2):
        x = P.XR + 4*qp
        for d in range(4):
            e0 = 8*qp + 2*d
            t = TT + 2*d
            p(f"v_lshlrev_b32 v{t}, 16, v{x+d}\nv_and_b32 v{t+1}, 0xffff0000, v{x+d}")
        for d in range(4):
            e0 = 8*qp + 2*d
            t = TT + 2*d
            p(f"v_fma_f32 v{t}, v{a+e0}, s{sT1}, v{t}\nv_fma_f32 v{t+1}, v{a+e0+1}, s{sT1}, v{t+1}")
        for d in range(4):
            t = TT + 2*d
            p(f"v_cvt_pk_bf16_f32 v{x+d}, v{t}, v{t+1}")
        p(f"v_permlane32_swap_b32 v{x}, v{x+2}\nv_permlane32_swap_b32 v{x+1}, v{x+3}")
        p(f"buffer_store_dwordx4 v[{x}:{x+3}], v{P.VX}, s[{S_OUT}:{S_OUT+3}], s{sT0} offen offset:{qp*32}")

def fused():
    p = Prog()
    if STAMPS["on"]: p("s_memrealtime s[100:101]\ns_memtime s[96:97]")
    if OPT.get("dbgtime"): p("s_memrealtime s[100:101]\ns_memtime s[96:97]")
    prologue(p)
    if OPT.get("dbgtime"): p("s_mov_b32 s101, s96")
    if STAMPS["on"]: p(f"v_mov_b32 v{VSTAMP}, 0\nv_writelane_b32 v{VSTAMP}, s96, 0\nv_writelane_b32 v{VSTAMP}, s100, 62")
    p(f"s_cmp_ge_u32 s{sW8}, 4\ns_cbranch_scc0 L_A")
    p(f"s_cmp_eq_u32 s{sROLE}, 0\ns_cbranch_scc0 L_BQ")
    for role in (0, 1):
        if role == 1: p("L_BQ:")
        stamp_reset(1, f"B{role}")
        B_setup(p, role)
        ops = B_phaseA(p, role)
        B_phaseB(p, role, ops)
        if role == 0:
            B_epi_F(p)
        else:
            PQ = B_epi_Q(p); stamp(p, "B:epiQ"); o_stage(p, PQ)
        stamp(p, "B:end"); stamp_dump(p)
        p("s_endpgm")
        p(f"L_Bend{role}:")
    p("L_A:")
    prologue2(p)
    A_stats_issue(p)
    if OPT.get("smw"): smem_warm(p)
    zero_ctrl_(p)
    p2_setup(p)
    fill = [fB(n) for n in range(DB)] + [xres_load()]
    if OPT.get("nofillepi"): fill = []
    p(f"s_cmp_eq_u32 s{sROLE}, 0\ns_cbranch_scc0 L_AQ")
    stamp_reset(1, "A0")
    A_setup(p, 0); A_stats_compute(p); A_phaseA(p, 0); A_epi_F(p, fill)
    p("s_branch L_P2")
    p("L_AQ:")
    stamp_reset(1, "A1")
    A_setup(p, 1); A_stats_compute(p); A_phaseA(p, 1); A_epi_Q(p, fill)
    p("L_P2:")
    stamp_reset(30, "P2")
    phase2(p)
    final_epilogue(p)
    stamp(p, "F:end"); stamp_dump(p)
    if OPT.get("dbgtime"):
        p("s_memrealtime s[76:77]\ns_memtime s[78:79]\ns_waitcnt lgkmcnt(0)")
        p("s_sub_u32 s76, s76, s100\ns_sub_u32 s78, s78, s101")
        p(f"s_cmp_lg_u32 s{sW4}, 0\ns_cbranch_scc1 L_end\ns_and_b32 s3, s2, 127\ns_cmp_lg_u32 s3, 0\ns_cbranch_scc1 L_end")
        p("s_lshr_b32 s3, s2, 7\ns_lshl_b32 s3, s3, 3\nv_mov_b32 v2, s3\nv_mov_b32 v4, s76\nv_mov_b32 v5, s78\ns_mov_b64 exec, 1")
        p(f"buffer_store_dwordx2 v[4:5], v2, s[{S_DBG}:{S_DBG+3}], 0 offen sc1\ns_mov_b64 exec, -1")
    p("L_end:\ns_endpgm")
    p.fix_hazards()
    e = p.check_waits("fused2")
    return p

def B_phaseA_(p, role):
    B_phaseA(p, role)

def zero_ctrl_(p):
    zero_ctrl(p)

def build(path):
    hdr = open("cdna_kernels/" + NAME + ".s.ref").read().split("\n")
    top = [l for l in hdr if l.startswith(";") and "@launch" not in l and "Override" not in l and "grid=" not in l]
    kn = NAME + "_kernel"
    o = top + [f"; @launch grid=(256,1,1) block=(512,1,1) lds={LDS_BYTES}", '.amdgcn_target "amdgcn-amd-amdhsa--gfx950"\n.text', kernel_header(kn)]
    _lbl[0] = 0
    o.append(fused().text())
    o.append('.section .rodata,"a"\n.p2align 6')
    o.append(kernel_desc(kn, 256, 102, 256))
    open(path, "w").write("\n".join(o) + "\n")

if __name__ == "__main__":
    for a in sys.argv[2:]:
        if a == "diag": STAMPS["on"] = True
        elif "=" in a:
            k_, v_ = a.split("="); OPT[k_] = v_
    if "DA" in OPT: DA = int(OPT["DA"])
    if "deep" in OPT: NDEEP = int(OPT["deep"])
    build(sys.argv[1])
    if STAMPS["on"]:
        import json
        json.dump(STAMPS["names"], open(sys.argv[1] + ".names", "w"))
```

```python
import sys
from prog import *
import struct
def f2u(x): return struct.unpack("<I", struct.pack("<f", x))[0]
def fhex(x): return "0x%08x" % f2u(x)
LOG2E = 1.4426950408889634
LN2 = 0.6931471805599453

OPT = dict(nowarm=1, ntH=1, lead=1, DA=3, w2ch='1', plat=6, rot='', nofillepi=1, prioO='2', ld='4')

WS_FA, WS_FB, WS_FO = 0, 4096, 8192
WS_C2 = 12288
WS_FA2 = 16384 + 4096
WS_NONCE = 16384
WS_KVZ = 0x10000
WS_STG = 0x30000
WS_CSP = 0x40000
WS_H   = 0x100000
WS_O   = 0x900000
WS_SIZE = 0x1000000
WS_DIAG = 0xF00000

SLOT = 32768
L_P2 = 98304
NS = 7
L_MISC = L_P2 + 4 * NS * 2048
L_RS = L_MISC; L_NMR = L_MISC + 512
L_CSA = L_MISC + 1024
L_CSB = L_MISC + 1536
L_CNT = L_MISC + 2040
L_NONCE = L_MISC + 2032
L_LF = L_MISC + 2000
L_CF = L_MISC + 2016
L_CS2 = L_MISC + 2020
L_W1 = L_MISC + 2024
L_W2 = L_MISC + 2028
L_SPARE = L_MISC + 2048
L_KC = L_MISC + 2044
L_KVL = L_SPARE + 1024
L_CSPL = L_SPARE
LDS_BYTES = 163840
assert L_SPARE + 6144 == LDS_BYTES

S_X, S_W, S_WS, S_W2, S_WO, S_OUT, S_DBG = 4, 8, 12, 16, 20, 24, 28
sW8, sW4, sI, sJ, sROLE, sR0, sRS = 32, 33, 34, 35, 36, 37, 38
sBO = 39
sT0, sT1, sT2, sT3, sT4, sT5 = 40, 41, 42, 43, 44, 45
sXB, sWB_, sLX, sLW, sXK, sWK, sWBB, sLWB, sK64, sHB = 46, 47, 48, 49, 50, 51, 52, 53, 54, 55
sMASKH = 56
sCOLA, sCOLB = 58, 59
sTMP = 60
sT2i, sC, sAH, sAH1, sBW, sLB, sAO, sAO1 = 62, 63, 64, 65, 66, 67, 68, 69
sLN2, sCEPS = 70, 71
sZ, sROT, sPA, sPB = 72, 73, 74, 75
sBB2 = 0
sNONCE = 57 + 0
sWSP = 92
sPOLL = 96
SPIN = 20000
sNONCE = 3 + 0
sNONCE = 1
DBG_NONCE = 128

STAMPS = {"on": False, "n": 0, "names": {}}
VSTAMP = 12
def stamp(p, name=""):
    if not STAMPS["on"]: return
    if OPT.get("dbgsel"):
        sel = OPT["dbgsel"].split(",")
        if name not in sel: return
        p(f"s_memrealtime s[100:101]\ns_waitcnt lgkmcnt(0)\nv_writelane_b32 v{VSTAMP}, s100, {1 + sel.index(name)}")
        return
    n = STAMPS["n"]; STAMPS["n"] += 1
    assert n < 62
    STAMPS["names"].setdefault(STAMPS.get("path", ""), {})[n] = name
    p(f"{'s_memrealtime' if OPT.get('rt') else 's_memtime'} s[100:101]\ns_waitcnt lgkmcnt(0)\nv_writelane_b32 v{VSTAMP}, s100, {n}")
def stamp_reset(n=0, path=None):
    STAMPS["n"] = n
    if path is not None: STAMPS["path"] = path
def stamp_dump(p):
    if not STAMPS["on"]: return
    if OPT.get("dbgsel"):
        L = newlbl("L_dd")
        p(f"s_or_b32 s3, s2, s{sW8}\ns_cmp_lg_u32 s3, {OPT.get('dbgw', 0)}\ns_cbranch_scc1 {L}")
        p(f"v_readlane_b32 s3, v{VSTAMP}, 62\ns_nop 1\nv_subrev_u32 v{VSTAMP}, s3, v{VSTAMP}\nv_lshlrev_b32 v2, 2, v1\ns_mov_b64 exec, 0xffff")
        p(f"buffer_store_dword v{VSTAMP}, v2, s[{S_DBG}:{S_DBG+3}], 0 offen sc1\ns_mov_b64 exec, -1\n{L}:")
        return
    p(f"s_memrealtime s[100:101]\ns_waitcnt lgkmcnt(0)\nv_writelane_b32 v{VSTAMP}, s100, 63")
    p(f"s_lshl_b32 s{sT0}, s2, 11\ns_lshl_b32 s{sT1}, s{sW8}, 8\ns_add_u32 s{sT0}, s{sT0}, s{sT1}\ns_add_u32 s{sT0}, s{sT0}, {WS_DIAG}")
    p(f"v_lshlrev_b32 v2, 2, v1\nbuffer_store_dword v{VSTAMP}, v2, s[{S_WS}:{S_WS+3}], s{sT0} offen")

_lbl = [0]
def newlbl(s):
    _lbl[0] += 1
    return f"{s}_{_lbl[0]}"

def srd(p, dst, lo, nbytes):
    p(f"s_mov_b32 s{dst}, s{lo}\ns_mov_b32 s{dst+1}, s{lo+1}\ns_mov_b32 s{dst+2}, {nbytes}\ns_mov_b32 s{dst+3}, 0x20000")

KX, KQKV, KWO, KW1, KW2, KOUT, KDBG = 76, 78, 80, 84, 86, 88, 90

def prologue(p):
    p("s_cmp_ge_u32 s2, 256\ns_cbranch_scc1 L_end")
    p(f"s_load_dwordx4 s[{KX}:{KX+3}], s[0:1], 0")
    p(f"s_load_dwordx4 s[{KW1}:{KW1+3}], s[0:1], 32")
    p(f"s_load_dwordx2 s[{sWSP}:{sWSP+1}], s[0:1], 64")
    p(f"s_load_dwordx2 s[{KWO}:{KWO+1}], s[0:1], 16")
    p(f"s_load_dwordx4 s[{KOUT}:{KOUT+3}], s[0:1], 48")
    p("v_and_b32 v1, 63, v0\nv_lshrrev_b32 v2, 6, v0")
    p("s_getpc_b64 s[94:95]")
    p(f"L_pc:\ns_lshr_b32 s3, s2, 3\ns_mul_i32 s3, s3, (L_end-L_pc+4095)/4096*128\nv_lshlrev_b32 v14, 7, v0\nv_add_u32 v14, s3, v14\nv_min_u32 v14, L_end-L_pc, v14\nv_cmp_gt_u32 vcc, (L_end-L_pc+4095)/4096, v0")
    p("s_and_saveexec_b64 s[98:99], vcc\ns_cbranch_execz L_nopf")
    p("global_load_dword v15, v14, s[94:95]")
    p("L_nopf:\ns_mov_b64 exec, s[98:99]")
    p(f"v_readfirstlane_b32 s{sW8}, v2")
    p(f"s_and_b32 s{sT0}, s2, 7\ns_lshr_b32 s{sT1}, s2, 3")
    p(f"s_and_b32 s{sT2}, s{sT0}, 1\ns_lshl_b32 s{sT2}, s{sT2}, 3\ns_and_b32 s{sT3}, s{sT1}, 7\ns_add_u32 s{sI}, s{sT2}, s{sT3}")
    p(f"s_lshr_b32 s{sT3}, s{sT1}, 3\ns_lshr_b32 s{sROLE}, s{sT3}, 1")
    p(f"s_lshr_b32 s{sT2}, s{sT0}, 1\ns_lshl_b32 s{sT2}, s{sT2}, 1\ns_and_b32 s{sT4}, s{sT3}, 1\ns_add_u32 s{sJ}, s{sT2}, s{sT4}")
    rm = OPT.get("r0mode", "8")
    if rm == "8":   p(f"s_lshl_b32 s{sT4}, s{sT3}, 1\ns_add_u32 s{sR0}, s{sI}, s{sT4}\ns_and_b32 s{sR0}, s{sR0}, 7")
    elif rm == "4": p(f"s_add_u32 s{sR0}, s{sI}, s{sT3}\ns_and_b32 s{sR0}, s{sR0}, 3\ns_lshl_b32 s{sR0}, s{sR0}, 1")
    elif rm == "2": p(f"s_add_u32 s{sR0}, s{sI}, s{sT3}\ns_and_b32 s{sR0}, s{sR0}, 1\ns_lshl_b32 s{sR0}, s{sR0}, 2")
    else:           p(f"s_mov_b32 s{sR0}, 0")
    p(f"s_and_b32 s{sW4}, s{sW8}, 3")
    p(f"s_mul_i32 s{sT0}, s{sJ}, 224\ns_and_b32 s{sT1}, s{sJ}, 1\ns_mul_i32 s{sT2}, s{sT1}, 96\ns_add_u32 s{sCOLA}, s{sT0}, s{sT2}")
    p(f"s_xor_b32 s{sT1}, s{sT1}, 1\ns_lshl_b32 s{sT1}, s{sT1}, 7\ns_add_u32 s{sCOLB}, s{sT0}, s{sT1}")
    p(f"s_lshl_b32 s{sT0}, s{sJ}, 6\ns_add_u32 s{sT1}, s{sT0}, 512")
    p(f"s_cmp_eq_u32 s{sROLE}, 0")
    p(f"s_cselect_b32 s{sCOLA}, s{sCOLA}, s{sT1}\ns_cselect_b32 s{sCOLB}, s{sCOLB}, s{sT0}")
    p(f"s_mov_b32 s{sT0}, 3584\ns_mov_b32 s{sT1}, 3072\ns_cselect_b32 s{sRS}, s{sT0}, s{sT1}")
    p(f"s_mov_b32 s{sT0}, 1835008\ns_mov_b32 s{sT1}, 1572864\ns_cselect_b32 s{S_W+2}, s{sT0}, s{sT1}\ns_mov_b32 s{S_W+3}, 0x20000")
    p(f"s_lshl_b32 s{sK64}, s{sRS}, 6")
    p("s_waitcnt lgkmcnt(0)")
    p(f"s_cmp_eq_u32 s{sROLE}, 0")
    p(f"s_cselect_b32 s{S_W}, s{KW1}, s{KQKV}\ns_cselect_b32 s{S_W+1}, s{KW1+1}, s{KQKV+1}")
    srd(p, S_X, KX, 2097152)

def prologue2(p):
    srd(p, S_WS, sWSP, WS_SIZE)
    srd(p, S_W2, KW2, 1835008)
    srd(p, S_WO, KWO, 524288)
    srd(p, S_OUT, KOUT, 2097152)
    srd(p, S_DBG, KDBG, 256)
    p(f"s_mov_b32 s{sLN2}, {fhex(LN2)}\ns_mov_b32 s{sCEPS}, {fhex(1e-6/LN2)}")

def make_sel(p, base, t0, t1):
    p(f"v_and_b32 v{t0}, 15, v1\nv_lshrrev_b32 v{t1}, 4, v1\nv_and_b32 v{t1}, 1, v{t1}")
    p(f"v_cmp_eq_u32 vcc, v{t0}, v{t1}")
    p(f"v_mov_b32 v{t0}, 0x3f803f80")
    p(f"v_cndmask_b32 v{base}, 0, v{t0}, vcc")
    for k in range(1, 4): p(f"v_mov_b32 v{base+k}, v{base}")

def code_touch(p, start, end, vdst):
    L = newlbl("L_ct")
    kn = NAME + "_kernel"
    p(f"s_getpc_b64 s[94:95]\n{L}:")
    p(f"s_sub_u32 s94, s94, {L}-{kn}\ns_subb_u32 s95, s95, 0\ns_add_u32 s94, s94, {start}-{kn}\ns_addc_u32 s95, s95, 0")
    p(f"s_mov_b32 s{sT0}, ({end}-{start}+511)/512\ns_mul_i32 s{sT1}, s{sT0}, s{sW4}\ns_sub_u32 s{sT0}, s{sT0}, 1")
    p(f"v_min_u32 v2, s{sT0}, v1\nv_add_u32 v2, s{sT1}, v2\nv_lshlrev_b32 v2, 7, v2")
    p(f"global_load_dword v{vdst}, v2, s[94:95]")

def interleave(p, main, fill):
    n = len(main); m = len(fill); k = 0
    for i, s in enumerate(main):
        while k < m and k * n <= i * m:
            p(fill[k]); k += 1
        p(s)
    while k < m:
        p(fill[k]); k += 1

def store_flag(p, soff_code):
    p(soff_code)
    p(f"v_mov_b32 v2, 0\nv_mov_b32 v3, s{sNONCE}\ns_mov_b64 exec, 1\nbuffer_store_dword v3, v2, s[{S_WS}:{S_WS+3}], s{sT0} offen sc1\ns_mov_b64 exec, -1")

class BR:
    ACC = 16; WF = 64
    CS = 100
    XOFF0, XOFF1, WOFF = 104, 105, 106
    WBOFF = 107; XR = 110; WBL = 114
    SEL = 118; RS, NMR = 122, 123
    TA = 124; WBA = 124
    PFD = 117
    XO = 48
    WO = 52
    WQ1 = 103 + 0
    X = 128

def wb_base(role, k):
    return k * (3072 if role == 0 else 2048)

def B_setup(p, role):
    B = BR
    p(f"v_lshrrev_b32 v2, 3, v1\nv_lshlrev_b32 v5, 10, v2")
    p(f"v_and_b32 v3, 7, v1\nv_lshrrev_b32 v4, 4, v1\nv_xor_b32 v6, v3, v4\nv_lshlrev_b32 v6, 4, v6")
    p(f"v_add_u32 v{B.XOFF0}, v5, v6\nv_xor_b32 v{B.XOFF1}, 64, v{B.XOFF0}")
    p(f"v_mul_lo_u32 v2, v2, s{sRS}")
    p(f"v_and_b32 v4, 1, v4\nv_lshlrev_b32 v4, 2, v4\nv_xor_b32 v3, v3, v4\nv_lshlrev_b32 v3, 4, v3")
    p(f"v_add_u32 v{B.WOFF}, v2, v3")
    p(f"v_mov_b32 v{B.XO}, v{B.XOFF0}\nv_add_u32 v{B.XO+1}, 7168, v{B.XOFF1}\nv_add_u32 v{B.XO+2}, {2*7168}, v{B.XOFF0}\nv_add_u32 v{B.XO+3}, {3*7168}, v{B.XOFF1}")
    p(f"s_lshl_b32 s{sT5}, s{sRS}, 3\ns_sub_u32 s{sT5}, s{sT5}, 1024\nv_mov_b32 v{B.WO}, v{B.WOFF}")
    for t in range(1, 4): p(f"v_add_u32 v{B.WO+t}, s{sT5}, v{B.WO+t-1}")
    p(f"s_lshl_b32 s{sT0}, s{sI}, 7\ns_lshl_b32 s{sT1}, s{sW4}, 5\ns_add_u32 s{sT0}, s{sT0}, s{sT1}\ns_lshl_b32 s{sXB}, s{sT0}, 10")
    p(f"s_lshl_b32 s{sLX}, s{sW4}, 12")
    p(f"s_lshr_b32 s{sT0}, s{sW4}, 1\ns_and_b32 s{sT1}, s{sW4}, 1")
    p(f"s_lshl_b32 s{sT2}, s{sT1}, 5\ns_mul_i32 s{sT2}, s{sT2}, s{sRS}")
    p(f"s_lshl_b32 s{sT3}, s{sCOLA}, 1\ns_lshl_b32 s{sT4}, s{sT0}, {7 if role == 0 else 10}\ns_add_u32 s{sT3}, s{sT3}, s{sT4}")
    p(f"s_add_u32 s{sWB_}, s{sT2}, s{sT3}")
    p(f"s_lshl_b32 s{sT2}, s{sT0}, 13\ns_lshl_b32 s{sT3}, s{sT1}, 12\ns_add_u32 s{sLW}, s{sT2}, s{sT3}\ns_add_u32 s{sLW}, s{sLW}, 16384")

def B_setup2(p, role):
    B = BR
    p(f"v_and_b32 v2, 31, v1\nv_lshrrev_b32 v3, 5, v1")
    p(f"v_lshrrev_b32 v4, 1, v2\nv_and_b32 v4, 7, v4\nv_xor_b32 v4, v4, v3\nv_lshlrev_b32 v4, 4, v4")
    p(f"v_lshlrev_b32 v5, 7, v2\nv_add_u32 v4, v4, v5\nv_add_u32 v4, s{sLX}, v4")
    for pp in range(4): p(f"v_xor_b32 v{B.XR+pp}, {pp*32}, v4")
    p(f"s_lshl_b32 s{sT0}, s{sW4}, 4\ns_mul_i32 s{sT0}, s{sT0}, s{sRS}\ns_lshl_b32 s{sT1}, s{sCOLB}, 1\ns_add_u32 s{sWBB}, s{sT0}, s{sT1}")
    if role == 0:
        for t in range(3):
            p(f"v_add_u32 v2, {64*t}, v1\ns_mov_b32 s{sT0}, 43691\nv_mul_lo_u32 v3, v2, s{sT0}\nv_lshrrev_b32 v3, 19, v3")
            p(f"v_mul_u32_u24 v4, 12, v3\nv_sub_u32 v4, v2, v4\nv_lshlrev_b32 v4, 4, v4\nv_mul_lo_u32 v3, v3, s{sRS}\nv_add_u32 v{B.WBOFF+t}, v3, v4")
            if t: p(f"v_subrev_u32 v{B.WBOFF+t}, {t*1024}, v{B.WBOFF+t}")
        p(f"s_mul_i32 s{sLWB}, s{sW4}, 3072")
        p(f"v_lshrrev_b32 v2, 5, v1\nv_lshlrev_b32 v2, 3, v2\nv_and_b32 v3, 15, v1\nv_lshrrev_b32 v4, 2, v3\nv_add_u32 v2, v2, v4\nv_mul_u32_u24 v2, 192, v2")
        p(f"v_lshrrev_b32 v4, 4, v1\nv_and_b32 v4, 1, v4\nv_lshlrev_b32 v4, 5, v4\nv_add_u32 v2, v2, v4\nv_and_b32 v4, 3, v3\nv_lshlrev_b32 v4, 3, v4\nv_add_u32 v2, v2, v4")
        for be in range(3):
            p(f"s_add_u32 s{sT0}, s{sW4}, {be}\ns_cmp_ge_u32 s{sT0}, 3\ns_cselect_b32 s{sT1}, 3, 0\ns_sub_u32 s{sT0}, s{sT0}, s{sT1}")
            p(f"s_cmp_ge_u32 s{sT0}, 3\ns_cselect_b32 s{sT1}, 3, 0\ns_sub_u32 s{sT0}, s{sT0}, s{sT1}\ns_lshl_b32 s{sT0}, s{sT0}, 6")
            p(f"v_add_u32 v{B.WBL+be}, s{sT0}, v2")
    else:
        p(f"s_lshl_b32 s{sLWB}, s{sW4}, 11")
        p(f"v_mov_b32 v{B.WBOFF}, v{B.WOFF}\ns_lshl_b32 s{sT5}, s{sRS}, 3\ns_sub_u32 s{sT5}, s{sT5}, 1024\nv_add_u32 v{B.WBOFF+1}, s{sT5}, v{B.WOFF}")
        p(f"v_lshrrev_b32 v2, 5, v1\nv_lshlrev_b32 v2, 3, v2\nv_and_b32 v3, 15, v1\nv_lshrrev_b32 v4, 2, v3\nv_add_u32 v2, v2, v4\nv_lshlrev_b32 v2, 7, v2")
        p(f"v_lshrrev_b32 v4, 3, v3\nv_lshlrev_b32 v4, 6, v4\nv_add_u32 v2, v2, v4")
        p(f"v_lshrrev_b32 v4, 4, v1\nv_and_b32 v4, 1, v4\nv_lshlrev_b32 v4, 5, v4\nv_add_u32 v2, v2, v4\nv_and_b32 v4, 3, v3\nv_lshlrev_b32 v4, 3, v4\nv_add_u32 v2, v2, v4")
        p(f"s_and_b32 s{sT0}, s{sW4}, 1\ns_lshl_b32 s{sT0}, s{sT0}, 6\nv_xor_b32 v{B.WBL}, s{sT0}, v2\nv_xor_b32 v{B.WBL+1}, 64, v{B.WBL}")
    make_sel(p, B.SEL, 2, 3)

def dma_stage(stage, xfirst=False):
    B = BR
    slot = (stage % 4) * SLOT
    pre = (f"s_add_u32 s{sT0}, s{sR0}, {stage}\ns_and_b32 s{sT0}, s{sT0}, 7\n"
           f"s_lshl_b32 s{sT1}, s{sT0}, 7\ns_add_u32 s{sXK}, s{sXB}, s{sT1}\n"
           f"s_mul_i32 s{sT1}, s{sT0}, s{sK64}\ns_add_u32 s{sWK}, s{sWB_}, s{sT1}")
    gx = [f"buffer_load_dwordx4 v{B.XO+t}, s[{S_X}:{S_X+3}], s{sXK} offen offset:{t*1024} lds" for t in range(4)]
    gw = [f"buffer_load_dwordx4 v{B.WO+t}, s[{S_W}:{S_W+3}], s{sWK} offen offset:{t*1024} lds" for t in range(4)]
    gx[0] = f"s_add_u32 m0, s{sLX}, {slot}\n" + gx[0]
    gw[0] = f"s_add_u32 m0, s{sLW}, {slot}\n" + gw[0]
    g = gx + gw
    g[0] = pre + "\n" + g[0]
    return g

def dma_wb(t, role):
    B = BR
    b0 = wb_base(role, 4*t)
    pre = (f"s_add_u32 s{sT0}, s{sR0}, {t}\ns_and_b32 s{sT0}, s{sT0}, 7\n"
           f"s_mul_i32 s{sT1}, s{sT0}, s{sK64}\ns_add_u32 s{sWK}, s{sWBB}, s{sT1}\ns_add_u32 m0, s{sLWB}, {b0}")
    n = 3 if role == 0 else 2
    g = [f"buffer_load_dwordx4 v{B.WBOFF+u}, s[{S_W}:{S_W+3}], s{sWK} offen offset:{u*1024} lds" for u in range(n)]
    return [pre + "\n" + "\n".join(g)]

def B_phaseA(p, role):
    B = BR
    nb = 3 if role == 0 else 2
    stamp(p, "B:setup")
    for g in dma_stage(0): p(g)
    stamp(p, "B:dma0")
    for g in dma_stage(1, xfirst=True): p(g)
    for g in dma_stage(2): p(g)
    nwarm = 0
    if not OPT.get("nowarm"):
        A_prefetch_setup(p)
        p(f"v_lshlrev_b32 v2, 7, v1\nbuffer_load_dword v{B.PFD}, v2, s[96:99], s{sPA} offen")
        nwarm = 1
    stamp(p, "B:dma012")
    prologue2(p)
    B_setup2(p, role)
    VST, VCS, LD, ST4, PZ = 16, 17, 20, 36, 40
    p(f"s_lshl_b32 s{sT3}, s{sI}, 11\ns_lshl_b32 s{sT4}, s{sW4}, 9\ns_add_u32 s{sT3}, s{sT3}, s{sT4}\ns_add_u32 s{sT3}, s{sT3}, {WS_STG}\nv_and_b32 v2, 31, v1\nv_lshlrev_b32 v2, 4, v2\nv_add_u32 v{VST}, s{sT3}, v2")
    p(f"s_lshl_b32 s{sT2}, s{sROLE}, 3\ns_add_u32 s{sT2}, s{sT2}, s{sJ}\ns_lshl_b32 s{sT3}, s{sT2}, 14\ns_add_u32 s{sT3}, s{sT3}, {WS_CSP}\ns_lshl_b32 s{sT4}, s{sW4}, 8\ns_add_u32 s{sT3}, s{sT3}, s{sT4}")
    p(f"v_lshrrev_b32 v2, 5, v1\nv_lshlrev_b32 v2, 13, v2\nv_and_b32 v3, 31, v1\nv_lshlrev_b32 v3, 3, v3\nv_add_u32 v2, v2, v3\nv_add_u32 v{VCS}, s{sT3}, v2")
    def preloads():
        o = [f"buffer_load_dwordx4 v[{ST4}:{ST4+3}], v{VST}, s[{S_WS}:{S_WS+3}], 0 offen sc1"]
        for q in range(8):
            so = "0" if q < 4 else f"s{sMASKH}"
            o.append(f"buffer_load_dwordx2 v[{LD+2*q}:{LD+2*q+1}], v{VCS}, s[{S_WS}:{S_WS+3}], {so} offen offset:{(q & 3)*1024} sc1")
        return o
    p(f"s_mov_b32 s{sMASKH}, 4096")
    if role == 0:
        wbs = {5: (0,), 6: (1, 2), 7: (3,)} if not OPT.get("wblate") else {5: (), 6: (0,), 7: (1,)}
        if OPT.get("wball"): wbs = {5: (0, 1), 6: (2, 3, 4), 7: (5, 6, 7)}
    else:
        wbs = {5: (0, 1), 6: (2, 3), 7: ()} if not OPT.get("wblate") else {5: (), 6: (0, 1), 7: (2, 3)}
        if OPT.get("wball"): wbs = {5: (0, 1, 2, 3), 6: (4, 5, 6, 7), 7: ()}
    ops = []
    ops += ["s0"]*8 + ["s1"]*8 + ["s2"]*8 + ["w"]*nwarm
    def wait_for(tag):
        last = max(i for i, t in enumerate(ops) if t == tag)
        return len(ops) - 1 - last
    for s in range(8):
        p(f"s_waitcnt vmcnt({wait_for('s%d' % s)}) lgkmcnt(0)")
        stamp(p, f"B:landed{s}")
        p("s_barrier")
        if s <= 4: fill = dma_stage(s + 3); tags = ["s%d" % (s + 3)] * 8
        else:
            fill = sum((dma_wb(t, role) for t in wbs[s]), []); tags = sum((["b%d" % t] * nb for t in wbs[s]), [])
        slot = (s % 4) * SLOT
        for pp in range(4):
            k = 4 * s + pp
            p(f"v_add_u32 v{B.TA+pp}, {slot}, v{B.XR+pp}\nds_read_b128 v[{B.X+4*k}:{B.X+4*k+3}], v{B.TA+pp}")
        if s == 0:
            p(f"v_mov_b32 v3, {L_NONCE}\nds_read_b32 v4, v3\ns_waitcnt lgkmcnt(0)\nv_readfirstlane_b32 s{sNONCE}, v4")
        for g in fill: p(g)
        ops += tags
        if s == 2:
            p(f"v_and_b32 v2, 15, v1\nv_lshlrev_b32 v3, 3, v2\ns_lshl_b32 s{sT0}, s{sW4}, 7\ns_add_u32 s{sT0}, s{sT0}, {L_CSPL}\nv_add_u32 v3, s{sT0}, v3\nds_read_b64 v[44:45], v3")
            p(f"s_lshl_b32 s{sT0}, s{sROLE}, 3\ns_add_u32 s{sT0}, s{sT0}, s{sJ}\ns_lshl_b32 s{sT0}, s{sT0}, 4\ns_add_u32 s{sT0}, s{sT0}, s{sI}\ns_lshl_b32 s{sT0}, s{sT0}, 10\ns_add_u32 s{sT0}, s{sT0}, {WS_CSP}\ns_lshl_b32 s{sT1}, s{sW4}, 8\ns_add_u32 s{sT0}, s{sT0}, s{sT1}")
            p(f"v_lshlrev_b32 v2, 4, v2\ns_waitcnt lgkmcnt(0)\nv_mov_b32 v46, v45\nv_mov_b32 v45, s{sNONCE}\nv_mov_b32 v47, s{sNONCE}")
            p(f"s_mov_b64 exec, 0xffff\nbuffer_store_dwordx4 v[44:47], v2, s[{S_WS}:{S_WS+3}], s{sT0} offen sc1\ns_mov_b64 exec, -1")
            p(f"v_and_b32 v2, 31, v1\nv_lshlrev_b32 v2, 2, v2\nbuffer_load_dword v{PZ}, v2, s[{S_DBG}:{S_DBG+3}], 0 offen sc1")
            ops += ["c", "z"]
        if s == int(OPT.get("plat", 6)):
            for x_ in preloads(): p(x_)
            ops += ["p"] * 9
        if OPT.get("touch"):
            if s == 3:
                code_touch(p, f"L_Aepi{role}", "L_AQ" if role == 0 else "L_P2", B.PFD); ops += ["t"]
                code_touch(p, f"L_Bpb{role}", f"L_Bend{role}", B.PFD); ops += ["t"]
            if s == 6:
                code_touch(p, "L_P2", "L_end", B.PFD); ops += ["t"]
    L = newlbl("L_tg")
    p(f"s_waitcnt vmcnt({wait_for('p')})")
    p(f"s_mov_b32 s3, 0\n{L}:")
    p(f"v_xor_b32 v2, s{sNONCE}, v{ST4+2}")
    for q in range(8): p(f"v_xor_b32 v3, s{sNONCE}, v{LD+2*q+1}\nv_or_b32 v2, v2, v3")
    p(f"v_cmp_ne_u32 vcc, 0, v2\ns_cbranch_vccz {L}x")
    p(f"s_add_u32 s3, s3, 1\ns_cmp_gt_u32 s3, {SPIN}\ns_cbranch_scc1 {L}x")
    for x_ in preloads(): p(x_)
    p(f"s_waitcnt vmcnt(0)\ns_branch {L}\n{L}x:")
    p(f"v_and_b32 v2, 31, v1\nv_lshlrev_b32 v2, 2, v2")
    poll_check(p, PZ, 1, 2, S_DBG)
    p(f"s_lshl_b32 s{sT0}, s{sW4}, 7\ns_add_u32 s{sT0}, s{sT0}, {L_RS}\nv_add_u32 v3, s{sT0}, v2\nds_write_b32 v3, v{ST4}\nds_write_b32 v3, v{ST4+1} offset:512")
    for st in (4, 2, 1):
        for q in range(st): p(f"v_add_f32 v{LD+2*q}, v{LD+2*q}, v{LD+2*(q+st)}")
    p(f"v_mov_b32 v4, v{LD}\nv_permlane32_swap_b32 v4, v{LD}\nv_add_f32 v{LD}, v{LD}, v4")
    p(f"s_lshl_b32 s{sT0}, s{sW4}, 7\ns_add_u32 s{sT0}, s{sT0}, {L_CSA}\nv_add_u32 v3, s{sT0}, v2\nds_write_b32 v3, v{LD}")
    return ops

def B_phaseB(p, role, ops):
    p(f"L_Bpb{role}:")
    B = BR
    nb = 3 if role == 0 else 2
    ustride = 768 if role == 0 else 512
    def reads(k):
        buf = B.WF + (k % 3) * 12
        base = wb_base(role, k)
        hi = base // 32768; lo = base - hi * 32768
        s = []
        for be in range(nb):
            for u in range(2):
                s.append(f"ds_read_b64_tr_b16 v[{buf+4*be+2*u}:{buf+4*be+2*u+1}], v{B.WBA+be} offset:{lo + u*ustride}")
        return hi, s
    cur = [None]
    def setaddr(hi):
        if cur[0] == hi: return ""
        cur[0] = hi
        return "\n".join(f"v_add_u32 v{B.WBA+be}, {hi*32768}, v{B.WBL+be}" for be in range(nb))
    def mfmas(k):
        buf = B.WF + (k % 3) * 12; x = B.X + 4 * k; first = k == 0
        s = []
        for be in range(nb):
            c = "0" if first else f"v[{B.ACC+16*be}:{B.ACC+16*be+15}]"
            s.append(f"v_mfma_f32_32x32x16_bf16 v[{B.ACC+16*be}:{B.ACC+16*be+15}], v[{buf+4*be}:{buf+4*be+3}], v[{x}:{x+3}], {c}")
        c = "0" if first else f"v[{B.CS}:{B.CS+3}]"
        s.append(f"v_mfma_f32_16x16x32_bf16 v[{B.CS}:{B.CS+3}], v[{buf}:{buf+3}], v[{B.SEL}:{B.SEL+3}], {c}")
        return s
    def wait_for(tag):
        last = max(i for i, t in enumerate(ops) if t == tag)
        return len(ops) - 1 - last
    rest_wb = list(range(2, 8)) if (role == 0 and OPT.get('wblate')) else list(range(4, 8))
    if OPT.get('wball'): rest_wb = []
    w8 = wait_for("b1")
    for t in rest_wb: ops += ["b%d" % t] * nb
    w9 = wait_for("b3")
    nrd = 2 * nb
    p(f"s_waitcnt vmcnt({w8}) lgkmcnt(0)")
    stamp(p, "B:pre8")
    p("s_barrier")
    stamp(p, "B:post8")
    if OPT.get("prioBm"): p(f"s_setprio {OPT['prioBm']}")
    for k0 in range(2):
        hi, rr = reads(k0)
        a = setaddr(hi)
        if a: p(a)
        for r in rr: p(r)
    for k in range(32):
        m = mfmas(k)
        p(f"s_waitcnt lgkmcnt({nrd if k < 31 else 0})")
        if k in (2, 4, 6, 8, 12, 14, 16, 24): stamp(p, f"B:b{k}")
        p(m[0])
        if k < len(rest_wb):
            for g in dma_wb(rest_wb[k], role): p(g)
        if k + 2 < 32:
            if k + 4 == 8:  p(f"s_waitcnt vmcnt({w9})"); lds_cnt_inc_nowait(p, L_W1)
            if k + 4 == 16: p(f"s_waitcnt vmcnt(0)"); lds_cnt_inc_nowait(p, L_W2)
            if k + 2 == 8:  lds_cnt_wait(p, L_W1, 4)
            if k + 2 == 16: lds_cnt_wait(p, L_W2, 4)
            hi, rr = reads(k + 2)
            a = setaddr(hi)
            if a:
                p("s_waitcnt lgkmcnt(0)") if False else None
                p(a)
            rest = m[1:]
            per = (len(rr) + len(rest) - 1) // len(rest)
            ri = 0
            for mm in rest:
                for _ in range(per):
                    if ri < len(rr): p(rr[ri]); ri += 1
                p(mm)
            while ri < len(rr): p(rr[ri]); ri += 1
        else:
            for mm in m[1:]: p(mm)
    stamp(p, "B:mfma_end")
    if OPT.get("prioBm"): p(f"s_setprio {OPT.get('prioBe', 0)}")
    if OPT.get("prioBe"): p(f"s_setprio {OPT['prioBe']}")
    T = 2
    p(f"v_and_b32 v{T}, 15, v1\nv_lshrrev_b32 v{T+1}, 4, v1")
    p(f"v_cmp_gt_u32 vcc, 2, v{T}")
    p(f"v_lshlrev_b32 v{T}, 6, v{T}\nv_lshlrev_b32 v{T+1}, 4, v{T+1}\nv_add_u32 v{T}, v{T}, v{T+1}")
    if role == 0: p(f"s_cmp_eq_u32 s{sW4}, 3\ns_cselect_b32 s{sT0}, 0, s{sW4}\ns_lshl_b32 s{sT0}, s{sT0}, 7\ns_add_u32 s{sT0}, s{sT0}, {L_CSB}")
    else:         p(f"s_and_b32 s{sT0}, s{sW4}, 1\ns_lshl_b32 s{sT0}, s{sT0}, 7\ns_add_u32 s{sT0}, s{sT0}, {L_CSB}")
    p(f"v_add_u32 v{T}, s{sT0}, v{T}")
    p(f"s_and_saveexec_b64 s[{sTMP}:{sTMP+1}], vcc")
    p(f"ds_write_b128 v{T}, v[{B.CS}:{B.CS+3}]")
    p(f"s_mov_b64 exec, s[{sTMP}:{sTMP+1}]")
    L = newlbl("L_cnt")
    p(f"v_mov_b32 v4, {L_CNT}\nv_mov_b32 v5, 1\ns_waitcnt lgkmcnt(0)\ns_mov_b64 exec, 1\nds_add_u32 v4, v5\ns_mov_b64 exec, -1")
    p(f"s_mov_b32 s3, 0\n{L}:\ns_add_u32 s3, s3, 1\ns_cmp_gt_u32 s3, {SPIN}\ns_cbranch_scc1 {L}x")
    p(f"ds_read_b32 v5, v4\ns_waitcnt lgkmcnt(0)\nv_cmp_gt_u32 vcc, 4, v5\ns_cbranch_vccnz {L}\n{L}x:")
    p(f"v_and_b32 v2, 31, v1\nv_lshlrev_b32 v2, 2, v2\ns_lshl_b32 s{sT0}, s{sW4}, 7\ns_add_u32 s{sT0}, s{sT0}, {L_RS}\nv_add_u32 v2, s{sT0}, v2")
    p(f"ds_read_b32 v{B.RS}, v2\nds_read_b32 v{B.NMR}, v2 offset:512")

def silu_chunk(p, acc, cs, rs, nmr, T, out):
    for e in range(8): p(f"v_mul_f32 v{T+e}, v{nmr}, v{cs+e}")
    for e in range(8): p(f"v_fma_f32 v{T+e}, v{acc+e}, v{rs}, v{T+e}")
    for e in range(8): p(f"v_exp_f32 v{T+8+e}, -v{T+e}")
    for e in range(8): p(f"v_add_f32 v{T+8+e}, 1.0, v{T+8+e}")
    for e in range(8): p(f"v_rcp_f32 v{T+8+e}, v{T+8+e}")
    for e in range(8): p(f"v_mul_f32 v{T+e}, v{T+e}, v{T+8+e}")
    for e in range(4): p(f"v_cvt_pk_bf16_f32 v{out+e}, v{T+2*e}, v{T+2*e+1}")

def phi_elems(p, t, n, T):
    for e in range(n): p(f"v_min_f32 v{T+e}, 0, v{t+e}")
    for e in range(n): p(f"v_exp_f32 v{T+e}, v{T+e}")
    for e in range(n): p(f"v_max_f32 v{t+e}, s{sCEPS}, v{t+e}")
    for e in range(n): p(f"v_fma_f32 v{t+e}, v{t+e}, s{sLN2}, v{T+e}")

def B_epi_F(p):
    stamp(p, "B:cnt_done")
    if OPT.get("prioF"): p(f"s_setprio {OPT['prioF']}")
    B = BR
    CSV, T, OUT, VA = 128, 176, 192, 200
    p(f"v_lshrrev_b32 v3, 5, v1\nv_lshlrev_b32 v3, 4, v3\nv_add_u32 v3, {L_CSB}, v3")
    for be in range(3):
        p(f"s_add_u32 s{sT0}, s{sW4}, {be}\ns_cmp_ge_u32 s{sT0}, 3\ns_cselect_b32 s{sT1}, 3, 0\ns_sub_u32 s{sT0}, s{sT0}, s{sT1}")
        p(f"s_cmp_ge_u32 s{sT0}, 3\ns_cselect_b32 s{sT1}, 3, 0\ns_sub_u32 s{sTMP+2+be}, s{sT0}, s{sT1}")
        p(f"s_lshl_b32 s{sT0}, s{sTMP+2+be}, 7\nv_add_u32 v{VA+be}, s{sT0}, v3")
        for q in range(4):
            p(f"ds_read_b128 v[{CSV+16*be+4*q}:{CSV+16*be+4*q+3}], v{VA+be} offset:{q*32}")
    p(f"v_lshlrev_b32 v{VA+3}, 4, v1")
    p(f"s_lshl_b32 s{sT2}, s{sI}, 2\ns_add_u32 s{sT2}, s{sT2}, s{sW4}\ns_mul_i32 s{sT2}, s{sT2}, 112\ns_lshr_b32 s{sT3}, s{sCOLB}, 4\ns_add_u32 s{sT2}, s{sT2}, s{sT3}")
    p(f"s_lshl_b32 s{sHB}, s{sT2}, 10\ns_add_u32 s{sHB}, s{sHB}, {WS_H}")
    ch = 0
    for be in range(3):
        p(f"s_waitcnt lgkmcnt({8-4*be})")
        for qp in range(2):
            o = OUT + 4*(ch & 1)
            silu_chunk(p, B.ACC + 16*be + 8*qp, CSV + 16*be + 8*qp, B.RS, B.NMR, T, o)
            stamp(p, f"B:v{ch}")
            p(f"s_lshl_b32 s{sT2}, s{sTMP+2+be}, 11\ns_add_u32 s{sT2}, s{sT2}, s{sHB}\ns_add_u32 s{sT2}, s{sT2}, {qp*1024}")
            p(f"buffer_store_dwordx4 v[{o}:{o+3}], v{VA+3}, s[{S_WS}:{S_WS+3}], s{sT2} offen sc1")
            stamp(p, f"B:s{ch}")
            ch += 1
    stamp(p, "B:epi_valu")
    p("s_waitcnt vmcnt(0)")
    stamp(p, "B:drained")
    store_flag(p, flagB_addr(WS_FB))

def flagB_addr(base):
    return (f"s_lshl_b32 s{sT2}, s{sI}, 1\ns_lshr_b32 s{sT3}, s{sW4}, 1\ns_add_u32 s{sT2}, s{sT2}, s{sT3}\ns_lshl_b32 s{sT2}, s{sT2}, 7\n"
            f"s_lshl_b32 s{sT3}, s{sJ}, 1\ns_and_b32 s{sT4}, s{sW4}, 1\ns_add_u32 s{sT3}, s{sT3}, s{sT4}\ns_lshl_b32 s{sT3}, s{sT3}, 2\n"
            f"s_add_u32 s{sT0}, s{sT2}, s{sT3}\ns_add_u32 s{sT0}, s{sT0}, {base}")

def B_epi_Q(p):
    B = BR
    CSV, T, PQ, VA = 128, 160, 224, 170
    p(f"v_lshrrev_b32 v3, 5, v1\nv_lshlrev_b32 v3, 4, v3\nv_add_u32 v3, {L_CSB}, v3")
    p(f"s_and_b32 s{sT0}, s{sW4}, 1\ns_lshl_b32 s{sT0}, s{sT0}, 7\nv_add_u32 v{VA}, s{sT0}, v3\nv_xor_b32 v{VA+1}, 128, v{VA}")
    for be in range(2):
        for q in range(4):
            p(f"ds_read_b128 v[{CSV+16*be+4*q}:{CSV+16*be+4*q+3}], v{VA+be} offset:{q*32}")
    for be in range(2):
        p(f"s_waitcnt lgkmcnt({4-4*be})")
        for qp in range(2):
            a = B.ACC + 16*be + 8*qp; cs = CSV + 16*be + 8*qp
            for e in range(8): p(f"v_mul_f32 v{T+e}, v{B.NMR}, v{cs+e}")
            for e in range(8): p(f"v_fma_f32 v{a+e}, v{a+e}, v{B.RS}, v{T+e}")
            phi_elems(p, a, 8, T)
            for e in range(4): p(f"v_cvt_pk_bf16_f32 v{PQ+8*be+4*qp+e}, v{a+2*e}, v{a+2*e+1}")
    return PQ

def wait_c2(p):
    L = newlbl("L_c2")
    p(f"s_lshl_b32 s{sT0}, s{sJ}, 8\ns_add_u32 s{sT0}, s{sT0}, {WS_C2}")
    p(f"v_and_b32 v2, 1, v1\nv_lshlrev_b32 v2, 7, v2")
    p(f"s_mov_b32 s3, 0\n{L}:\ns_add_u32 s3, s3, 1\ns_cmp_gt_u32 s3, {SPIN}\ns_cbranch_scc1 {L}x")
    p(f"buffer_load_dword v3, v2, s[{S_WS}:{S_WS+3}], s{sT0} offen sc1\ns_waitcnt vmcnt(0)\nv_cmp_ne_u32 vcc, 32, v3\ns_cbranch_vccz {L}x\ns_sleep 4\ns_branch {L}\n{L}x:")

def o_stage(p, PQ, T0=128):
    LD = T0; KA = T0 + 32; D4 = T0 + 48; OUT = T0 + 80; VA = T0 + 88; GL = T0
    p(f"v_and_b32 v2, 31, v1\nv_lshrrev_b32 v3, 5, v1")
    p(f"v_lshlrev_b32 v4, 5, v3\nv_add_u32 v4, v4, v2\nv_lshlrev_b32 v4, 2, v4")
    p(f"v_lshlrev_b32 v5, 2, v3\nv_add_u32 v5, 256, v5")
    p(f"v_cmp_gt_u32 vcc, 16, v2")
    p(f"v_cndmask_b32 v{VA}, v5, v4, vcc")
    p(f"v_add_u32 v4, 64, v4\nv_add_u32 v5, 8, v5")
    p(f"v_cndmask_b32 v{VA+1}, v5, v4, vcc")
    p(f"v_lshlrev_b32 v{VA+2}, 4, v1")
    p(f"s_and_b32 s{sT1}, s{sW4}, 1\ns_mul_i32 s{sT2}, s{sT1}, 2560\ns_add_u32 s{sTMP}, s{sT2}, {L_KVL}\ns_xor_b32 s{sT1}, s{sT1}, 1\ns_mul_i32 s{sT2}, s{sT1}, 2560\ns_add_u32 s{sTMP+1}, s{sT2}, {L_KVL}")
    p(f"s_lshl_b32 s{sT0}, s{sJ}, 1\ns_and_b32 s{sT1}, s{sW4}, 1\ns_add_u32 s{sT0}, s{sT0}, s{sT1}\ns_lshl_b32 s{sT0}, s{sT0}, 12\ns_add_u32 s{sT0}, s{sT0}, {WS_KVZ}")
    p(f"s_lshr_b32 s{sT2}, s{sW4}, 1\ns_lshl_b32 s{sT3}, s{sT2}, 10\ns_add_u32 s{sT3}, s{sT3}, s{sT0}\ns_add_u32 s{sT0}, s{sT3}, 2048")
    p(f"s_mov_b32 s{sZ}, s{sT3}\ns_mov_b32 s{sPB}, s{sT0}")
    p(f"s_mul_i32 s{sT4}, s{sT2}, 1280\ns_add_u32 s{sT4}, s{sT4}, s{sTMP}")
    p(f"v_lshrrev_b32 v2, 4, v1\nv_mul_u32_u24 v2, 320, v2\nv_and_b32 v3, 15, v1\nv_lshlrev_b32 v3, 4, v3\nv_add_u32 v2, v2, v3\nv_add_u32 v{VA+3}, s{sT4}, v2")
    p(f"v_and_b32 v2, 3, v1\nv_mul_u32_u24 v3, 320, v2\nv_add_u32 v3, 256, v3\nv_add_u32 v7, s{sT4}, v3\nv_lshlrev_b32 v6, 8, v2")
    p(f"s_lshl_b32 s{sT4}, s{sI}, 2\ns_add_u32 s{sT4}, s{sT4}, s{sW4}\ns_lshl_b32 s{sT4}, s{sT4}, 5\ns_lshl_b32 s{sT5}, s{sJ}, 2\ns_add_u32 s{sT4}, s{sT4}, s{sT5}")
    p(f"s_lshl_b32 s{sT4}, s{sT4}, 10\ns_add_u32 s{sHB}, s{sT4}, {WS_O}")
    p(f"s_and_b32 s{sT1}, s{sW4}, 1\ns_lshl_b32 s{sT1}, s{sT1}, 11")
    p(f"s_add_u32 s{sTMP+2}, s{sHB}, s{sT1}\ns_xor_b32 s{sT1}, s{sT1}, 2048\ns_add_u32 s{sTMP+3}, s{sHB}, s{sT1}")
    wait_c2(p)
    stamp(p, "B:c2")
    if OPT.get("prioO"): p(f"s_setprio {OPT['prioO']}")
    p(f"buffer_load_dwordx4 v[{GL}:{GL+3}], v{VA+2}, s[{S_WS}:{S_WS+3}], s{sZ} offen sc1")
    p(f"s_mov_b64 exec, 0xf\nbuffer_load_dwordx4 v[{GL+4}:{GL+7}], v6, s[{S_WS}:{S_WS+3}], s{sPB} offen sc1\ns_mov_b64 exec, -1")
    p(f"s_waitcnt vmcnt(0)\nds_write_b128 v{VA+3}, v[{GL}:{GL+3}]\ns_mov_b64 exec, 0xf\nds_write_b128 v7, v[{GL+4}:{GL+7}]\ns_mov_b64 exec, -1")
    lds_cnt_inc(p, L_KC)
    lds_cnt_wait(p, L_KC, 4)
    for be in range(2):
        for hh in range(2):
            h = 2*be + hh
            p(f"v_add_u32 v2, s{sTMP+be}, v{VA+hh}")
            for r in range(8):
                p(f"ds_read_b32 v{LD+8*h+r}, v2 offset:{r*320}")
    for h in range(4):
        be, hh = h >> 1, h & 1
        d = D4 + 16 * (h & 1)
        p(f"s_waitcnt lgkmcnt({min(15, (3-h)*8)})")
        for e in range(4): p(f"v_cvt_pk_bf16_f32 v{KA+4*h+e}, v{LD+8*h+2*e}, v{LD+8*h+2*e+1}")
        p(f"v_mfma_f32_32x32x16_bf16 v[{d}:{d+15}], v[{KA+4*h}:{KA+4*h+3}], v[{PQ+8*be+4*hh}:{PQ+8*be+4*hh+3}], 0")
        if h >= 1: o_fin(p, h - 1, D4, OUT, VA)
    o_fin(p, 3, D4, OUT, VA)
    p("s_waitcnt vmcnt(0)")
    store_flag(p, flagB_addr(WS_FO))

def o_fin(p, h, D4, OUT, VA):
    be, hh = h >> 1, h & 1
    d = D4 + 16 * (h & 1); o = OUT + 4 * (h & 1)
    p(f"v_add_f32 v{d+8}, {fhex(1e-6)}, v{d+8}")
    p(f"v_rcp_f32 v{d+8}, v{d+8}")
    for e in range(8): p(f"v_mul_f32 v{d+e}, v{d+e}, v{d+8}")
    for e in range(4): p(f"v_cvt_pk_bf16_f32 v{o+e}, v{d+2*e}, v{d+2*e+1}")
    p(f"s_add_u32 s{sT5}, s{sTMP+2+be}, {hh*1024}")
    p(f"buffer_store_dwordx4 v[{o}:{o+3}], v{VA+2}, s[{S_WS}:{S_WS+3}], s{sT5} offen sc1")

class AR:
    ACC = 16; XF = 80; WF = 184; CS = 112; SEL = 120; SEL2 = 236
    AX = 124; AX2 = 128; AW = 132; AW2 = 134
    E = 136
    CL = 136
    STL = 168
    POLL = 172
    VCL = 173
    VSL = 174
    PF = 255
    CSO = 176

def zero_ctrl(p):
    L = newlbl("L_nz")
    p(f"s_cmp_ge_u32 s2, 8\ns_cbranch_scc1 {L}")
    L2 = newlbl("L_nn")
    p(f"s_or_b32 s{sT0}, s2, s{sW4}\ns_cmp_lg_u32 s{sT0}, 0\ns_cbranch_scc1 {L2}")
    p(f"s_load_dword s{sT3}, s[{sWSP}:{sWSP+1}], {WS_NONCE} glc")
    p(f"{L2}:")
    p("v_mov_b32 v8, 0\nv_mov_b32 v9, 0\nv_mov_b32 v10, 0\nv_mov_b32 v11, 0\nv_lshlrev_b32 v2, 4, v1")
    p(f"s_lshl_b32 s{sT0}, s2, 13\ns_lshl_b32 s{sT1}, s{sW4}, 11\ns_add_u32 s{sT0}, s{sT0}, s{sT1}\ns_add_u32 s{sT0}, s{sT0}, {WS_KVZ}")
    p(f"buffer_store_dwordx4 v[8:11], v2, s[{S_WS}:{S_WS+3}], s{sT0} offen sc1\nbuffer_store_dwordx4 v[8:11], v2, s[{S_WS}:{S_WS+3}], s{sT0} offen offset:1024 sc1")
    p(f"s_lshl_b32 s{sT0}, s2, 8\ns_add_u32 s{sT0}, s{sT0}, {WS_C2}\ns_mov_b64 exec, 0xffff")
    p(f"buffer_store_dwordx4 v[8:11], v2, s[{S_WS}:{S_WS+3}], s{sT0} offen sc1\ns_mov_b64 exec, -1")
    L3 = newlbl("L_nn")
    p(f"s_or_b32 s{sT0}, s2, s{sW4}\ns_cmp_lg_u32 s{sT0}, 0\ns_cbranch_scc1 {L3}")
    p(f"s_waitcnt lgkmcnt(0)\ns_add_u32 s{sT3}, s{sT3}, 1\ns_or_b32 s{sT3}, s{sT3}, 1")
    p(f"v_mov_b32 v3, s{sT3}\nv_mov_b32 v4, {DBG_NONCE}\nv_mov_b32 v5, {WS_NONCE}\ns_mov_b64 exec, 1")
    p(f"buffer_store_dword v3, v4, s[{S_DBG}:{S_DBG+3}], 0 offen sc1\nbuffer_store_dword v3, v5, s[{S_WS}:{S_WS+3}], 0 offen sc1\ns_mov_b64 exec, -1")
    p(f"{L3}:")
    p(f"s_lshl_b32 s{sT0}, s2, 2\ns_add_u32 s{sT0}, s{sT0}, s{sW4}\ns_lshl_b32 s{sT0}, s{sT0}, 2\nv_mov_b32 v2, s{sT0}\nv_mov_b32 v3, 1")
    p("s_waitcnt vmcnt(0)")
    p(f"s_mov_b64 exec, 1\nbuffer_store_dword v3, v2, s[{S_DBG}:{S_DBG+3}], 0 offen sc1\ns_mov_b64 exec, -1")
    p(f"{L}:")

def get_nonce(p):
    L = newlbl("L_gn")
    p(f"v_mov_b32 v2, {DBG_NONCE}")
    p(f"s_mov_b32 s3, 0\n{L}:\ns_add_u32 s3, s3, 1\ns_cmp_gt_u32 s3, {SPIN}\ns_cbranch_scc1 {L}x")
    p(f"buffer_load_dword v3, v2, s[{S_DBG}:{S_DBG+3}], 0 offen sc1\ns_waitcnt vmcnt(0)\nv_readfirstlane_b32 s{sNONCE}, v3\ns_cmp_eq_u32 s{sNONCE}, 0\ns_cbranch_scc1 {L}\n{L}x:")
    p(f"v_mov_b32 v2, {L_NONCE}\nv_mov_b32 v3, s{sNONCE}\nds_write_b32 v2, v3")

def A_stats_issue(p):
    p(f"s_lshl_b32 s{sT0}, s{sROLE}, 3\ns_add_u32 s{sT0}, s{sT0}, s{sJ}\ns_lshl_b32 s{sT0}, s{sT0}, 3\ns_lshl_b32 s{sT1}, s{sW4}, 1\ns_add_u32 s{sT0}, s{sT0}, s{sT1}")
    p(f"s_lshl_b32 s{sT1}, s{sI}, 7\ns_add_u32 s{sZ}, s{sT0}, s{sT1}\ns_lshl_b32 s{sT0}, s{sZ}, 10")
    p(f"v_lshlrev_b32 v2, 4, v1")
    p(f"buffer_load_dwordx4 v[40:43], v2, s[{S_X}:{S_X+3}], s{sT0} offen\nbuffer_load_dwordx4 v[44:47], v2, s[{S_X}:{S_X+3}], s{sT0} offen offset:1024")

def A_prefetch_setup(p):
    p(f"s_cmp_eq_u32 s{sW4}, 0\ns_cselect_b32 s96, s{KQKV}, s{KW1}\ns_cselect_b32 s97, s{KQKV+1}, s{KW1+1}\ns_mov_b32 s{sT0}, 1835008\ns_mov_b32 s{sT1}, 1572864\ns_cselect_b32 s98, s{sT1}, s{sT0}\ns_mov_b32 s{sT2}, 56\ns_mov_b32 s{sT3}, 48\ns_cselect_b32 s{sT2}, s{sT3}, s{sT2}")
    p(f"s_cmp_eq_u32 s{sW4}, 2\ns_cselect_b32 s96, s{KW2}, s96\ns_cselect_b32 s97, s{KW2+1}, s97")
    p(f"s_cmp_eq_u32 s{sW4}, 3\ns_cselect_b32 s96, s{KWO}, s96\ns_cselect_b32 s97, s{KWO+1}, s97\ns_mov_b32 s{sT0}, 524288\ns_cselect_b32 s98, s{sT0}, s98\ns_mov_b32 s{sT3}, 16\ns_cselect_b32 s{sT2}, s{sT3}, s{sT2}")
    p(f"s_mov_b32 s99, 0x20000\ns_mul_i32 s{sT2}, s{sT2}, s2\ns_lshl_b32 s{sPA}, s{sT2}, 7")

def A_stats_compute(p):
    p("s_waitcnt vmcnt(0)")
    for r in range(2):
        for d in range(4):
            x = 40 + 4*r + d
            p(f"v_lshlrev_b32 v48, 16, v{x}\nv_and_b32 v49, 0xffff0000, v{x}")
            if d == 0:
                p(f"v_add_f32 v{50+2*r}, v48, v49\nv_mul_f32 v{51+2*r}, v48, v48\nv_fmac_f32 v{51+2*r}, v49, v49")
            else:
                p(f"v_add_f32 v{50+2*r}, v{50+2*r}, v48\nv_fmac_f32 v{51+2*r}, v48, v48\nv_add_f32 v{50+2*r}, v{50+2*r}, v49\nv_fmac_f32 v{51+2*r}, v49, v49")
    for ctl in ("row_shr:1", "row_shr:2", "row_shr:4", "row_shr:8"):
        for v in range(50, 54): p(f"v_add_f32_dpp v{v}, v{v}, v{v} {ctl} row_mask:0xf bank_mask:0xf bound_ctrl:0")
    for v in range(50, 54): p(f"v_add_f32_dpp v{v}, v{v}, v{v} row_bcast:15 row_mask:0xa bank_mask:0xf")
    for v in range(50, 54): p(f"v_add_f32_dpp v{v}, v{v}, v{v} row_bcast:31 row_mask:0xc bank_mask:0xf")
    for r in range(2):
        s, q = 50 + 2*r, 51 + 2*r
        p(f"v_mul_f32 v{s}, {fhex(1.0/512)}, v{s}\nv_mul_f32 v{q}, {fhex(1.0/512)}, v{q}")
        p(f"v_fma_f32 v{q}, -v{s}, v{s}, v{q}\nv_max_f32 v{q}, 0, v{q}\nv_add_f32 v{q}, {fhex(1e-5)}, v{q}")
        p(f"v_rsq_f32 v{q}, v{q}")
        p(f"v_mul_f32 v{54+2*r}, {fhex(LOG2E)}, v{q}")
        p(f"v_mul_f32 v{55+2*r}, v{54+2*r}, v{s}\nv_sub_f32 v{55+2*r}, 0, v{55+2*r}")
    get_nonce(p)
    p(f"v_mov_b32 v60, v56\nv_mov_b32 v61, v57\nv_mov_b32 v56, s{sNONCE}\nv_mov_b32 v57, s{sNONCE}\nv_mov_b32 v62, s{sNONCE}\nv_mov_b32 v63, s{sNONCE}")
    p(f"s_lshl_b32 s{sT0}, s{sZ}, 4\ns_add_u32 s{sT0}, s{sT0}, {WS_STG}\nv_mov_b32 v2, 0")
    p(f"s_mov_b32 exec_lo, 0\ns_mov_b32 exec_hi, 0x80000000")
    p(f"buffer_store_dwordx4 v[54:57], v2, s[{S_WS}:{S_WS+3}], s{sT0} offen sc1\nbuffer_store_dwordx4 v[60:63], v2, s[{S_WS}:{S_WS+3}], s{sT0} offen offset:16 sc1")
    p(f"s_mov_b64 exec, -1")

def A_setup(p, role):
    A = AR
    p(f"s_and_b32 s{sT0}, s{sW4}, 1\ns_lshr_b32 s{sT1}, s{sW4}, 1")
    p(f"v_and_b32 v2, 31, v1\nv_lshrrev_b32 v3, 5, v1")
    p(f"v_lshrrev_b32 v4, 1, v2\nv_and_b32 v4, 7, v4\nv_xor_b32 v4, v4, v3\nv_lshlrev_b32 v4, 4, v4")
    p(f"v_lshlrev_b32 v5, 7, v2\nv_add_u32 v4, v4, v5\ns_lshl_b32 s{sT2}, s{sT0}, 13\nv_add_u32 v4, s{sT2}, v4")
    for pp in range(4):
        p(f"v_xor_b32 v{A.AX+pp}, {pp*32}, v4\nv_add_u32 v{A.AX2+pp}, 65536, v{A.AX+pp}")
    p(f"v_lshrrev_b32 v2, 5, v1\nv_lshlrev_b32 v2, 3, v2\nv_and_b32 v3, 15, v1\nv_lshrrev_b32 v4, 2, v3\nv_add_u32 v2, v2, v4\nv_lshlrev_b32 v2, 7, v2")
    p(f"v_lshrrev_b32 v4, 3, v3\nv_lshlrev_b32 v4, 6, v4\nv_add_u32 v2, v2, v4")
    p(f"v_lshrrev_b32 v4, 4, v1\nv_and_b32 v4, 1, v4\nv_lshlrev_b32 v4, 5, v4\nv_add_u32 v2, v2, v4\nv_and_b32 v4, 3, v3\nv_lshlrev_b32 v4, 3, v4\nv_add_u32 v2, v2, v4")
    if role == 0:
        p(f"s_lshl_b32 s{sT2}, s{sT0}, 6\nv_xor_b32 v2, s{sT2}, v2\ns_lshl_b32 s{sT2}, s{sT1}, 13\ns_add_u32 s{sT2}, s{sT2}, 16384")
        p(f"v_add_u32 v{A.AW}, s{sT2}, v2\nv_xor_b32 v{A.AW+1}, 64, v{A.AW}")
    else:
        p(f"s_lshl_b32 s{sT2}, s{sT1}, 6\nv_xor_b32 v2, s{sT2}, v2")
        p(f"v_add_u32 v{A.AW}, 16384, v2\nv_add_u32 v{A.AW+1}, {16384+8192}, v2")
    p(f"v_add_u32 v{A.AW2}, 65536, v{A.AW}\nv_add_u32 v{A.AW2+1}, 65536, v{A.AW+1}")
    make_sel(p, A.SEL, 2, 3)
    p(f"s_cmp_ge_u32 s{sI}, 8\ns_cselect_b32 s{sT2}, -1, 0")
    for k in range(4):
        p(f"v_and_b32 v{A.SEL2+k}, s{sT2}, v{A.SEL+k}")
    p(f"s_not_b32 s{sT2}, s{sT2}")
    for k in range(4):
        p(f"v_and_b32 v{A.SEL+k}, s{sT2}, v{A.SEL+k}")
    p(f"v_mov_b32 v2, {L_CNT}\nv_mov_b32 v3, 0\nds_write_b32 v2, v3\nds_write_b32 v2, v3 offset:4")
    p(f"v_mov_b32 v2, {L_LF}\nv_mov_b32 v4, 0\nv_mov_b32 v5, 0\nv_mov_b32 v6, 0\nv_mov_b32 v7, 0\nds_write_b128 v2, v[4:7]\nds_write_b128 v2, v[4:7] offset:16")

def poll_check(p, reg, expect, addr_reg, srd_):
    L = newlbl("L_pc")
    p(f"v_cmp_ne_u32 vcc, {expect}, v{reg}\ns_cbranch_vccz {L}x")
    p(f"s_mov_b32 s3, 0\n{L}:\ns_add_u32 s3, s3, 1\ns_cmp_gt_u32 s3, {SPIN}\ns_cbranch_scc1 {L}x")
    p(f"buffer_load_dword v{reg}, v{addr_reg}, s[{srd_}:{srd_+3}], 0 offen sc1\ns_waitcnt vmcnt(0)\nv_cmp_ne_u32 vcc, {expect}, v{reg}\ns_cbranch_vccnz {L}\n{L}x:")

def w2_touch(p, dst):
    p(f"s_lshl_b32 s{sT2}, s{sC}, 7\ns_lshr_b32 s{sT1}, s2, 3\ns_and_b32 s{sT1}, s{sT1}, 7")
    p(f"s_mul_i32 s{sT3}, s{sT1}, 224\ns_mul_i32 s{sT4}, s{sW4}, 56\ns_add_u32 s{sT3}, s{sT3}, s{sT4}\ns_lshl_b32 s{sT3}, s{sT3}, 10\ns_add_u32 s{sT3}, s{sT3}, s{sT2}")
    p(f"v_min_u32 v2, 55, v1\nv_lshlrev_b32 v2, 10, v2\nbuffer_load_dword v{dst}, v2, s[{S_W2}:{S_W2+3}], s{sT3} offen")
    p(f"s_lshl_b32 s{sT3}, s{sT1}, 6\ns_lshl_b32 s{sT4}, s{sW4}, 4\ns_add_u32 s{sT3}, s{sT3}, s{sT4}\ns_lshl_b32 s{sT3}, s{sT3}, 10\ns_add_u32 s{sT3}, s{sT3}, s{sT2}")
    p(f"v_and_b32 v2, 15, v1\nv_lshlrev_b32 v2, 10, v2\ns_mov_b64 exec, 0xffff\nbuffer_load_dword v{dst}, v2, s[{S_WO}:{S_WO+3}], s{sT3} offen\ns_mov_b64 exec, -1")

def w2_touch_piece(p, dst, piece, npieces):
    nw = 56 // npieces; no = 16 // npieces
    p(f"s_lshl_b32 s{sT2}, s{sC}, 7\ns_lshr_b32 s{sT1}, s2, 3\ns_and_b32 s{sT1}, s{sT1}, 7")
    p(f"s_mul_i32 s{sT3}, s{sT1}, 224\ns_mul_i32 s{sT4}, s{sW4}, 56\ns_add_u32 s{sT3}, s{sT3}, s{sT4}\ns_add_u32 s{sT3}, s{sT3}, {piece*nw}\ns_lshl_b32 s{sT3}, s{sT3}, 10\ns_add_u32 s{sT3}, s{sT3}, s{sT2}")
    p(f"v_lshlrev_b32 v2, 10, v1\ns_mov_b64 exec, {hex((1 << nw) - 1)}\nbuffer_load_dword v{dst}, v2, s[{S_W2}:{S_W2+3}], s{sT3} offen")
    p(f"s_lshl_b32 s{sT3}, s{sT1}, 6\ns_lshl_b32 s{sT4}, s{sW4}, 4\ns_add_u32 s{sT3}, s{sT3}, s{sT4}\ns_add_u32 s{sT3}, s{sT3}, {piece*no}\ns_lshl_b32 s{sT3}, s{sT3}, 10\ns_add_u32 s{sT3}, s{sT3}, s{sT2}")
    p(f"s_mov_b64 exec, {hex((1 << no) - 1)}\nbuffer_load_dword v{dst}, v2, s[{S_WO}:{S_WO+3}], s{sT3} offen\ns_mov_b64 exec, -1")

def smem_warm(p):
    n = int(OPT.get("smw", 1))
    p(f"s_mul_i32 s{sT0}, s2, 56\ns_mul_i32 s{sT1}, s{sW4}, 14\ns_add_u32 s{sT0}, s{sT0}, s{sT1}\ns_lshl_b32 s{sT0}, s{sT0}, 7")
    p(f"s_add_u32 s94, s{KW2}, s{sT0}\ns_addc_u32 s95, s{KW2+1}, 0")
    for i in range(14):
        for h in range(n): p(f"s_load_dword s76, s[94:95], {i*128 + h*64}")
    p(f"s_lshl_b32 s{sT0}, s2, 4\ns_lshl_b32 s{sT1}, s{sW4}, 2\ns_add_u32 s{sT0}, s{sT0}, s{sT1}\ns_lshl_b32 s{sT0}, s{sT0}, 7")
    p(f"s_add_u32 s98, s{KWO}, s{sT0}\ns_addc_u32 s99, s{KWO+1}, 0")
    for i in range(4):
        for h in range(n): p(f"s_load_dword s76, s[98:99], {i*128 + h*64}")

def w2_touch_split(p, dst, which):
    p(f"s_lshl_b32 s{sT2}, s{sC}, 7\ns_lshr_b32 s{sT1}, s2, 3\ns_and_b32 s{sT1}, s{sT1}, 7\ns_mul_i32 s{sT4}, s{sW4}, 448")
    if which == 0:
        p(f"s_lshl_b32 s{sT3}, s{sT1}, 5\nv_and_b32 v2, 31, v1\nv_add_u32 v2, s{sT3}, v2\nv_add_u32 v3, 192, v2\nv_cmp_gt_u32 vcc, 128, v2\nv_cndmask_b32 v2, v3, v2, vcc")
        p(f"v_add_u32 v2, s{sT4}, v2\nv_lshlrev_b32 v2, 10, v2\ns_mov_b32 exec_hi, 0\nbuffer_load_dword v{dst}, v2, s[{S_W2}:{S_W2+3}], s{sT2} offen\ns_mov_b32 exec_hi, -1")
    else:
        p(f"s_mul_i32 s{sT3}, s{sT1}, 24\ns_add_u32 s{sT3}, s{sT3}, s{sT4}\ns_add_u32 s{sT3}, s{sT3}, 128\ns_lshl_b32 s{sT3}, s{sT3}, 10\ns_add_u32 s{sT3}, s{sT3}, s{sT2}")
        p(f"v_lshlrev_b32 v2, 10, v1\ns_mov_b64 exec, 0xffffff\nbuffer_load_dword v{dst}, v2, s[{S_W2}:{S_W2+3}], s{sT3} offen")
        p(f"s_lshl_b32 s{sT3}, s{sW4}, 7\ns_lshl_b32 s{sT4}, s{sT1}, 4\ns_add_u32 s{sT3}, s{sT3}, s{sT4}\ns_lshl_b32 s{sT3}, s{sT3}, 10\ns_add_u32 s{sT3}, s{sT3}, s{sT2}")
        p(f"s_mov_b64 exec, 0xffff\nbuffer_load_dword v{dst}, v2, s[{S_WO}:{S_WO+3}], s{sT3} offen\ns_mov_b64 exec, -1")

def mall_warm(p, dst):
    L = newlbl("L_mw")
    p(f"s_cmp_ge_u32 s{sW4}, 2\ns_cbranch_scc1 {L}a")
    p(f"s_mul_i32 s{sT0}, s2, 56\ns_mul_i32 s{sT1}, s{sW4}, 28\ns_add_u32 s{sT0}, s{sT0}, s{sT1}\ns_lshl_b32 s{sT0}, s{sT0}, 7\nv_min_u32 v2, 27, v1\nv_lshlrev_b32 v2, 7, v2")
    p(f"s_mov_b32 exec_hi, 0\nbuffer_load_dword v{dst}, v2, s[{S_W2}:{S_W2+3}], s{sT0} offen\ns_mov_b32 exec_hi, -1\ns_branch {L}")
    p(f"{L}a:\ns_cmp_lg_u32 s{sW4}, 2\ns_cbranch_scc1 {L}")
    p(f"s_lshl_b32 s{sT0}, s2, 11\nv_lshlrev_b32 v2, 7, v1\ns_mov_b64 exec, 0xffff\nbuffer_load_dword v{dst}, v2, s[{S_WO}:{S_WO+3}], s{sT0} offen\ns_mov_b64 exec, -1")
    p(f"{L}:")

def wb_touch(p, dst):
    p(f"s_and_b32 s{sT0}, s{sI}, 7\ns_lshl_b32 s{sT0}, s{sT0}, 6\ns_lshl_b32 s{sT1}, s{sW4}, 4\ns_add_u32 s{sT0}, s{sT0}, s{sT1}\ns_mul_i32 s{sT0}, s{sT0}, s{sRS}")
    p(f"s_lshl_b32 s{sT1}, s{sCOLB}, 1\ns_and_b32 s{sT1}, s{sT1}, 0xffffff80\ns_add_u32 s{sT0}, s{sT0}, s{sT1}")
    p(f"v_lshrrev_b32 v2, 1, v1\nv_and_b32 v2, 15, v2\nv_mul_lo_u32 v2, v2, s{sRS}\nv_and_b32 v3, 1, v1\nv_lshlrev_b32 v3, 7, v3\nv_add_u32 v2, v2, v3")
    p(f"s_mov_b32 exec_hi, 0\nbuffer_load_dword v{dst}, v2, s[{S_W}:{S_W+3}], s{sT0} offen\ns_mov_b32 exec_hi, -1")

def A_phaseA(p, role):
    A = AR
    nsm = 1 if role == 0 else 2
    def reads(k):
        s_, pp = k // 4, k % 4
        slot = s_ % 4; b = k % 3
        ax = (A.AX2 if slot >= 2 else A.AX) + pp
        aw = (A.AW2 if slot >= 2 else A.AW)
        so = (slot & 1) * SLOT
        r = []
        for be in range(2):
            for u in range(2):
                r.append(f"ds_read_b64_tr_b16 v[{A.WF+8*b+4*be+2*u}:{A.WF+8*b+4*be+2*u+1}], v{aw+be} offset:{so + pp*2048 + u*512}")
        for tt in range(2):
            r.append(f"ds_read_b128 v[{A.XF+8*b+4*tt}:{A.XF+8*b+4*tt+3}], v{ax} offset:{so + tt*4096}")
        if OPT.get("noAreads"): r = ["s_nop 0"] * 6
        return r
    def mfmas(k):
        b = k % 3; m = []
        if OPT.get("noAmfma"): return ["s_nop 0"] * 4
        for tt in range(2):
            for be in range(2):
                acc = A.ACC + 32*tt + 16*be
                c = "0" if k == 0 else f"v[{acc}:{acc+15}]"
                w = f"v[{A.WF+8*b+4*be}:{A.WF+8*b+4*be+3}]"; x = f"v[{A.XF+8*b+4*tt}:{A.XF+8*b+4*tt+3}]"
                m.append(f"v_mfma_f32_32x32x16_bf16 v[{acc}:{acc+15}], {w}, {x}, {c}" if role == 0 else f"v_mfma_f32_32x32x16_bf16 v[{acc}:{acc+15}], {x}, {w}, {c}")
        if k < 4:
            sel = A.SEL if k < 2 else A.SEL2
            for be in range(nsm):
                c = "0" if k == 0 else f"v[{A.CS+4*be}:{A.CS+4*be+3}]"
                m.append(f"v_mfma_f32_16x16x32_bf16 v[{A.CS+4*be}:{A.CS+4*be+3}], v[{A.WF+8*b+4*be}:{A.WF+8*b+4*be+3}], v[{sel}:{sel+3}], {c}")
        return m
    p("s_waitcnt lgkmcnt(0)")
    stamp(p, "A:pre0")
    p("s_barrier")
    stamp(p, "A:post0")
    for r in reads(0) + reads(1): p(r)
    for k in range(32):
        m = mfmas(k)
        bar = (k + 2) % 4 == 0 and k + 2 < 32
        p(f"s_waitcnt lgkmcnt({0 if (bar or k >= 30) else 6})")
        if k in (4, 8, 16, 24): stamp(p, f"A:k{k}")
        p(m[0])
        if k == int(OPT.get("mwk", -1)): mall_warm(p, A.PF)
        if k == int(OPT.get("wbk", 4)) and not OPT.get("ntWB"): wb_touch(p, A.PF)
        if OPT.get("w2ks"):
            ks = [int(x) for x in OPT["w2ks"].split(",")]
            if k in ks: w2_touch_piece(p, A.PF, ks.index(k), len(ks))
        elif OPT.get("w2split"):
            if k == int(OPT.get("w2k", 28)): w2_touch_split(p, A.PF, 0)
        elif k == int(OPT.get("w2k", 16)) and not OPT.get("ntW2") and not OPT.get("w2ch"): w2_touch(p, A.PF)
        if k == 5:
            p(f"v_and_b32 v2, 15, v1\nv_lshrrev_b32 v3, 4, v1\nv_cmp_gt_u32 vcc, 2, v2")
            p(f"v_lshlrev_b32 v2, 6, v2\nv_lshlrev_b32 v3, 4, v3\nv_add_u32 v2, v2, v3")
            if role == 0: p(f"s_lshl_b32 s{sT0}, s{sW4}, 7")
            else:         p(f"s_lshr_b32 s{sT0}, s{sW4}, 1\ns_lshl_b32 s{sT0}, s{sT0}, 7")
            p(f"s_add_u32 s{sT0}, s{sT0}, {L_CSPL}\nv_add_u32 v2, s{sT0}, v2")
            p(f"s_and_saveexec_b64 s[{sTMP}:{sTMP+1}], vcc")
            for be in range(nsm):
                p(f"ds_write_b128 v2, v[{A.CS+4*be}:{A.CS+4*be+3}] offset:{be*256}")
            p(f"s_mov_b64 exec, s[{sTMP}:{sTMP+1}]")
        if k + 2 < 32:
            if bar: p("s_barrier")
            rr = reads(k + 2)
            rest = m[1:]
            ri = 0
            for mm in rest:
                for _ in range(2):
                    if ri < len(rr): p(rr[ri]); ri += 1
                p(mm)
            while ri < len(rr): p(rr[ri]); ri += 1
        else:
            for mm in m[1:]: p(mm)

def A_epi_F(p, fill):
    p("L_Aepi0:")
    A = AR; E = A.E
    E = 80
    RS, NMR, CSV, T, OUT, VA = E, E+2, E+4, E+36, E+52, E+60
    stamp(p, "A:pre8")
    p("s_barrier")
    stamp(p, "A:post8")
    p(f"s_and_b32 s{sT0}, s{sW4}, 1\ns_lshr_b32 s{sT1}, s{sW4}, 1")
    p(f"v_and_b32 v2, 31, v1\nv_lshlrev_b32 v2, 2, v2\ns_lshl_b32 s{sT2}, s{sT0}, 8\ns_add_u32 s{sT2}, s{sT2}, {L_RS}\nv_add_u32 v2, s{sT2}, v2")
    for tt in range(2):
        p(f"ds_read_b32 v{RS+tt}, v2 offset:{tt*128}\nds_read_b32 v{NMR+tt}, v2 offset:{512+tt*128}")
    p(f"v_lshrrev_b32 v3, 5, v1\nv_lshlrev_b32 v3, 4, v3\ns_lshl_b32 s{sT2}, s{sT1}, 8\ns_add_u32 s{sT2}, s{sT2}, {L_CSA}\nv_add_u32 v3, s{sT2}, v3")
    p(f"s_lshl_b32 s{sT2}, s{sT0}, 7\nv_xor_b32 v{VA}, s{sT2}, v3\nv_xor_b32 v{VA+1}, 128, v{VA}")
    for be in range(2):
        for q in range(4):
            p(f"ds_read_b128 v[{CSV+16*be+4*q}:{CSV+16*be+4*q+3}], v{VA+be} offset:{q*32}")
    p(f"v_lshlrev_b32 v{VA+2}, 4, v1")
    p(f"s_lshl_b32 s{sT2}, s{sI}, 2\ns_lshl_b32 s{sT3}, s{sT0}, 1\ns_add_u32 s{sT2}, s{sT2}, s{sT3}\ns_mul_i32 s{sT2}, s{sT2}, 112")
    p(f"s_lshr_b32 s{sT3}, s{sCOLA}, 4\ns_lshl_b32 s{sT4}, s{sT1}, 2\ns_add_u32 s{sT3}, s{sT3}, s{sT4}\ns_add_u32 s{sT2}, s{sT2}, s{sT3}")
    p(f"s_lshl_b32 s{sHB}, s{sT2}, 10\ns_add_u32 s{sHB}, s{sHB}, {WS_H}")
    p(f"s_lshl_b32 s{sT5}, s{sT0}, 11\ns_add_u32 s{sTMP}, s{sHB}, s{sT5}\ns_xor_b32 s{sT5}, s{sT5}, 2048\ns_add_u32 s{sTMP+1}, s{sHB}, s{sT5}")
    p("s_waitcnt lgkmcnt(0)")
    stamp(p, "A:epi_start")
    def fa_addr(base):
        return (f"s_lshl_b32 s{sT2}, s{sI}, 1\ns_and_b32 s{sT3}, s{sW4}, 1\ns_add_u32 s{sT2}, s{sT2}, s{sT3}\ns_lshl_b32 s{sT2}, s{sT2}, 7\n"
                f"s_lshl_b32 s{sT3}, s{sJ}, 1\ns_lshr_b32 s{sT4}, s{sW4}, 1\ns_add_u32 s{sT3}, s{sT3}, s{sT4}\ns_lshl_b32 s{sT3}, s{sT3}, 2\n"
                f"s_add_u32 s{sT0}, s{sT2}, s{sT3}\ns_add_u32 s{sT0}, s{sT0}, {base}")
    ch = 0
    nops_after4 = 0
    for be in range(2):
        for qp in range(2):
            for tt in range(2):
                acc = A.ACC + 32*tt + 16*be + 8*qp
                o = OUT + 4*(ch & 1)
                silu_chunk(p, acc, CSV + 16*be + 8*qp, RS+tt, NMR+tt, T, o)
                if ch in (1, 3, 5, 7): stamp(p, f"A:ch{ch}")
                if ch == int(OPT.get("fa1ch", 6)):
                    p(f"s_waitcnt vmcnt({nops_after4})")
                    store_flag(p, fa_addr(WS_FA))
                    stamp(p, "A:FA1set")
                p(f"s_add_u32 s{sT2}, s{sTMP+be}, {tt*112*1024 + qp*1024}")
                p(f"buffer_store_dwordx4 v[{o}:{o+3}], v{VA+2}, s[{S_WS}:{S_WS+3}], s{sT2} offen sc1")
                if ch >= 4: nops_after4 += 1
                if OPT.get("w2ch") and ch == int(OPT["w2ch"]):
                    w2_touch(p, A.PF)
                    if ch >= 3: nops_after4 += 2
                fi = ch - (8 - len(fill) - 1)
                if fill and 0 <= fi < len(fill) and ch < 7:
                    p(fill[fi])
                    if ch >= 3: nops_after4 += 2
                ch += 1
                pass
    p(fa_addr(WS_FA2))
    p(f"s_mov_b32 s{sHB}, s{sT0}")

def A_epi_Q(p, fill):
    p("L_Aepi1:")
    A = AR; E = A.E
    ST = E; CSK, CSVv = E+32, E+33; T = E+34; PK = E+42; VV = E+58; Z = E+74; D2 = E+76; VA = E+92
    stamp(p, "A:pre8")
    p("s_barrier")
    stamp(p, "A:post8")
    p(f"s_and_b32 s{sT0}, s{sW4}, 1\ns_lshr_b32 s{sT1}, s{sW4}, 1")
    p(f"v_and_b32 v2, 31, v1\nv_lshlrev_b32 v2, 2, v2\ns_lshl_b32 s{sT2}, s{sT1}, 7\ns_add_u32 s{sT2}, s{sT2}, {L_CSA}\nv_add_u32 v2, s{sT2}, v2")
    p(f"ds_read_b32 v{CSK}, v2\nds_read_b32 v{CSVv}, v2 offset:256")
    p(f"v_lshrrev_b32 v3, 5, v1\nv_lshlrev_b32 v3, 4, v3\ns_lshl_b32 s{sT2}, s{sT0}, 8\ns_add_u32 s{sT2}, s{sT2}, {L_RS}\nv_add_u32 v{VA}, s{sT2}, v3")
    p(f"v_mov_b32 v{Z}, 0")
    def streads(g):
        tt, hf = g >> 1, g & 1
        b = ST + 16*(g & 1)
        for q2 in range(2):
            off = (32*tt + 8*(2*hf+q2)) * 4
            p(f"ds_read_b128 v[{b+4*q2}:{b+4*q2+3}], v{VA} offset:{off}\nds_read_b128 v[{b+8+4*q2}:{b+8+4*q2+3}], v{VA} offset:{off+512}")
    streads(0)
    nf = 0
    for g in range(4):
        tt, hf = g >> 1, g & 1
        if g < 3: streads(g + 1); p("s_waitcnt lgkmcnt(4)")
        else: p("s_waitcnt lgkmcnt(0)")
        RSV = ST + 16*(g & 1); NMV = RSV + 8
        k = A.ACC + 32*tt + 8*hf; v = A.ACC + 32*tt + 16 + 8*hf
        for e in range(8): p(f"v_mul_f32 v{T+e}, v{NMV+e}, v{CSVv}")
        for e in range(8): p(f"v_fma_f32 v{v+e}, v{v+e}, v{RSV+e}, v{T+e}")
        for e in range(4): p(f"v_cvt_pk_bf16_f32 v{VV+8*tt+4*hf+e}, v{v+2*e}, v{v+2*e+1}")
        if nf < len(fill): p(fill[nf]); nf += 1
        if OPT.get("w2ch") and not OPT.get("w2qlate") and g == min(3, int(OPT["w2ch"]) // 2): w2_touch(p, A.PF)
        for e in range(8): p(f"v_mul_f32 v{T+e}, v{NMV+e}, v{CSK}")
        for e in range(8): p(f"v_fma_f32 v{k+e}, v{k+e}, v{RSV+e}, v{T+e}")
        phi_elems(p, k, 8, T)
        for e in range(8): p(f"v_add_f32 v{Z}, v{Z}, v{k+e}")
        for e in range(4): p(f"v_cvt_pk_bf16_f32 v{PK+8*tt+4*hf+e}, v{k+2*e}, v{k+2*e+1}")
        c = "0" if g == 0 else f"v[{D2}:{D2+15}]"
        p(f"v_mfma_f32_32x32x16_bf16 v[{D2}:{D2+15}], v[{PK+8*tt+4*hf}:{PK+8*tt+4*hf+3}], v[{VV+8*tt+4*hf}:{VV+8*tt+4*hf+3}], {c}")
        if nf < len(fill): p(fill[nf]); nf += 1
        pass
    p(f"v_mov_b32 v{T}, v{Z}")
    p(f"v_permlane32_swap_b32 v{T}, v{Z}")
    p(f"v_add_f32 v{Z}, v{Z}, v{T}")
    p(f"s_mov_b32 s{sMASKH}, 0xffff0000\ns_mov_b32 s{sMASKH+1}, 0xffff0000")
    for r in range(8): p(f"v_cndmask_b32 v{T+r}, v{D2+r}, v{D2+8+r}, s[{sMASKH}:{sMASKH+1}]")
    p(f"s_lshl_b32 s{sT2}, s{sJ}, 1\ns_lshr_b32 s{sT1}, s{sW4}, 1\ns_add_u32 s{sZ}, s{sT2}, s{sT1}\ns_lshl_b32 s{sT2}, s{sZ}, 12\ns_add_u32 s{sHB}, s{sT2}, {WS_KVZ}")
    p(f"v_lshlrev_b32 v{VA+1}, 2, v1")
    for r in range(8):
        p(f"buffer_atomic_add_f32 v{T+r}, v{VA+1}, s[{S_WS}:{S_WS+3}], s{sHB} offen offset:{r*256}")
    p(f"v_lshrrev_b32 v2, 3, v1\nv_and_b32 v2, 1, v2\nv_lshlrev_b32 v2, 2, v2\nv_and_b32 v3, 3, v1\nv_add_u32 v2, v2, v3\nv_lshlrev_b32 v2, 8, v2")
    p(f"v_lshrrev_b32 v3, 4, v1\nv_and_b32 v3, 1, v3\nv_lshlrev_b32 v3, 1, v3\nv_lshrrev_b32 v4, 2, v1\nv_and_b32 v4, 1, v4\nv_add_u32 v3, v3, v4\nv_lshlrev_b32 v3, 2, v3")
    p(f"v_add_u32 v2, v2, v3")
    p(f"s_mov_b32 exec_hi, 0")
    p(f"buffer_atomic_add_f32 v{Z}, v2, s[{S_WS}:{S_WS+3}], s{sHB} offen offset:2048")
    p(f"s_mov_b32 exec_hi, -1")
    while nf < len(fill): p(fill[nf]); nf += 1
    p(f"s_lshl_b32 s{sT0}, s{sZ}, 7\ns_add_u32 s{sT0}, s{sT0}, {WS_C2}\nv_mov_b32 v2, 0\nv_mov_b32 v3, 1")
    p("s_waitcnt vmcnt(0)")
    p(f"s_mov_b64 exec, 1\nbuffer_atomic_add v3, v2, s[{S_WS}:{S_WS+3}], s{sT0} offen sc1\ns_mov_b64 exec, -1")
    if OPT.get("w2qlate"): w2_touch(p, A.PF)

class P2:
    ACCF = 16; ACCS = 80; AF = 144; BF = 200
    T = 216; XR = 240; VL16 = 250; VW2 = 251; VBR = 252; VX = 254; VW2B = 249; VBR2 = 236; VTMPB = 248
DA = DB = 6; NA = 7; NST = 36
L_REDF = 0; L_REDS = 49152

def p2_setup(p):
    P = P2
    p(f"s_and_b32 s{sT0}, s2, 7\ns_lshr_b32 s{sT1}, s2, 3")
    if OPT.get("map2", "512x256") == "512x256":
        p(f"s_lshr_b32 s{sT2}, s{sT0}, 1\ns_lshl_b32 s{sT2}, s{sT2}, 3\ns_and_b32 s{sT3}, s{sT1}, 7\ns_add_u32 s{sT2i}, s{sT2}, s{sT3}")
        p(f"s_and_b32 s{sT2}, s{sT0}, 1\ns_lshl_b32 s{sT2}, s{sT2}, 2\ns_lshr_b32 s{sT3}, s{sT1}, 3\ns_add_u32 s{sC}, s{sT2}, s{sT3}")
    else:
        p(f"s_lshl_b32 s{sT2}, s{sT0}, 2\ns_and_b32 s{sT3}, s{sT1}, 3\ns_add_u32 s{sT2i}, s{sT2}, s{sT3}\ns_lshr_b32 s{sC}, s{sT1}, 2")
    p(f"s_lshr_b32 s{sT0}, s{sW4}, 1\ns_lshl_b32 s{sT1}, s{sT2i}, 1")
    p(f"s_add_u32 s{sT2}, s{sT1}, s{sT0}\ns_xor_b32 s{sT3}, s{sT2}, 1")
    p(f"s_mul_i32 s{sT4}, s{sW4}, 28")
    for (d, src) in ((sAH, sT2), (sAH1, sT3)):
        p(f"s_mul_i32 s{sT5}, s{src}, 112\ns_add_u32 s{sT5}, s{sT5}, s{sT4}\ns_lshl_b32 s{sT5}, s{sT5}, 10\ns_add_u32 s{d}, s{sT5}, {WS_H}")
    p(f"s_lshl_b32 s{sT4}, s{sW4}, 3")
    for (d, src) in ((sAO, sT2), (sAO1, sT3)):
        p(f"s_lshl_b32 s{sT5}, s{src}, 5\ns_add_u32 s{sT5}, s{sT5}, s{sT4}\ns_lshl_b32 s{sT5}, s{sT5}, 10\ns_add_u32 s{d}, s{sT5}, {WS_O}")
    p(f"s_lshl_b32 s{sT0}, s{sC}, 7\ns_mul_i32 s{sT1}, s{sW4}, {28*16*1024}\ns_add_u32 s{sBW}, s{sT0}, s{sT1}")
    p(f"s_lshl_b32 s{sT1}, s{sW4}, 17\ns_add_u32 s{sBO}, s{sT0}, s{sT1}")
    p(f"s_mul_i32 s{sLB}, s{sW4}, {NS*2048}\ns_add_u32 s{sLB}, s{sLB}, {L_P2}")
    p(f"v_lshlrev_b32 v{P.VL16}, 4, v1")
    p(f"v_lshrrev_b32 v2, 3, v1\nv_lshlrev_b32 v2, 10, v2\nv_and_b32 v3, 7, v1\nv_lshrrev_b32 v4, 4, v1\nv_and_b32 v4, 1, v4\nv_lshlrev_b32 v4, 2, v4\nv_xor_b32 v3, v3, v4\nv_lshlrev_b32 v3, 4, v3\nv_add_u32 v{P.VW2}, v2, v3\nv_add_u32 v{P.VW2B}, 7168, v{P.VW2}")
    p(f"v_lshrrev_b32 v2, 5, v1\nv_lshlrev_b32 v2, 2, v2\nv_and_b32 v3, 15, v1\nv_lshrrev_b32 v4, 2, v3\nv_add_u32 v2, v2, v4\nv_lshlrev_b32 v2, 7, v2")
    p(f"v_lshrrev_b32 v4, 3, v3\nv_lshlrev_b32 v4, 6, v4\nv_add_u32 v2, v2, v4")
    p(f"v_lshrrev_b32 v4, 4, v1\nv_and_b32 v4, 1, v4\nv_lshlrev_b32 v4, 5, v4\nv_add_u32 v2, v2, v4\nv_and_b32 v4, 3, v3\nv_lshlrev_b32 v4, 3, v4\nv_add_u32 v2, v2, v4")
    p(f"s_and_b32 s{sT0}, s{sW4}, 1\ns_lshl_b32 s{sT0}, s{sT0}, 6\nv_xor_b32 v2, s{sT0}, v2\nv_add_u32 v{P.VBR}, s{sLB}, v2\nv_xor_b32 v{P.VBR+1}, 64, v{P.VBR}")
    p(f"s_mul_i32 s{sLB2}, s{sW4}, 12288\ns_add_u32 s{sLB2}, s{sLB2}, 49152")
    p(f"v_mov_b32 v{P.VTMPB}, v2")
    p(f"s_and_b32 s{sBB2}, s{sT2i}, 1\ns_lshl_b32 s{sBB2}, s{sBB2}, 1")
    p(f"s_and_b32 s{sROTH}, s{sC}, 3")
    p(calc_p0(0)); p(calc_rb(0)); p(calc_ra(0))
    p(f"v_and_b32 v2, 31, v1\nv_lshlrev_b32 v2, 10, v2\nv_lshrrev_b32 v3, 5, v1\nv_lshlrev_b32 v3, 4, v3\nv_add_u32 v{P.VX}, v2, v3")

def xres_soff():
    return (f"s_lshl_b32 s{sT0}, s{sT2i}, 6\ns_lshr_b32 s{sT1}, s{sW4}, 1\ns_lshl_b32 s{sT1}, s{sT1}, 5\ns_add_u32 s{sT0}, s{sT0}, s{sT1}\ns_lshl_b32 s{sT0}, s{sT0}, 10\n"
            f"s_lshl_b32 s{sT1}, s{sC}, 7\ns_add_u32 s{sT0}, s{sT0}, s{sT1}\ns_and_b32 s{sT1}, s{sW4}, 1\ns_lshl_b32 s{sT1}, s{sT1}, 6\ns_add_u32 s{sT0}, s{sT0}, s{sT1}")
def xres_load():
    P = P2
    return xres_soff() + "\n" + "\n".join(f"buffer_load_dwordx4 v[{P.XR+4*qp}:{P.XR+4*qp+3}], v{P.VX}, s[{S_X}:{S_X+3}], s{sT0} offen offset:{qp*32}" for qp in range(2))

def parts_list():
    if OPT.get("sfirst"): return [(0, 8, 2, 0), (8, 8, 2, 1), (16, 8, 2, 3), (24, 12, 3, 2)]
    return [(0, 8, 2, 0), (8, 8, 2, 1), (16, 12, 3, 2), (28, 8, 2, 3)]
def step_info(n):
    for (f, cnt, sb, kind) in parts_list():
        if f <= n < f + cnt: return kind, (n - f) // sb, (n - f) % sb
def is_s(n): return step_info(n)[0] == 3
def first_of(kind): return [f for (f, c, sb, k_) in parts_list() if k_ == kind][0]
sRA = 46
sRB = 73
RBREG = [73, 74, 75, 97]
sP0L = [58, 59, 60, 61]
sP0S = [76, 77, 78, 79]
def P0regs(part): return sP0S if part == 0 else sP0L
def calc_p0(part):
    o = []
    sP0 = P0regs(part)
    for u in range(4):
        d = sP0[u]
        o.append(f"s_add_u32 s{d}, s{sROTH}, {u}\ns_and_b32 s{d}, s{d}, 3" if OPT.get("rot") else f"s_mov_b32 s{d}, {u}")
        if part < 2:
            x = f"s_mov_b32 s{sT4}, s{sBB2}" if part == 0 else f"s_xor_b32 s{sT4}, s{sBB2}, 2"
            o.append(f"s_and_b32 s{sT3}, s{d}, 1\ns_lshl_b32 s{sT3}, s{sT3}, 2\ns_and_b32 s{d}, s{d}, 2\ns_mul_i32 s{d}, s{d}, 10\ns_add_u32 s{d}, s{d}, s{sT3}\n{x}\ns_add_u32 s{d}, s{d}, s{sT4}")
        elif part == 2:
            o.append(f"s_mul_i32 s{d}, s{d}, 3\ns_add_u32 s{d}, s{d}, 8")
        else:
            o.append(f"s_lshl_b32 s{d}, s{d}, 1")
    return "\n".join(o)
def calc_rb(part):
    base = sBO if part == 3 else sBW
    sP0 = P0regs(part)
    return "\n".join(f"s_lshl_b32 s{RBREG[u]}, s{sP0[u]}, 14\ns_add_u32 s{RBREG[u]}, s{RBREG[u]}, s{base}" for u in range(4))
def calc_ra(part):
    base = sAO if part == 3 else sAH
    sP0 = P0regs(part)
    o = []
    for u in range(4):
        o.append(f"s_lshl_b32 s{sT3}, s{sP0[u]}, 10\ns_add_u32 s{sRA+2*u}, s{sT3}, s{base}\ns_add_u32 s{sRA+2*u+1}, s{sT3}, s{base+1}")
    return "\n".join(o)
sROTH = 98
sLB2 = 96
NDEEP = 0
LD0 = 17
NLD = 0
def b_slot(n):
    if NLD == 0 or n < LD0: return sLB, (n % NS) * 2048
    if n < LD0 + NLD: return sLB2, (n - LD0) * 2048
    return sLB, ((n - NLD) % NS) * 2048
def fB(n, split=False):
    P = P2
    sb, so = b_slot(n)
    part, u, e = step_info(n)
    srd_ = S_WO if part == 3 else S_W2
    pre = ""
    if u == 0 and e == 0 and part > 0: pre = calc_p0(part) + "\n" + calc_rb(part) + "\n"
    if e == 0: soff = f"s{RBREG[u]}"; add = ""
    else: soff = f"s{sT0}"; add = f"s_add_u32 s{sT0}, s{RBREG[u]}, {e*16384}\n"
    a = f"{pre}s_add_u32 m0, s{sb}, {so}\n{add}buffer_load_dwordx4 v{P.VW2}, s[{srd_}:{srd_+3}], {soff} offen lds"
    b = f"buffer_load_dwordx4 v{P.VW2B}, s[{srd_}:{srd_+3}], {soff} offen offset:1024 lds"
    return (a, b) if split else a + "\n" + b

def fA(n, split=False):
    P = P2
    buf = P.AF + 8 * (n % NA)
    part, u, e = step_info(n)
    out = []
    for tau in range(2):
        pre = (calc_ra(part) + "\n") if (u == 0 and e == 0 and part > 0 and tau == 0) else ""
        out.append(f"{pre}buffer_load_dwordx4 v[{buf+4*tau}:{buf+4*tau+3}], v{P.VL16}, s[{S_WS}:{S_WS+3}], s{sRA+2*u+tau} offen offset:{e*1024} sc1")
    return out if split else "\n".join(out)

def p2_reads(n):
    P = P2
    sb, so = b_slot(n); buf = P.BF + 8 * (n & 1)
    vb = P.VBR if sb == sLB else P.VBR2
    return [f"ds_read_b64_tr_b16 v[{buf+4*be+2*u}:{buf+4*be+2*u+1}], v{vb+be} offset:{so + u*1024}" for be in range(2) for u in range(2)]

def f_mfmas(n):
    P = P2
    acc0 = P.ACCS if is_s(n) else P.ACCF
    first = n in (0, first_of(3))
    a = P.AF + 8 * (n % NA); b = P.BF + 8 * (n & 1)
    m = []
    for tau in range(2):
        for be in range(2):
            acc = acc0 + 16 * (2*tau + be)
            c = "0" if first else f"v[{acc}:{acc+15}]"
            m.append(f"v_mfma_f32_32x32x16_bf16 v[{acc}:{acc+15}], v[{b+4*be}:{b+4*be+3}], v[{a+4*tau}:{a+4*tau+3}], {c}")
    return m

def fa1_issue(p):
    p(f"s_lshl_b32 s{sT3}, s{sT2i}, 7\ns_lshl_b32 s{sT4}, s{sW4}, 4\ns_add_u32 s{sT3}, s{sT3}, s{sT4}\ns_add_u32 s{sT3}, s{sT3}, {WS_FA}")
    p(f"s_add_u32 s94, s{sWSP}, s{sT3}\ns_addc_u32 s95, s{sWSP+1}, 0")
    p(f"s_load_dwordx4 s[96:99], s[94:95], 0 glc")

def fa1_check(p):
    L = newlbl("L_f1")
    p(f"s_mov_b32 s3, 0\n{L}:\ns_waitcnt lgkmcnt(0)")
    for q in range(4): p(f"s_xor_b32 s{96+q}, s{96+q}, s{sNONCE}")
    p(f"s_or_b32 s96, s96, s97\ns_or_b32 s98, s98, s99\ns_or_b32 s96, s96, s98\ns_cmp_eq_u32 s96, 0\ns_cbranch_scc1 {L}x")
    p(f"s_add_u32 s3, s3, 1\ns_cmp_gt_u32 s3, {SPIN}\ns_cbranch_scc1 {L}x")
    p(f"s_load_dwordx4 s[96:99], s[94:95], 0 glc\ns_branch {L}\n{L}x:")

def relay_poll(p, base, kind, wave):
    L = newlbl("L_rp")
    p(f"s_cmp_lg_u32 s{sW4}, {wave}\ns_cbranch_scc1 {L}e")
    p(f"s_lshl_b32 s{sT3}, s{sT2i}, 7\ns_add_u32 s{sT3}, s{sT3}, {base}\ns_add_u32 s94, s{sWSP}, s{sT3}\ns_addc_u32 s95, s{sWSP+1}, 0")
    p(f"s_mov_b32 s3, 0\n{L}:\ns_load_dwordx16 s[76:91], s[94:95], 0 glc\ns_waitcnt lgkmcnt(0)")
    for q in range(16): p(f"s_xor_b32 s{76+q}, s{76+q}, s{sNONCE}")
    for st in (8, 4, 2, 1):
        for q in range(st): p(f"s_or_b32 s{76+q}, s{76+q}, s{76+q+st}")
    p(f"s_cmp_eq_u32 s76, 0\ns_cbranch_scc1 {L}x\ns_sleep {OPT.get('rsleep', 2)}\ns_add_u32 s3, s3, 1\ns_cmp_gt_u32 s3, {SPIN}\ns_cbranch_scc0 {L}\n{L}x:")
    p(f"v_mov_b32 v2, {L_LF + 4*kind}\nv_mov_b32 v3, 1\nds_write_b32 v2, v3\n{L}e:")

def relay_check(p, kind, vreg):
    L = newlbl("L_rc")
    p(f"v_readfirstlane_b32 s{sT3}, v{vreg}\ns_cmp_lg_u32 s{sT3}, 0\ns_cbranch_scc1 {L}x")
    p(f"s_mov_b32 s3, 0\nv_mov_b32 v2, {L_LF + 4*kind}\n{L}:\nds_read_b32 v3, v2\ns_waitcnt lgkmcnt(0)\nv_readfirstlane_b32 s{sT3}, v3\ns_cmp_lg_u32 s{sT3}, 0\ns_cbranch_scc1 {L}x")
    p(f"s_sleep 1\ns_add_u32 s3, s3, 1\ns_cmp_gt_u32 s3, {SPIN*8}\ns_cbranch_scc0 {L}\n{L}x:")

def lds_cnt_wait(p, addr, n):
    L = newlbl("L_cw")
    p(f"v_mov_b32 v2, {addr}\ns_mov_b32 s3, 0\n{L}:\nds_read_b32 v3, v2\ns_waitcnt lgkmcnt(0)\nv_readfirstlane_b32 s{sT3}, v3\ns_cmp_ge_u32 s{sT3}, {n}\ns_cbranch_scc1 {L}x")
    p(f"s_sleep 1\ns_add_u32 s3, s3, 1\ns_cmp_gt_u32 s3, {SPIN*8}\ns_cbranch_scc0 {L}\n{L}x:")

def lds_cnt_inc_nowait(p, addr):
    p(f"v_mov_b32 v2, {addr}\nv_mov_b32 v3, 1\ns_mov_b64 exec, 1\nds_add_u32 v2, v3\ns_mov_b64 exec, -1")

def lds_cnt_inc(p, addr):
    p(f"v_mov_b32 v2, {addr}\nv_mov_b32 v3, 1\ns_waitcnt lgkmcnt(0)\ns_mov_b64 exec, 1\nds_add_u32 v2, v3\ns_mov_b64 exec, -1")

def red_write(p, acc0, base):
    P = P2
    for dl in range(1, 4):
        p(f"s_xor_b32 s{sT0}, s{sW4}, {dl}\ns_mul_i32 s{sT0}, s{sT0}, 12288\ns_add_u32 s{sT0}, s{sT0}, {base + (dl-1)*4096}")
        p(f"v_add_u32 v{P.T+dl}, s{sT0}, v{P.VL16}")
        for q in range(4):
            r = acc0 + 16*dl + 4*q
            p(f"ds_write_b128 v{P.T+dl}, v[{r}:{r+3}] offset:{q*1024}")

def red_read(p, base, T):
    P = P2
    p(f"s_mul_i32 s{sT0}, s{sW4}, 12288\ns_add_u32 s{sT0}, s{sT0}, {base}\nv_add_u32 v{P.T}, s{sT0}, v{P.VL16}")
    for sl in range(3):
        for q in range(4):
            p(f"ds_read_b128 v[{T+16*sl+4*q}:{T+16*sl+4*q+3}], v{P.T} offset:{sl*4096 + q*1024}")

VLF = 239
VTD = 238
def h_touch(p, kind):
    nq = 2 if kind != 2 else 3
    p(f"s_and_b32 s{sT0}, s{sC}, 3")
    if kind < 3:
        p(f"s_mul_i32 s{sT0}, s{sT0}, 28\ns_lshl_b32 s{sT1}, s{sT2i}, 1\ns_mul_i32 s{sT1}, s{sT1}, 112\ns_add_u32 s{sT0}, s{sT0}, s{sT1}\ns_lshl_b32 s{sT0}, s{sT0}, 10\ns_add_u32 s{sT0}, s{sT0}, {WS_H}")
        tile_stride = 112 * 1024
    else:
        p(f"s_lshl_b32 s{sT0}, s{sT0}, 3\ns_lshl_b32 s{sT1}, s{sT2i}, 6\ns_add_u32 s{sT0}, s{sT0}, s{sT1}\ns_lshl_b32 s{sT0}, s{sT0}, 10\ns_add_u32 s{sT0}, s{sT0}, {WS_O}")
        tile_stride = 32 * 1024
    p(f"v_and_b32 v2, 7, v1\nv_lshlrev_b32 v2, 7, v2\nv_lshrrev_b32 v3, 3, v1\nv_and_b32 v3, 1, v3\ns_mov_b32 s{sT1}, {tile_stride}\nv_mul_lo_u32 v3, v3, s{sT1}\nv_add_u32 v2, v2, v3\nv_lshrrev_b32 v3, 4, v1")
    if kind in (0, 1):
        x = "" if kind == 0 else f"\ns_xor_b32 s{sT2}, s{sT2}, 2"
        p(f"s_lshr_b32 s{sT1}, s{sW4}, 1\ns_mul_i32 s{sT1}, s{sT1}, 20\ns_and_b32 s{sT2}, s{sW4}, 1\ns_lshl_b32 s{sT2}, s{sT2}, 2\ns_add_u32 s{sT1}, s{sT1}, s{sT2}\ns_mov_b32 s{sT2}, s{sBB2}{x}\ns_add_u32 s{sT1}, s{sT1}, s{sT2}")
    elif kind == 2:
        p(f"s_mul_i32 s{sT1}, s{sW4}, 3\ns_add_u32 s{sT1}, s{sT1}, 8")
    else:
        p(f"s_lshl_b32 s{sT1}, s{sW4}, 1")
    p(f"s_lshl_b32 s{sT1}, s{sT1}, 10\ns_add_u32 s{sT0}, s{sT0}, s{sT1}\nv_lshlrev_b32 v3, 10, v3\nv_add_u32 v2, v2, v3")
    mask = "0xffffffff" if nq == 2 else "0xffffffffffff"
    if nq == 2: p("s_mov_b32 exec_lo, -1\ns_mov_b32 exec_hi, 0")
    else:       p("s_mov_b32 exec_lo, -1\ns_mov_b32 exec_hi, 0xffff")
    p(f"buffer_load_dword v{VTD}, v2, s[{S_WS}:{S_WS+3}], s{sT0} offen sc1\ns_mov_b64 exec, -1")

def phase2(p):
    P = P2
    N = NST
    LEAD = int(OPT.get("lead", 3))
    touch = not OPT.get("notouch") and not OPT.get("ntH")
    ops = []
    BL = 6
    def wait_for(tag):
        last = max(i for i, t in enumerate(ops) if t == tag)
        return len(ops) - 1 - last
    def wait_both(n):
        w = wait_for(f"A{n}")
        if f"B{n}" in ops: w = min(w, wait_for(f"B{n}"))
        return w
    p("L_P2loop:")
    stamp(p, "P2:start")
    if OPT.get("w2split") == "100": w2_touch_split(p, 255, 1); ops += ["t", "t"]
    if OPT.get("nofillepi"):
        for n in range(DB): p(fB(n)); ops += [f"B{n}"] * 2
        p(xres_load()); ops += ["x"] * 2
    p(f"v_add_u32 v{P.VBR2}, s{sLB2}, v{P.VTMPB}\nv_xor_b32 v{P.VBR2+1}, 64, v{P.VBR2}")
    relay_poll(p, WS_FA, 0, 0)
    if OPT.get("poll2"):
        L2 = newlbl("L_p2")
        p(f"s_cmp_lg_u32 s{sW4}, 3\ns_cbranch_scc1 {L2}\ns_sleep {OPT['poll2']}\n{L2}:")
        relay_poll(p, WS_FA, 0, 3)
    p(f"v_mov_b32 v2, {L_LF}\nds_read_b32 v{VLF}, v2\ns_waitcnt lgkmcnt(0)")
    relay_check(p, 0, VLF)
    stamp(p, "P2:FA1")
    if touch: h_touch(p, 0); ops += ["t"]
    for n in range(DA): p(fA(n)); ops += [f"A{n}"] * 2
    if NDEEP:
        lds_cnt_wait(p, L_CNT, 4)
        for n in range(DB, NS + NDEEP): p(fB(n)); ops += [f"B{n}"] * 2
        stamp(p, "P2:deep")
    p(f"s_waitcnt vmcnt({len(ops)})")
    L = newlbl("L_fa2")
    p(f"s_cmp_lg_u32 s{sROLE}, 0\ns_cbranch_scc1 {L}")
    store_flag(p, f"s_mov_b32 s{sT0}, s{sHB}")
    p(f"{L}:")
    stamp(p, "P2:drain")
    p(f"s_waitcnt vmcnt({wait_both(0)})")
    for r in p2_reads(0): p(r)
    parts = {8: (1, WS_FA2, 1, 1), first_of(2): (2, WS_FB, 2, 2), first_of(3): (3, WS_FO, 3, 3)}
    chk_at = {}; poll_at = {}
    for nn, v in parts.items():
        c = max(0, nn - DA - LEAD); chk_at[c] = v; poll_at[max(0, c - 2)] = v
    for n in range(N):
        m = f_mfmas(n)
        if n > 0: p(f"s_waitcnt vmcnt({wait_for(f'A{n}')}) lgkmcnt(0)")
        else:     p("s_waitcnt lgkmcnt(0)")
        if n in (0, 4, 8, 12, 16, 20, 24, 28, 32, 35): stamp(p, f"P2:n{n}")
        p(m[0])
        if n + 1 < N:
            if f"B{n+1}" in ops and wait_for(f"B{n+1}") < wait_for(f"A{n}"):
                p(f"s_waitcnt vmcnt({wait_for(f'B{n+1}')})")
            for r in p2_reads(n + 1): p(r)
            if (n + 1) in chk_at and (n + 1) not in poll_at:
                p(f"v_mov_b32 v2, {L_LF + 4*chk_at[n+1][0]}\nds_read_b32 v{VLF}, v2")
        if OPT.get("w2split") and n == int(OPT["w2split"]) - 1:
            w2_touch_split(p, 255, 1); ops += ["t", "t"]
        if n in poll_at:
            kind, fl, wv, tk = poll_at[n]; relay_poll(p, fl, kind, wv)
        if n in chk_at:
            kind, fl, wv, tk = chk_at[n]
            if n in poll_at or n == 0:
                p(f"v_mov_b32 v2, {L_LF + 4*kind}\nds_read_b32 v{VLF}, v2\ns_waitcnt lgkmcnt(0)")
            stamp(p, f"P2:pre{kind}"); relay_check(p, kind, VLF); stamp(p, f"P2:chk{kind}")
            if touch: h_touch(p, tk); ops += ["t"]
        vm = []
        todo = []
        if NLD and n == LD0 - DB:
            lds_cnt_wait(p, L_CNT, 4)
            todo = list(range(LD0, LD0 + NLD))
        elif NLD and LD0 <= n + DB < LD0 + NLD: todo = []
        elif n + DB < N: todo = [n + DB]
        for nb_ in todo:
            a_, b_ = fB(nb_, True); vm += [a_, b_]; ops += [f"B{nb_}"] * 2
        if n + DA < N:
            vm += fA(n + DA, True); ops += [f"A{n+DA}"] * 2
        rest = m[1:]
        for i_ in range(max(len(vm), len(rest))):
            if i_ < len(vm): p(vm[i_])
            if i_ < len(rest): p(rest[i_])
        if not OPT.get("sfirst"):
            if n == 28:
                lds_cnt_wait(p, L_CNT, 4)
                red_write(p, P.ACCF, L_REDF)
                lds_cnt_inc(p, L_CF)
            if n == 32:
                lds_cnt_wait(p, L_CF, 4)
                red_read(p, L_REDF, P.ACCF + 16)
            if n == 33:
                a = P.ACCF
                for sl in range(3):
                    for e in range(16): p(f"v_add_f32 v{a+e}, v{a+e}, v{a+16+16*sl+e}")
                TT = a + 16
                for e in range(16): p(f"v_exp_f32 v{TT+e}, -v{a+e}")
                for e in range(16): p(f"v_add_f32 v{TT+e}, 1.0, v{TT+e}")
                for e in range(16): p(f"v_rcp_f32 v{TT+e}, v{TT+e}")
                for e in range(16): p(f"v_mul_f32 v{a+e}, v{a+e}, v{TT+e}")
        else:
            if n == 25:
                lds_cnt_wait(p, L_CNT, 4)
                red_write(p, P.ACCS, L_REDF)
                lds_cnt_inc(p, L_CS2)
            if n == 29:
                lds_cnt_wait(p, L_CS2, 4)
                red_read(p, L_REDF, P.ACCS + 16)
            if n == 30:
                a = P.ACCS
                for sl in range(3):
                    for e in range(16): p(f"v_add_f32 v{a+e}, v{a+e}, v{a+16+16*sl+e}")

def final_epilogue_sfirst(p):
    p("L_FINAL:")
    P = P2
    stamp(p, "F:start")
    red_write(p, P.ACCF, L_REDS)
    lds_cnt_inc(p, L_CF)
    stamp(p, "F:written")
    TT = P.AF
    for qp in range(2):
        x = P.XR + 4*qp
        p(f"v_permlane32_swap_b32 v{x}, v{x+2}\nv_permlane32_swap_b32 v{x+1}, v{x+3}")
    XU = P.ACCS + 16
    for qp in range(2):
        x = P.XR + 4*qp
        for d in range(4):
            t = XU + 8*qp + 2*d
            p(f"v_lshlrev_b32 v{t}, 16, v{x+d}\nv_and_b32 v{t+1}, 0xffff0000, v{x+d}")
    p(f"s_mov_b32 s{sT1}, {fhex(LN2*LN2)}")
    for e in range(16): p(f"v_mul_f32 v{P.ACCS+e}, s{sT1}, v{P.ACCS+e}")
    lds_cnt_wait(p, L_CF, 4)
    stamp(p, "F:sync")
    red_read(p, L_REDS, TT)
    a = P.ACCF; s = P.ACCS
    p(xres_soff())
    for sl in range(3):
        p(f"s_waitcnt lgkmcnt({8-4*sl})")
        for e in range(16): p(f"v_add_f32 v{a+e}, v{a+e}, v{TT+16*sl+e}")
    for e in range(16): p(f"v_exp_f32 v{TT+e}, -v{a+e}")
    for e in range(16): p(f"v_mul_f32 v{a+e}, v{a+e}, v{s+e}")
    for e in range(16): p(f"v_add_f32 v{TT+e}, 1.0, v{TT+e}")
    for e in range(16): p(f"v_rcp_f32 v{TT+e}, v{TT+e}")
    for qp in range(2):
        x = P.XR + 4*qp
        for d in range(8):
            e = 8*qp + d
            p(f"v_fma_f32 v{XU+e}, v{a+e}, v{TT+e}, v{XU+e}")
        for d in range(4):
            t = XU + 8*qp + 2*d
            p(f"v_cvt_pk_bf16_f32 v{x+d}, v{t}, v{t+1}")
        p(f"v_permlane32_swap_b32 v{x}, v{x+2}\nv_permlane32_swap_b32 v{x+1}, v{x+3}")
        p(f"buffer_store_dwordx4 v[{x}:{x+3}], v{P.VX}, s[{S_OUT}:{S_OUT+3}], s{sT0} offen offset:{qp*32} {OPT.get('outfl', '').replace('_', ' ')}")

def final_epilogue(p):
    if OPT.get("sfirst"): return final_epilogue_sfirst(p)
    p("L_FINAL:")
    P = P2
    stamp(p, "F:start")
    red_write(p, P.ACCS, L_REDS)
    lds_cnt_inc(p, L_CS2)
    stamp(p, "F:written")
    TT = P.AF
    for qp in range(2):
        x = P.XR + 4*qp
        p(f"v_permlane32_swap_b32 v{x}, v{x+2}\nv_permlane32_swap_b32 v{x+1}, v{x+3}")
    XU = P.AF + 48
    lds_cnt_wait(p, L_CS2, 4)
    stamp(p, "F:sync")
    red_read(p, L_REDS, TT)
    a = P.ACCF; s = P.ACCS
    p(xres_soff())
    p(f"s_mov_b32 s{sT1}, {fhex(LN2*LN2)}")
    for sl in range(3):
        p(f"s_waitcnt lgkmcnt({8-4*sl})")
        for e in range(16): p(f"v_add_f32 v{s+e}, v{s+e}, v{TT+16*sl+e}")
    for e in range(16): p(f"v_mul_f32 v{a+e}, v{a+e}, v{s+e}")
    for qp in range(2):
        x = P.XR + 4*qp
        for d in range(4):
            e0 = 8*qp + 2*d
            t = TT + 2*d
            p(f"v_lshlrev_b32 v{t}, 16, v{x+d}\nv_and_b32 v{t+1}, 0xffff0000, v{x+d}")
        for d in range(4):
            e0 = 8*qp + 2*d
            t = TT + 2*d
            p(f"v_fma_f32 v{t}, v{a+e0}, s{sT1}, v{t}\nv_fma_f32 v{t+1}, v{a+e0+1}, s{sT1}, v{t+1}")
        for d in range(4):
            t = TT + 2*d
            p(f"v_cvt_pk_bf16_f32 v{x+d}, v{t}, v{t+1}")
        p(f"v_permlane32_swap_b32 v{x}, v{x+2}\nv_permlane32_swap_b32 v{x+1}, v{x+3}")
        p(f"buffer_store_dwordx4 v[{x}:{x+3}], v{P.VX}, s[{S_OUT}:{S_OUT+3}], s{sT0} offen offset:{qp*32} {OPT.get('outfl', '').replace('_', ' ')}")

def fused():
    p = Prog()
    if STAMPS["on"]: p("s_memrealtime s[100:101]\ns_memtime s[96:97]")
    if OPT.get("dbgtime"): p("s_memrealtime s[100:101]\ns_memtime s[96:97]")
    prologue(p)
    if OPT.get("dbgtime"): p("s_mov_b32 s101, s96")
    if STAMPS["on"]: p(f"v_mov_b32 v{VSTAMP}, 0\nv_writelane_b32 v{VSTAMP}, s96, 0\nv_writelane_b32 v{VSTAMP}, s100, 62")
    p(f"s_cmp_ge_u32 s{sW8}, 4\ns_cbranch_scc0 L_A")
    p(f"s_cmp_eq_u32 s{sROLE}, 0\ns_cbranch_scc0 L_BQ")
    for role in (0, 1):
        if role == 1: p("L_BQ:")
        stamp_reset(1, f"B{role}")
        B_setup(p, role)
        ops = B_phaseA(p, role)
        B_phaseB(p, role, ops)
        if role == 0:
            B_epi_F(p)
        else:
            PQ = B_epi_Q(p); stamp(p, "B:epiQ"); o_stage(p, PQ)
        stamp(p, "B:end"); stamp_dump(p)
        p("s_endpgm")
        p(f"L_Bend{role}:")
    p("L_A:")
    prologue2(p)
    A_stats_issue(p)
    if OPT.get("smw"): smem_warm(p)
    zero_ctrl_(p)
    p2_setup(p)
    fill = [fB(n) for n in range(DB)] + [xres_load()]
    if OPT.get("nofillepi"): fill = []
    p(f"s_cmp_eq_u32 s{sROLE}, 0\ns_cbranch_scc0 L_AQ")
    stamp_reset(1, "A0")
    A_setup(p, 0); A_stats_compute(p); A_phaseA(p, 0); A_epi_F(p, fill)
    p("s_branch L_P2")
    p("L_AQ:")
    stamp_reset(1, "A1")
    A_setup(p, 1); A_stats_compute(p); A_phaseA(p, 1); A_epi_Q(p, fill)
    p("L_P2:")
    stamp_reset(30, "P2")
    phase2(p)
    final_epilogue(p)
    stamp(p, "F:end"); stamp_dump(p)
    if OPT.get("dbgtime"):
        p("s_memrealtime s[76:77]\ns_memtime s[78:79]\ns_waitcnt lgkmcnt(0)")
        p("s_sub_u32 s76, s76, s100\ns_sub_u32 s78, s78, s101")
        p(f"s_cmp_lg_u32 s{sW4}, 0\ns_cbranch_scc1 L_end\ns_and_b32 s3, s2, 127\ns_cmp_lg_u32 s3, 0\ns_cbranch_scc1 L_end")
        p("s_lshr_b32 s3, s2, 7\ns_lshl_b32 s3, s3, 3\nv_mov_b32 v2, s3\nv_mov_b32 v4, s76\nv_mov_b32 v5, s78\ns_mov_b64 exec, 1")
        p(f"buffer_store_dwordx2 v[4:5], v2, s[{S_DBG}:{S_DBG+3}], 0 offen sc1\ns_mov_b64 exec, -1")
    p("L_end:\ns_endpgm")
    p.fix_hazards()
    e = p.check_waits("fused2")
    return p

def B_phaseA_(p, role):
    B_phaseA(p, role)

def zero_ctrl_(p):
    zero_ctrl(p)

def build(path):
    hdr = open("cdna_kernels/" + NAME + ".s.ref").read().split("\n")
    top = [l for l in hdr if l.startswith(";") and "@launch" not in l and "Override" not in l and "grid=" not in l]
    kn = NAME + "_kernel"
    o = top + [f"; @launch grid=(256,1,1) block=(512,1,1) lds={LDS_BYTES}", '.amdgcn_target "amdgcn-amd-amdhsa--gfx950"\n.text', kernel_header(kn)]
    _lbl[0] = 0
    o.append(fused().text())
    o.append('.section .rodata,"a"\n.p2align 6')
    o.append(kernel_desc(kn, 256, 102, 256))
    open(path, "w").write("\n".join(o) + "\n")

if __name__ == "__main__":
    for a in sys.argv[2:]:
        if a == "diag": STAMPS["on"] = True
        elif "=" in a:
            k_, v_ = a.split("="); OPT[k_] = v_
    if "DA" in OPT: DA = int(OPT["DA"])
    if "ld" in OPT: NLD = int(OPT["ld"])
    build(sys.argv[1])
    if STAMPS["on"]:
        import json
        json.dump(STAMPS["names"], open(sys.argv[1] + ".names", "w"))
```

```python
import sys
from prog import *
import struct
def f2u(x): return struct.unpack("<I", struct.pack("<f", x))[0]
def fhex(x): return "0x%08x" % f2u(x)
LOG2E = 1.4426950408889634
LN2 = 0.6931471805599453

OPT = dict(nowarm=1, ntH=1, lead=1, DA=3, w2ch='1', plat=6, rot='', nofillepi=1, prioO='2', ld='4')

WS_FA, WS_FB, WS_FO = 0, 4096, 8192
WS_C2 = 12288
WS_FA2 = 16384 + 4096
WS_NONCE = 16384
WS_KVZ = 0x10000
WS_STG = 0x30000
WS_CSP = 0x40000
WS_H   = 0x100000
WS_O   = 0x900000
WS_SIZE = 0x1000000
WS_DIAG = 0xF00000

SLOT = 32768
L_P2 = 98304
NS = 7
L_MISC = L_P2 + 4 * NS * 2048
L_RS = L_MISC; L_NMR = L_MISC + 512
L_CSA = L_MISC + 1024
L_CSB = L_MISC + 1536
L_CNT = L_MISC + 2040
L_NONCE = L_MISC + 2032
L_LF = L_MISC + 2000
L_CF = L_MISC + 2016
L_CS2 = L_MISC + 2020
L_W1 = L_MISC + 2024
L_W2 = L_MISC + 2028
L_SPARE = L_MISC + 2048
L_KC = L_MISC + 2044
L_KVL = L_SPARE + 1024
L_CSPL = L_SPARE
LDS_BYTES = 163840
assert L_SPARE + 6144 == LDS_BYTES

S_X, S_W, S_WS, S_W2, S_WO, S_OUT, S_DBG = 4, 8, 12, 16, 20, 24, 28
sW8, sW4, sI, sJ, sROLE, sR0, sRS = 32, 33, 34, 35, 36, 37, 38
sBO = 39
sT0, sT1, sT2, sT3, sT4, sT5 = 40, 41, 42, 43, 44, 45
sXB, sWB_, sLX, sLW, sXK, sWK, sWBB, sLWB, sK64, sHB = 46, 47, 48, 49, 50, 51, 52, 53, 54, 55
sMASKH = 56
sCOLA, sCOLB = 58, 59
sTMP = 60
sT2i, sC, sAH, sAH1, sBW, sLB, sAO, sAO1 = 62, 63, 64, 65, 66, 67, 68, 69
sLN2, sCEPS = 70, 71
sZ, sROT, sPA, sPB = 72, 73, 74, 75
sBB2 = 0
sNONCE = 57 + 0
sWSP = 92
sPOLL = 96
SPIN = 20000
sNONCE = 3 + 0
sNONCE = 1
DBG_NONCE = 128

STAMPS = {"on": False, "n": 0, "names": {}}
VSTAMP = 12
def stamp(p, name=""):
    if not STAMPS["on"]: return
    if OPT.get("dbgsel"):
        sel = OPT["dbgsel"].split(",")
        if name not in sel: return
        p(f"s_memrealtime s[100:101]\ns_waitcnt lgkmcnt(0)\nv_writelane_b32 v{VSTAMP}, s100, {1 + sel.index(name)}")
        return
    n = STAMPS["n"]; STAMPS["n"] += 1
    assert n < 62
    STAMPS["names"].setdefault(STAMPS.get("path", ""), {})[n] = name
    p(f"{'s_memrealtime' if OPT.get('rt') else 's_memtime'} s[100:101]\ns_waitcnt lgkmcnt(0)\nv_writelane_b32 v{VSTAMP}, s100, {n}")
def stamp_reset(n=0, path=None):
    STAMPS["n"] = n
    if path is not None: STAMPS["path"] = path
def stamp_dump(p):
    if not STAMPS["on"]: return
    if OPT.get("dbgsel"):
        L = newlbl("L_dd")
        p(f"s_or_b32 s3, s2, s{sW8}\ns_cmp_lg_u32 s3, {OPT.get('dbgw', 0)}\ns_cbranch_scc1 {L}")
        p(f"v_readlane_b32 s3, v{VSTAMP}, 62\ns_nop 1\nv_subrev_u32 v{VSTAMP}, s3, v{VSTAMP}\nv_lshlrev_b32 v2, 2, v1\ns_mov_b64 exec, 0xffff")
        p(f"buffer_store_dword v{VSTAMP}, v2, s[{S_DBG}:{S_DBG+3}], 0 offen sc1\ns_mov_b64 exec, -1\n{L}:")
        return
    p(f"s_memrealtime s[100:101]\ns_waitcnt lgkmcnt(0)\nv_writelane_b32 v{VSTAMP}, s100, 63")
    p(f"s_lshl_b32 s{sT0}, s2, 11\ns_lshl_b32 s{sT1}, s{sW8}, 8\ns_add_u32 s{sT0}, s{sT0}, s{sT1}\ns_add_u32 s{sT0}, s{sT0}, {WS_DIAG}")
    p(f"v_lshlrev_b32 v2, 2, v1\nbuffer_store_dword v{VSTAMP}, v2, s[{S_WS}:{S_WS+3}], s{sT0} offen")

_lbl = [0]
def newlbl(s):
    _lbl[0] += 1
    return f"{s}_{_lbl[0]}"

def srd(p, dst, lo, nbytes):
    p(f"s_mov_b32 s{dst}, s{lo}\ns_mov_b32 s{dst+1}, s{lo+1}\ns_mov_b32 s{dst+2}, {nbytes}\ns_mov_b32 s{dst+3}, 0x20000")

KX, KQKV, KWO, KW1, KW2, KOUT, KDBG = 76, 78, 80, 84, 86, 88, 90

def prologue(p):
    p("s_cmp_ge_u32 s2, 256\ns_cbranch_scc1 L_end")
    p(f"s_load_dwordx4 s[{KX}:{KX+3}], s[0:1], 0")
    p(f"s_load_dwordx4 s[{KW1}:{KW1+3}], s[0:1], 32")
    p(f"s_load_dwordx2 s[{sWSP}:{sWSP+1}], s[0:1], 64")
    p(f"s_load_dwordx2 s[{KWO}:{KWO+1}], s[0:1], 16")
    p(f"s_load_dwordx4 s[{KOUT}:{KOUT+3}], s[0:1], 48")
    p("v_and_b32 v1, 63, v0\nv_lshrrev_b32 v2, 6, v0")
    p("s_getpc_b64 s[94:95]")
    p(f"L_pc:\ns_lshr_b32 s3, s2, 3\ns_mul_i32 s3, s3, (L_end-L_pc+4095)/4096*128\nv_lshlrev_b32 v14, 7, v0\nv_add_u32 v14, s3, v14\nv_min_u32 v14, L_end-L_pc, v14\nv_cmp_gt_u32 vcc, (L_end-L_pc+4095)/4096, v0")
    p("s_and_saveexec_b64 s[98:99], vcc\ns_cbranch_execz L_nopf")
    p("global_load_dword v15, v14, s[94:95]")
    p("L_nopf:\ns_mov_b64 exec, s[98:99]")
    p(f"v_readfirstlane_b32 s{sW8}, v2")
    p(f"s_and_b32 s{sT0}, s2, 7\ns_lshr_b32 s{sT1}, s2, 3")
    p(f"s_and_b32 s{sT2}, s{sT0}, 1\ns_lshl_b32 s{sT2}, s{sT2}, 3\ns_and_b32 s{sT3}, s{sT1}, 7\ns_add_u32 s{sI}, s{sT2}, s{sT3}")
    p(f"s_lshr_b32 s{sT3}, s{sT1}, 3\ns_lshr_b32 s{sROLE}, s{sT3}, 1")
    p(f"s_lshr_b32 s{sT2}, s{sT0}, 1\ns_lshl_b32 s{sT2}, s{sT2}, 1\ns_and_b32 s{sT4}, s{sT3}, 1\ns_add_u32 s{sJ}, s{sT2}, s{sT4}")
    rm = OPT.get("r0mode", "8")
    if rm == "8":   p(f"s_lshl_b32 s{sT4}, s{sT3}, 1\ns_add_u32 s{sR0}, s{sI}, s{sT4}\ns_and_b32 s{sR0}, s{sR0}, 7")
    elif rm == "4": p(f"s_add_u32 s{sR0}, s{sI}, s{sT3}\ns_and_b32 s{sR0}, s{sR0}, 3\ns_lshl_b32 s{sR0}, s{sR0}, 1")
    elif rm == "2": p(f"s_add_u32 s{sR0}, s{sI}, s{sT3}\ns_and_b32 s{sR0}, s{sR0}, 1\ns_lshl_b32 s{sR0}, s{sR0}, 2")
    else:           p(f"s_mov_b32 s{sR0}, 0")
    p(f"s_and_b32 s{sW4}, s{sW8}, 3")
    p(f"s_mul_i32 s{sT0}, s{sJ}, 224\ns_and_b32 s{sT1}, s{sJ}, 1\ns_mul_i32 s{sT2}, s{sT1}, 96\ns_add_u32 s{sCOLA}, s{sT0}, s{sT2}")
    p(f"s_xor_b32 s{sT1}, s{sT1}, 1\ns_lshl_b32 s{sT1}, s{sT1}, 7\ns_add_u32 s{sCOLB}, s{sT0}, s{sT1}")
    p(f"s_lshl_b32 s{sT0}, s{sJ}, 6\ns_add_u32 s{sT1}, s{sT0}, 512")
    p(f"s_cmp_eq_u32 s{sROLE}, 0")
    p(f"s_cselect_b32 s{sCOLA}, s{sCOLA}, s{sT1}\ns_cselect_b32 s{sCOLB}, s{sCOLB}, s{sT0}")
    p(f"s_mov_b32 s{sT0}, 3584\ns_mov_b32 s{sT1}, 3072\ns_cselect_b32 s{sRS}, s{sT0}, s{sT1}")
    p(f"s_mov_b32 s{sT0}, 1835008\ns_mov_b32 s{sT1}, 1572864\ns_cselect_b32 s{S_W+2}, s{sT0}, s{sT1}\ns_mov_b32 s{S_W+3}, 0x20000")
    p(f"s_lshl_b32 s{sK64}, s{sRS}, 6")
    p("s_waitcnt lgkmcnt(0)")
    p(f"s_cmp_eq_u32 s{sROLE}, 0")
    p(f"s_cselect_b32 s{S_W}, s{KW1}, s{KQKV}\ns_cselect_b32 s{S_W+1}, s{KW1+1}, s{KQKV+1}")
    srd(p, S_X, KX, 2097152)

def prologue2(p):
    srd(p, S_WS, sWSP, WS_SIZE)
    srd(p, S_W2, KW2, 1835008)
    srd(p, S_WO, KWO, 524288)
    srd(p, S_OUT, KOUT, 2097152)
    srd(p, S_DBG, KDBG, 256)
    p(f"s_mov_b32 s{sLN2}, {fhex(LN2)}\ns_mov_b32 s{sCEPS}, {fhex(1e-6/LN2)}")

def make_sel(p, base, t0, t1):
    p(f"v_and_b32 v{t0}, 15, v1\nv_lshrrev_b32 v{t1}, 4, v1\nv_and_b32 v{t1}, 1, v{t1}")
    p(f"v_cmp_eq_u32 vcc, v{t0}, v{t1}")
    p(f"v_mov_b32 v{t0}, 0x3f803f80")
    p(f"v_cndmask_b32 v{base}, 0, v{t0}, vcc")
    for k in range(1, 4): p(f"v_mov_b32 v{base+k}, v{base}")

def code_touch(p, start, end, vdst):
    L = newlbl("L_ct")
    kn = NAME + "_kernel"
    p(f"s_getpc_b64 s[94:95]\n{L}:")
    p(f"s_sub_u32 s94, s94, {L}-{kn}\ns_subb_u32 s95, s95, 0\ns_add_u32 s94, s94, {start}-{kn}\ns_addc_u32 s95, s95, 0")
    p(f"s_mov_b32 s{sT0}, ({end}-{start}+511)/512\ns_mul_i32 s{sT1}, s{sT0}, s{sW4}\ns_sub_u32 s{sT0}, s{sT0}, 1")
    p(f"v_min_u32 v2, s{sT0}, v1\nv_add_u32 v2, s{sT1}, v2\nv_lshlrev_b32 v2, 7, v2")
    p(f"global_load_dword v{vdst}, v2, s[94:95]")

def interleave(p, main, fill):
    n = len(main); m = len(fill); k = 0
    for i, s in enumerate(main):
        while k < m and k * n <= i * m:
            p(fill[k]); k += 1
        p(s)
    while k < m:
        p(fill[k]); k += 1

def store_flag(p, soff_code):
    p(soff_code)
    p(f"v_mov_b32 v2, 0\nv_mov_b32 v3, s{sNONCE}\ns_mov_b64 exec, 1\nbuffer_store_dword v3, v2, s[{S_WS}:{S_WS+3}], s{sT0} offen sc1\ns_mov_b64 exec, -1")

class BR:
    ACC = 16; WF = 64
    CS = 100
    XOFF0, XOFF1, WOFF = 104, 105, 106
    WBOFF = 107; XR = 110; WBL = 114
    SEL = 118; RS, NMR = 122, 123
    TA = 124; WBA = 124
    PFD = 117
    XO = 48
    WO = 52
    WQ1 = 103 + 0
    X = 128

def wb_base(role, k):
    return k * (3072 if role == 0 else 2048)

def B_setup(p, role):
    B = BR
    p(f"v_lshrrev_b32 v2, 3, v1\nv_lshlrev_b32 v5, 10, v2")
    p(f"v_and_b32 v3, 7, v1\nv_lshrrev_b32 v4, 4, v1\nv_xor_b32 v6, v3, v4\nv_lshlrev_b32 v6, 4, v6")
    p(f"v_add_u32 v{B.XOFF0}, v5, v6\nv_xor_b32 v{B.XOFF1}, 64, v{B.XOFF0}")
    p(f"v_mul_lo_u32 v2, v2, s{sRS}")
    p(f"v_and_b32 v4, 1, v4\nv_lshlrev_b32 v4, 2, v4\nv_xor_b32 v3, v3, v4\nv_lshlrev_b32 v3, 4, v3")
    p(f"v_add_u32 v{B.WOFF}, v2, v3")
    p(f"v_mov_b32 v{B.XO}, v{B.XOFF0}\nv_add_u32 v{B.XO+1}, 7168, v{B.XOFF1}\nv_add_u32 v{B.XO+2}, {2*7168}, v{B.XOFF0}\nv_add_u32 v{B.XO+3}, {3*7168}, v{B.XOFF1}")
    p(f"s_lshl_b32 s{sT5}, s{sRS}, 3\ns_sub_u32 s{sT5}, s{sT5}, 1024\nv_mov_b32 v{B.WO}, v{B.WOFF}")
    for t in range(1, 4): p(f"v_add_u32 v{B.WO+t}, s{sT5}, v{B.WO+t-1}")
    p(f"s_lshl_b32 s{sT0}, s{sI}, 7\ns_lshl_b32 s{sT1}, s{sW4}, 5\ns_add_u32 s{sT0}, s{sT0}, s{sT1}\ns_lshl_b32 s{sXB}, s{sT0}, 10")
    p(f"s_lshl_b32 s{sLX}, s{sW4}, 12")
    p(f"s_lshr_b32 s{sT0}, s{sW4}, 1\ns_and_b32 s{sT1}, s{sW4}, 1")
    p(f"s_lshl_b32 s{sT2}, s{sT1}, 5\ns_mul_i32 s{sT2}, s{sT2}, s{sRS}")
    p(f"s_lshl_b32 s{sT3}, s{sCOLA}, 1\ns_lshl_b32 s{sT4}, s{sT0}, {7 if role == 0 else 10}\ns_add_u32 s{sT3}, s{sT3}, s{sT4}")
    p(f"s_add_u32 s{sWB_}, s{sT2}, s{sT3}")
    p(f"s_lshl_b32 s{sT2}, s{sT0}, 13\ns_lshl_b32 s{sT3}, s{sT1}, 12\ns_add_u32 s{sLW}, s{sT2}, s{sT3}\ns_add_u32 s{sLW}, s{sLW}, 16384")

def B_setup2(p, role):
    B = BR
    p(f"v_and_b32 v2, 31, v1\nv_lshrrev_b32 v3, 5, v1")
    p(f"v_lshrrev_b32 v4, 1, v2\nv_and_b32 v4, 7, v4\nv_xor_b32 v4, v4, v3\nv_lshlrev_b32 v4, 4, v4")
    p(f"v_lshlrev_b32 v5, 7, v2\nv_add_u32 v4, v4, v5\nv_add_u32 v4, s{sLX}, v4")
    for pp in range(4): p(f"v_xor_b32 v{B.XR+pp}, {pp*32}, v4")
    p(f"s_lshl_b32 s{sT0}, s{sW4}, 4\ns_mul_i32 s{sT0}, s{sT0}, s{sRS}\ns_lshl_b32 s{sT1}, s{sCOLB}, 1\ns_add_u32 s{sWBB}, s{sT0}, s{sT1}")
    if role == 0:
        for t in range(3):
            p(f"v_add_u32 v2, {64*t}, v1\ns_mov_b32 s{sT0}, 43691\nv_mul_lo_u32 v3, v2, s{sT0}\nv_lshrrev_b32 v3, 19, v3")
            p(f"v_mul_u32_u24 v4, 12, v3\nv_sub_u32 v4, v2, v4\nv_lshlrev_b32 v4, 4, v4\nv_mul_lo_u32 v3, v3, s{sRS}\nv_add_u32 v{B.WBOFF+t}, v3, v4")
            if t: p(f"v_subrev_u32 v{B.WBOFF+t}, {t*1024}, v{B.WBOFF+t}")
        p(f"s_mul_i32 s{sLWB}, s{sW4}, 3072")
        p(f"v_lshrrev_b32 v2, 5, v1\nv_lshlrev_b32 v2, 3, v2\nv_and_b32 v3, 15, v1\nv_lshrrev_b32 v4, 2, v3\nv_add_u32 v2, v2, v4\nv_mul_u32_u24 v2, 192, v2")
        p(f"v_lshrrev_b32 v4, 4, v1\nv_and_b32 v4, 1, v4\nv_lshlrev_b32 v4, 5, v4\nv_add_u32 v2, v2, v4\nv_and_b32 v4, 3, v3\nv_lshlrev_b32 v4, 3, v4\nv_add_u32 v2, v2, v4")
        for be in range(3):
            p(f"s_add_u32 s{sT0}, s{sW4}, {be}\ns_cmp_ge_u32 s{sT0}, 3\ns_cselect_b32 s{sT1}, 3, 0\ns_sub_u32 s{sT0}, s{sT0}, s{sT1}")
            p(f"s_cmp_ge_u32 s{sT0}, 3\ns_cselect_b32 s{sT1}, 3, 0\ns_sub_u32 s{sT0}, s{sT0}, s{sT1}\ns_lshl_b32 s{sT0}, s{sT0}, 6")
            p(f"v_add_u32 v{B.WBL+be}, s{sT0}, v2")
    else:
        p(f"s_lshl_b32 s{sLWB}, s{sW4}, 11")
        p(f"v_mov_b32 v{B.WBOFF}, v{B.WOFF}\ns_lshl_b32 s{sT5}, s{sRS}, 3\ns_sub_u32 s{sT5}, s{sT5}, 1024\nv_add_u32 v{B.WBOFF+1}, s{sT5}, v{B.WOFF}")
        p(f"v_lshrrev_b32 v2, 5, v1\nv_lshlrev_b32 v2, 3, v2\nv_and_b32 v3, 15, v1\nv_lshrrev_b32 v4, 2, v3\nv_add_u32 v2, v2, v4\nv_lshlrev_b32 v2, 7, v2")
        p(f"v_lshrrev_b32 v4, 3, v3\nv_lshlrev_b32 v4, 6, v4\nv_add_u32 v2, v2, v4")
        p(f"v_lshrrev_b32 v4, 4, v1\nv_and_b32 v4, 1, v4\nv_lshlrev_b32 v4, 5, v4\nv_add_u32 v2, v2, v4\nv_and_b32 v4, 3, v3\nv_lshlrev_b32 v4, 3, v4\nv_add_u32 v2, v2, v4")
        p(f"s_and_b32 s{sT0}, s{sW4}, 1\ns_lshl_b32 s{sT0}, s{sT0}, 6\nv_xor_b32 v{B.WBL}, s{sT0}, v2\nv_xor_b32 v{B.WBL+1}, 64, v{B.WBL}")
    make_sel(p, B.SEL, 2, 3)

def dma_stage(stage, xfirst=False):
    B = BR
    slot = (stage % 4) * SLOT
    pre = (f"s_add_u32 s{sT0}, s{sR0}, {stage}\ns_and_b32 s{sT0}, s{sT0}, 7\n"
           f"s_lshl_b32 s{sT1}, s{sT0}, 7\ns_add_u32 s{sXK}, s{sXB}, s{sT1}\n"
           f"s_mul_i32 s{sT1}, s{sT0}, s{sK64}\ns_add_u32 s{sWK}, s{sWB_}, s{sT1}")
    gx = [f"buffer_load_dwordx4 v{B.XO+t}, s[{S_X}:{S_X+3}], s{sXK} offen offset:{t*1024} lds" for t in range(4)]
    gw = [f"buffer_load_dwordx4 v{B.WO+t}, s[{S_W}:{S_W+3}], s{sWK} offen offset:{t*1024} lds" for t in range(4)]
    gx[0] = f"s_add_u32 m0, s{sLX}, {slot}\n" + gx[0]
    gw[0] = f"s_add_u32 m0, s{sLW}, {slot}\n" + gw[0]
    g = gx + gw
    g[0] = pre + "\n" + g[0]
    return g

def dma_wb(t, role):
    B = BR
    b0 = wb_base(role, 4*t)
    pre = (f"s_add_u32 s{sT0}, s{sR0}, {t}\ns_and_b32 s{sT0}, s{sT0}, 7\n"
           f"s_mul_i32 s{sT1}, s{sT0}, s{sK64}\ns_add_u32 s{sWK}, s{sWBB}, s{sT1}\ns_add_u32 m0, s{sLWB}, {b0}")
    n = 3 if role == 0 else 2
    g = [f"buffer_load_dwordx4 v{B.WBOFF+u}, s[{S_W}:{S_W+3}], s{sWK} offen offset:{u*1024} lds" for u in range(n)]
    return [pre + "\n" + "\n".join(g)]

def B_phaseA(p, role):
    B = BR
    nb = 3 if role == 0 else 2
    if OPT.get("prioBa"): p(f"s_setprio {OPT['prioBa']}")
    stamp(p, "B:setup")
    for g in dma_stage(0): p(g)
    stamp(p, "B:dma0")
    for g in dma_stage(1, xfirst=True): p(g)
    for g in dma_stage(2): p(g)
    nwarm = 0
    if not OPT.get("nowarm"):
        A_prefetch_setup(p)
        p(f"v_lshlrev_b32 v2, 7, v1\nbuffer_load_dword v{B.PFD}, v2, s[96:99], s{sPA} offen")
        nwarm = 1
    stamp(p, "B:dma012")
    prologue2(p)
    B_setup2(p, role)
    VST, VCS, LD, ST4, PZ = 16, 17, 20, 36, 40
    p(f"s_lshl_b32 s{sT3}, s{sI}, 11\ns_lshl_b32 s{sT4}, s{sW4}, 9\ns_add_u32 s{sT3}, s{sT3}, s{sT4}\ns_add_u32 s{sT3}, s{sT3}, {WS_STG}\nv_and_b32 v2, 31, v1\nv_lshlrev_b32 v2, 4, v2\nv_add_u32 v{VST}, s{sT3}, v2")
    p(f"s_lshl_b32 s{sT2}, s{sROLE}, 3\ns_add_u32 s{sT2}, s{sT2}, s{sJ}\ns_lshl_b32 s{sT3}, s{sT2}, 14\ns_add_u32 s{sT3}, s{sT3}, {WS_CSP}\ns_lshl_b32 s{sT4}, s{sW4}, 8\ns_add_u32 s{sT3}, s{sT3}, s{sT4}")
    p(f"v_lshrrev_b32 v2, 5, v1\nv_lshlrev_b32 v2, 13, v2\nv_and_b32 v3, 31, v1\nv_lshlrev_b32 v3, 3, v3\nv_add_u32 v2, v2, v3\nv_add_u32 v{VCS}, s{sT3}, v2")
    def preloads():
        o = [f"buffer_load_dwordx4 v[{ST4}:{ST4+3}], v{VST}, s[{S_WS}:{S_WS+3}], 0 offen sc1"]
        for q in range(8):
            so = "0" if q < 4 else f"s{sMASKH}"
            o.append(f"buffer_load_dwordx2 v[{LD+2*q}:{LD+2*q+1}], v{VCS}, s[{S_WS}:{S_WS+3}], {so} offen offset:{(q & 3)*1024} sc1")
        return o
    p(f"s_mov_b32 s{sMASKH}, 4096")
    if role == 0:
        wbs = {5: (0,), 6: (1, 2), 7: (3,)} if not OPT.get("wblate") else {5: (), 6: (0,), 7: (1,)}
        if OPT.get("wball"): wbs = {5: (0, 1), 6: (2, 3, 4), 7: (5, 6, 7)}
    else:
        wbs = {5: (0, 1), 6: (2, 3), 7: ()} if not OPT.get("wblate") else {5: (), 6: (0, 1), 7: (2, 3)}
        if OPT.get("wball"): wbs = {5: (0, 1, 2, 3), 6: (4, 5, 6, 7), 7: ()}
    ops = []
    ops += ["s0"]*8 + ["s1"]*8 + ["s2"]*8 + ["w"]*nwarm
    def wait_for(tag):
        last = max(i for i, t in enumerate(ops) if t == tag)
        return len(ops) - 1 - last
    for s in range(8):
        p(f"s_waitcnt vmcnt({wait_for('s%d' % s)}) lgkmcnt(0)")
        stamp(p, f"B:landed{s}")
        p("s_barrier")
        if s <= 4: fill = dma_stage(s + 3); tags = ["s%d" % (s + 3)] * 8
        else:
            fill = sum((dma_wb(t, role) for t in wbs[s]), []); tags = sum((["b%d" % t] * nb for t in wbs[s]), [])
        slot = (s % 4) * SLOT
        for pp in range(4):
            k = 4 * s + pp
            p(f"v_add_u32 v{B.TA+pp}, {slot}, v{B.XR+pp}\nds_read_b128 v[{B.X+4*k}:{B.X+4*k+3}], v{B.TA+pp}")
        if s == 0:
            p(f"v_mov_b32 v3, {L_NONCE}\nds_read_b32 v4, v3\ns_waitcnt lgkmcnt(0)\nv_readfirstlane_b32 s{sNONCE}, v4")
        for g in fill: p(g)
        ops += tags
        if s == 2:
            p(f"v_and_b32 v2, 15, v1\nv_lshlrev_b32 v3, 3, v2\ns_lshl_b32 s{sT0}, s{sW4}, 7\ns_add_u32 s{sT0}, s{sT0}, {L_CSPL}\nv_add_u32 v3, s{sT0}, v3\nds_read_b64 v[44:45], v3")
            p(f"s_lshl_b32 s{sT0}, s{sROLE}, 3\ns_add_u32 s{sT0}, s{sT0}, s{sJ}\ns_lshl_b32 s{sT0}, s{sT0}, 4\ns_add_u32 s{sT0}, s{sT0}, s{sI}\ns_lshl_b32 s{sT0}, s{sT0}, 10\ns_add_u32 s{sT0}, s{sT0}, {WS_CSP}\ns_lshl_b32 s{sT1}, s{sW4}, 8\ns_add_u32 s{sT0}, s{sT0}, s{sT1}")
            p(f"v_lshlrev_b32 v2, 4, v2\ns_waitcnt lgkmcnt(0)\nv_mov_b32 v46, v45\nv_mov_b32 v45, s{sNONCE}\nv_mov_b32 v47, s{sNONCE}")
            p(f"s_mov_b64 exec, 0xffff\nbuffer_store_dwordx4 v[44:47], v2, s[{S_WS}:{S_WS+3}], s{sT0} offen sc1\ns_mov_b64 exec, -1")
            p(f"v_and_b32 v2, 31, v1\nv_lshlrev_b32 v2, 2, v2\nbuffer_load_dword v{PZ}, v2, s[{S_DBG}:{S_DBG+3}], 0 offen sc1")
            ops += ["c", "z"]
        if s == int(OPT.get("plat", 6)):
            for x_ in preloads(): p(x_)
            ops += ["p"] * 9
        if OPT.get("touch"):
            if s == 3:
                code_touch(p, f"L_Aepi{role}", "L_AQ" if role == 0 else "L_P2", B.PFD); ops += ["t"]
                code_touch(p, f"L_Bpb{role}", f"L_Bend{role}", B.PFD); ops += ["t"]
            if s == 6:
                code_touch(p, "L_P2", "L_end", B.PFD); ops += ["t"]
    if OPT.get("prioBa"): p("s_setprio 0")
    L = newlbl("L_tg")
    p(f"s_waitcnt vmcnt({wait_for('p')})")
    p(f"s_mov_b32 s3, 0\n{L}:")
    p(f"v_xor_b32 v2, s{sNONCE}, v{ST4+2}")
    for q in range(8): p(f"v_xor_b32 v3, s{sNONCE}, v{LD+2*q+1}\nv_or_b32 v2, v2, v3")
    p(f"v_cmp_ne_u32 vcc, 0, v2\ns_cbranch_vccz {L}x")
    p(f"s_add_u32 s3, s3, 1\ns_cmp_gt_u32 s3, {SPIN}\ns_cbranch_scc1 {L}x")
    for x_ in preloads(): p(x_)
    p(f"s_waitcnt vmcnt(0)\ns_branch {L}\n{L}x:")
    p(f"v_and_b32 v2, 31, v1\nv_lshlrev_b32 v2, 2, v2")
    poll_check(p, PZ, 1, 2, S_DBG)
    p(f"s_lshl_b32 s{sT0}, s{sW4}, 7\ns_add_u32 s{sT0}, s{sT0}, {L_RS}\nv_add_u32 v3, s{sT0}, v2\nds_write_b32 v3, v{ST4}\nds_write_b32 v3, v{ST4+1} offset:512")
    for st in (4, 2, 1):
        for q in range(st): p(f"v_add_f32 v{LD+2*q}, v{LD+2*q}, v{LD+2*(q+st)}")
    p(f"v_mov_b32 v4, v{LD}\nv_permlane32_swap_b32 v4, v{LD}\nv_add_f32 v{LD}, v{LD}, v4")
    p(f"s_lshl_b32 s{sT0}, s{sW4}, 7\ns_add_u32 s{sT0}, s{sT0}, {L_CSA}\nv_add_u32 v3, s{sT0}, v2\nds_write_b32 v3, v{LD}")
    return ops

def B_phaseB(p, role, ops):
    p(f"L_Bpb{role}:")
    B = BR
    nb = 3 if role == 0 else 2
    ustride = 768 if role == 0 else 512
    def reads(k):
        buf = B.WF + (k % 3) * 12
        base = wb_base(role, k)
        hi = base // 32768; lo = base - hi * 32768
        s = []
        for be in range(nb):
            for u in range(2):
                s.append(f"ds_read_b64_tr_b16 v[{buf+4*be+2*u}:{buf+4*be+2*u+1}], v{B.WBA+be} offset:{lo + u*ustride}")
        return hi, s
    cur = [None]
    def setaddr(hi):
        if cur[0] == hi: return ""
        cur[0] = hi
        return "\n".join(f"v_add_u32 v{B.WBA+be}, {hi*32768}, v{B.WBL+be}" for be in range(nb))
    def mfmas(k):
        buf = B.WF + (k % 3) * 12; x = B.X + 4 * k; first = k == 0
        s = []
        for be in range(nb):
            c = "0" if first else f"v[{B.ACC+16*be}:{B.ACC+16*be+15}]"
            s.append(f"v_mfma_f32_32x32x16_bf16 v[{B.ACC+16*be}:{B.ACC+16*be+15}], v[{buf+4*be}:{buf+4*be+3}], v[{x}:{x+3}], {c}")
        c = "0" if first else f"v[{B.CS}:{B.CS+3}]"
        s.append(f"v_mfma_f32_16x16x32_bf16 v[{B.CS}:{B.CS+3}], v[{buf}:{buf+3}], v[{B.SEL}:{B.SEL+3}], {c}")
        return s
    def wait_for(tag):
        last = max(i for i, t in enumerate(ops) if t == tag)
        return len(ops) - 1 - last
    rest_wb = list(range(2, 8)) if (role == 0 and OPT.get('wblate')) else list(range(4, 8))
    if OPT.get('wball'): rest_wb = []
    w8 = wait_for("b1")
    for t in rest_wb: ops += ["b%d" % t] * nb
    w9 = wait_for("b3")
    nrd = 2 * nb
    p(f"s_waitcnt vmcnt({w8}) lgkmcnt(0)")
    stamp(p, "B:pre8")
    p("s_barrier")
    stamp(p, "B:post8")
    if OPT.get("prioBm"): p(f"s_setprio {OPT['prioBm']}")
    for k0 in range(2):
        hi, rr = reads(k0)
        a = setaddr(hi)
        if a: p(a)
        for r in rr: p(r)
    for k in range(32):
        m = mfmas(k)
        p(f"s_waitcnt lgkmcnt({nrd if k < 31 else 0})")
        if k in (2, 4, 6, 8, 12, 14, 16, 24): stamp(p, f"B:b{k}")
        p(m[0])
        if k < len(rest_wb):
            for g in dma_wb(rest_wb[k], role): p(g)
        if k + 2 < 32:
            if k + 4 == 8:  p(f"s_waitcnt vmcnt({w9})"); lds_cnt_inc_nowait(p, L_W1)
            if k + 4 == 16: p(f"s_waitcnt vmcnt(0)"); lds_cnt_inc_nowait(p, L_W2)
            if k + 2 == 8:  lds_cnt_wait(p, L_W1, 4)
            if k + 2 == 16: lds_cnt_wait(p, L_W2, 4)
            hi, rr = reads(k + 2)
            a = setaddr(hi)
            if a:
                p("s_waitcnt lgkmcnt(0)") if False else None
                p(a)
            rest = m[1:]
            per = (len(rr) + len(rest) - 1) // len(rest)
            ri = 0
            for mm in rest:
                for _ in range(per):
                    if ri < len(rr): p(rr[ri]); ri += 1
                p(mm)
            while ri < len(rr): p(rr[ri]); ri += 1
        else:
            for mm in m[1:]: p(mm)
    stamp(p, "B:mfma_end")
    if OPT.get("prioBm"): p(f"s_setprio {OPT.get('prioBe', 0)}")
    if OPT.get("prioBe"): p(f"s_setprio {OPT['prioBe']}")
    T = 2
    p(f"v_and_b32 v{T}, 15, v1\nv_lshrrev_b32 v{T+1}, 4, v1")
    p(f"v_cmp_gt_u32 vcc, 2, v{T}")
    p(f"v_lshlrev_b32 v{T}, 6, v{T}\nv_lshlrev_b32 v{T+1}, 4, v{T+1}\nv_add_u32 v{T}, v{T}, v{T+1}")
    if role == 0: p(f"s_cmp_eq_u32 s{sW4}, 3\ns_cselect_b32 s{sT0}, 0, s{sW4}\ns_lshl_b32 s{sT0}, s{sT0}, 7\ns_add_u32 s{sT0}, s{sT0}, {L_CSB}")
    else:         p(f"s_and_b32 s{sT0}, s{sW4}, 1\ns_lshl_b32 s{sT0}, s{sT0}, 7\ns_add_u32 s{sT0}, s{sT0}, {L_CSB}")
    p(f"v_add_u32 v{T}, s{sT0}, v{T}")
    p(f"s_and_saveexec_b64 s[{sTMP}:{sTMP+1}], vcc")
    p(f"ds_write_b128 v{T}, v[{B.CS}:{B.CS+3}]")
    p(f"s_mov_b64 exec, s[{sTMP}:{sTMP+1}]")
    L = newlbl("L_cnt")
    p(f"v_mov_b32 v4, {L_CNT}\nv_mov_b32 v5, 1\ns_waitcnt lgkmcnt(0)\ns_mov_b64 exec, 1\nds_add_u32 v4, v5\ns_mov_b64 exec, -1")
    p(f"s_mov_b32 s3, 0\n{L}:\ns_add_u32 s3, s3, 1\ns_cmp_gt_u32 s3, {SPIN}\ns_cbranch_scc1 {L}x")
    p(f"ds_read_b32 v5, v4\ns_waitcnt lgkmcnt(0)\nv_cmp_gt_u32 vcc, 4, v5\ns_cbranch_vccnz {L}\n{L}x:")
    p(f"v_and_b32 v2, 31, v1\nv_lshlrev_b32 v2, 2, v2\ns_lshl_b32 s{sT0}, s{sW4}, 7\ns_add_u32 s{sT0}, s{sT0}, {L_RS}\nv_add_u32 v2, s{sT0}, v2")
    p(f"ds_read_b32 v{B.RS}, v2\nds_read_b32 v{B.NMR}, v2 offset:512")

def silu_chunk(p, acc, cs, rs, nmr, T, out):
    for e in range(8): p(f"v_mul_f32 v{T+e}, v{nmr}, v{cs+e}")
    for e in range(8): p(f"v_fma_f32 v{T+e}, v{acc+e}, v{rs}, v{T+e}")
    for e in range(8): p(f"v_exp_f32 v{T+8+e}, -v{T+e}")
    for e in range(8): p(f"v_add_f32 v{T+8+e}, 1.0, v{T+8+e}")
    for e in range(8): p(f"v_rcp_f32 v{T+8+e}, v{T+8+e}")
    for e in range(8): p(f"v_mul_f32 v{T+e}, v{T+e}, v{T+8+e}")
    for e in range(4): p(f"v_cvt_pk_bf16_f32 v{out+e}, v{T+2*e}, v{T+2*e+1}")

def phi_elems(p, t, n, T):
    for e in range(n): p(f"v_min_f32 v{T+e}, 0, v{t+e}")
    for e in range(n): p(f"v_exp_f32 v{T+e}, v{T+e}")
    for e in range(n): p(f"v_max_f32 v{t+e}, s{sCEPS}, v{t+e}")
    for e in range(n): p(f"v_fma_f32 v{t+e}, v{t+e}, s{sLN2}, v{T+e}")

def B_epi_F(p):
    stamp(p, "B:cnt_done")
    if OPT.get("prioF"): p(f"s_setprio {OPT['prioF']}")
    B = BR
    CSV, T, OUT, VA = 128, 176, 192, 200
    p(f"v_lshrrev_b32 v3, 5, v1\nv_lshlrev_b32 v3, 4, v3\nv_add_u32 v3, {L_CSB}, v3")
    for be in range(3):
        p(f"s_add_u32 s{sT0}, s{sW4}, {be}\ns_cmp_ge_u32 s{sT0}, 3\ns_cselect_b32 s{sT1}, 3, 0\ns_sub_u32 s{sT0}, s{sT0}, s{sT1}")
        p(f"s_cmp_ge_u32 s{sT0}, 3\ns_cselect_b32 s{sT1}, 3, 0\ns_sub_u32 s{sTMP+2+be}, s{sT0}, s{sT1}")
        p(f"s_lshl_b32 s{sT0}, s{sTMP+2+be}, 7\nv_add_u32 v{VA+be}, s{sT0}, v3")
        for q in range(4):
            p(f"ds_read_b128 v[{CSV+16*be+4*q}:{CSV+16*be+4*q+3}], v{VA+be} offset:{q*32}")
    p(f"v_lshlrev_b32 v{VA+3}, 4, v1")
    p(f"s_lshl_b32 s{sT2}, s{sI}, 2\ns_add_u32 s{sT2}, s{sT2}, s{sW4}\ns_mul_i32 s{sT2}, s{sT2}, 112\ns_lshr_b32 s{sT3}, s{sCOLB}, 4\ns_add_u32 s{sT2}, s{sT2}, s{sT3}")
    p(f"s_lshl_b32 s{sHB}, s{sT2}, 10\ns_add_u32 s{sHB}, s{sHB}, {WS_H}")
    ch = 0
    for be in range(3):
        p(f"s_waitcnt lgkmcnt({8-4*be})")
        for qp in range(2):
            o = OUT + 4*(ch & 1)
            silu_chunk(p, B.ACC + 16*be + 8*qp, CSV + 16*be + 8*qp, B.RS, B.NMR, T, o)
            stamp(p, f"B:v{ch}")
            p(f"s_lshl_b32 s{sT2}, s{sTMP+2+be}, 11\ns_add_u32 s{sT2}, s{sT2}, s{sHB}\ns_add_u32 s{sT2}, s{sT2}, {qp*1024}")
            p(f"buffer_store_dwordx4 v[{o}:{o+3}], v{VA+3}, s[{S_WS}:{S_WS+3}], s{sT2} offen sc1")
            stamp(p, f"B:s{ch}")
            ch += 1
    stamp(p, "B:epi_valu")
    p("s_waitcnt vmcnt(0)")
    stamp(p, "B:drained")
    store_flag(p, flagB_addr(WS_FB))

def flagB_addr(base):
    return (f"s_lshl_b32 s{sT2}, s{sI}, 1\ns_lshr_b32 s{sT3}, s{sW4}, 1\ns_add_u32 s{sT2}, s{sT2}, s{sT3}\ns_lshl_b32 s{sT2}, s{sT2}, 7\n"
            f"s_lshl_b32 s{sT3}, s{sJ}, 1\ns_and_b32 s{sT4}, s{sW4}, 1\ns_add_u32 s{sT3}, s{sT3}, s{sT4}\ns_lshl_b32 s{sT3}, s{sT3}, 2\n"
            f"s_add_u32 s{sT0}, s{sT2}, s{sT3}\ns_add_u32 s{sT0}, s{sT0}, {base}")

def B_epi_Q(p):
    B = BR
    CSV, T, PQ, VA = 128, 160, 224, 170
    p(f"v_lshrrev_b32 v3, 5, v1\nv_lshlrev_b32 v3, 4, v3\nv_add_u32 v3, {L_CSB}, v3")
    p(f"s_and_b32 s{sT0}, s{sW4}, 1\ns_lshl_b32 s{sT0}, s{sT0}, 7\nv_add_u32 v{VA}, s{sT0}, v3\nv_xor_b32 v{VA+1}, 128, v{VA}")
    for be in range(2):
        for q in range(4):
            p(f"ds_read_b128 v[{CSV+16*be+4*q}:{CSV+16*be+4*q+3}], v{VA+be} offset:{q*32}")
    for be in range(2):
        p(f"s_waitcnt lgkmcnt({4-4*be})")
        for qp in range(2):
            a = B.ACC + 16*be + 8*qp; cs = CSV + 16*be + 8*qp
            for e in range(8): p(f"v_mul_f32 v{T+e}, v{B.NMR}, v{cs+e}")
            for e in range(8): p(f"v_fma_f32 v{a+e}, v{a+e}, v{B.RS}, v{T+e}")
            phi_elems(p, a, 8, T)
            for e in range(4): p(f"v_cvt_pk_bf16_f32 v{PQ+8*be+4*qp+e}, v{a+2*e}, v{a+2*e+1}")
    return PQ

def wait_c2(p):
    L = newlbl("L_c2")
    p(f"s_lshl_b32 s{sT0}, s{sJ}, 8\ns_add_u32 s{sT0}, s{sT0}, {WS_C2}")
    p(f"v_and_b32 v2, 1, v1\nv_lshlrev_b32 v2, 7, v2")
    p(f"s_mov_b32 s3, 0\n{L}:\ns_add_u32 s3, s3, 1\ns_cmp_gt_u32 s3, {SPIN}\ns_cbranch_scc1 {L}x")
    p(f"buffer_load_dword v3, v2, s[{S_WS}:{S_WS+3}], s{sT0} offen sc1\ns_waitcnt vmcnt(0)\nv_cmp_ne_u32 vcc, 32, v3\ns_cbranch_vccz {L}x\ns_sleep 4\ns_branch {L}\n{L}x:")

def o_stage(p, PQ, T0=128):
    LD = T0; KA = T0 + 32; D4 = T0 + 48; OUT = T0 + 80; VA = T0 + 88; GL = T0
    p(f"v_and_b32 v2, 31, v1\nv_lshrrev_b32 v3, 5, v1")
    p(f"v_lshlrev_b32 v4, 5, v3\nv_add_u32 v4, v4, v2\nv_lshlrev_b32 v4, 2, v4")
    p(f"v_lshlrev_b32 v5, 2, v3\nv_add_u32 v5, 256, v5")
    p(f"v_cmp_gt_u32 vcc, 16, v2")
    p(f"v_cndmask_b32 v{VA}, v5, v4, vcc")
    p(f"v_add_u32 v4, 64, v4\nv_add_u32 v5, 8, v5")
    p(f"v_cndmask_b32 v{VA+1}, v5, v4, vcc")
    p(f"v_lshlrev_b32 v{VA+2}, 4, v1")
    p(f"s_and_b32 s{sT1}, s{sW4}, 1\ns_mul_i32 s{sT2}, s{sT1}, 2560\ns_add_u32 s{sTMP}, s{sT2}, {L_KVL}\ns_xor_b32 s{sT1}, s{sT1}, 1\ns_mul_i32 s{sT2}, s{sT1}, 2560\ns_add_u32 s{sTMP+1}, s{sT2}, {L_KVL}")
    p(f"s_lshl_b32 s{sT0}, s{sJ}, 1\ns_and_b32 s{sT1}, s{sW4}, 1\ns_add_u32 s{sT0}, s{sT0}, s{sT1}\ns_lshl_b32 s{sT0}, s{sT0}, 12\ns_add_u32 s{sT0}, s{sT0}, {WS_KVZ}")
    p(f"s_lshr_b32 s{sT2}, s{sW4}, 1\ns_lshl_b32 s{sT3}, s{sT2}, 10\ns_add_u32 s{sT3}, s{sT3}, s{sT0}\ns_add_u32 s{sT0}, s{sT3}, 2048")
    p(f"s_mov_b32 s{sZ}, s{sT3}\ns_mov_b32 s{sPB}, s{sT0}")
    p(f"s_mul_i32 s{sT4}, s{sT2}, 1280\ns_add_u32 s{sT4}, s{sT4}, s{sTMP}")
    p(f"v_lshrrev_b32 v2, 4, v1\nv_mul_u32_u24 v2, 320, v2\nv_and_b32 v3, 15, v1\nv_lshlrev_b32 v3, 4, v3\nv_add_u32 v2, v2, v3\nv_add_u32 v{VA+3}, s{sT4}, v2")
    p(f"v_and_b32 v2, 3, v1\nv_mul_u32_u24 v3, 320, v2\nv_add_u32 v3, 256, v3\nv_add_u32 v7, s{sT4}, v3\nv_lshlrev_b32 v6, 8, v2")
    p(f"s_lshl_b32 s{sT4}, s{sI}, 2\ns_add_u32 s{sT4}, s{sT4}, s{sW4}\ns_lshl_b32 s{sT4}, s{sT4}, 5\ns_lshl_b32 s{sT5}, s{sJ}, 2\ns_add_u32 s{sT4}, s{sT4}, s{sT5}")
    p(f"s_lshl_b32 s{sT4}, s{sT4}, 10\ns_add_u32 s{sHB}, s{sT4}, {WS_O}")
    p(f"s_and_b32 s{sT1}, s{sW4}, 1\ns_lshl_b32 s{sT1}, s{sT1}, 11")
    p(f"s_add_u32 s{sTMP+2}, s{sHB}, s{sT1}\ns_xor_b32 s{sT1}, s{sT1}, 2048\ns_add_u32 s{sTMP+3}, s{sHB}, s{sT1}")
    wait_c2(p)
    stamp(p, "B:c2")
    if OPT.get("prioO"): p(f"s_setprio {OPT['prioO']}")
    p(f"buffer_load_dwordx4 v[{GL}:{GL+3}], v{VA+2}, s[{S_WS}:{S_WS+3}], s{sZ} offen sc1")
    p(f"s_mov_b64 exec, 0xf\nbuffer_load_dwordx4 v[{GL+4}:{GL+7}], v6, s[{S_WS}:{S_WS+3}], s{sPB} offen sc1\ns_mov_b64 exec, -1")
    p(f"s_waitcnt vmcnt(0)\nds_write_b128 v{VA+3}, v[{GL}:{GL+3}]\ns_mov_b64 exec, 0xf\nds_write_b128 v7, v[{GL+4}:{GL+7}]\ns_mov_b64 exec, -1")
    lds_cnt_inc(p, L_KC)
    lds_cnt_wait(p, L_KC, 4)
    for be in range(2):
        for hh in range(2):
            h = 2*be + hh
            p(f"v_add_u32 v2, s{sTMP+be}, v{VA+hh}")
            for r in range(8):
                p(f"ds_read_b32 v{LD+8*h+r}, v2 offset:{r*320}")
    for h in range(4):
        be, hh = h >> 1, h & 1
        d = D4 + 16 * (h & 1)
        p(f"s_waitcnt lgkmcnt({min(15, (3-h)*8)})")
        for e in range(4): p(f"v_cvt_pk_bf16_f32 v{KA+4*h+e}, v{LD+8*h+2*e}, v{LD+8*h+2*e+1}")
        p(f"v_mfma_f32_32x32x16_bf16 v[{d}:{d+15}], v[{KA+4*h}:{KA+4*h+3}], v[{PQ+8*be+4*hh}:{PQ+8*be+4*hh+3}], 0")
        if h >= 1: o_fin(p, h - 1, D4, OUT, VA)
    o_fin(p, 3, D4, OUT, VA)
    p("s_waitcnt vmcnt(0)")
    store_flag(p, flagB_addr(WS_FO))

def o_fin(p, h, D4, OUT, VA):
    be, hh = h >> 1, h & 1
    d = D4 + 16 * (h & 1); o = OUT + 4 * (h & 1)
    p(f"v_add_f32 v{d+8}, {fhex(1e-6)}, v{d+8}")
    p(f"v_rcp_f32 v{d+8}, v{d+8}")
    for e in range(8): p(f"v_mul_f32 v{d+e}, v{d+e}, v{d+8}")
    for e in range(4): p(f"v_cvt_pk_bf16_f32 v{o+e}, v{d+2*e}, v{d+2*e+1}")
    p(f"s_add_u32 s{sT5}, s{sTMP+2+be}, {hh*1024}")
    p(f"buffer_store_dwordx4 v[{o}:{o+3}], v{VA+2}, s[{S_WS}:{S_WS+3}], s{sT5} offen sc1")

class AR:
    ACC = 16; XF = 80; WF = 184; CS = 112; SEL = 120; SEL2 = 236
    AX = 124; AX2 = 128; AW = 132; AW2 = 134
    E = 136
    CL = 136
    STL = 168
    POLL = 172
    VCL = 173
    VSL = 174
    PF = 255
    CSO = 176

def zero_ctrl(p):
    L = newlbl("L_nz")
    p(f"s_cmp_ge_u32 s2, 8\ns_cbranch_scc1 {L}")
    L2 = newlbl("L_nn")
    p(f"s_or_b32 s{sT0}, s2, s{sW4}\ns_cmp_lg_u32 s{sT0}, 0\ns_cbranch_scc1 {L2}")
    p(f"s_load_dword s{sT3}, s[{sWSP}:{sWSP+1}], {WS_NONCE} glc")
    p(f"{L2}:")
    p("v_mov_b32 v8, 0\nv_mov_b32 v9, 0\nv_mov_b32 v10, 0\nv_mov_b32 v11, 0\nv_lshlrev_b32 v2, 4, v1")
    p(f"s_lshl_b32 s{sT0}, s2, 13\ns_lshl_b32 s{sT1}, s{sW4}, 11\ns_add_u32 s{sT0}, s{sT0}, s{sT1}\ns_add_u32 s{sT0}, s{sT0}, {WS_KVZ}")
    p(f"buffer_store_dwordx4 v[8:11], v2, s[{S_WS}:{S_WS+3}], s{sT0} offen sc1\nbuffer_store_dwordx4 v[8:11], v2, s[{S_WS}:{S_WS+3}], s{sT0} offen offset:1024 sc1")
    p(f"s_lshl_b32 s{sT0}, s2, 8\ns_add_u32 s{sT0}, s{sT0}, {WS_C2}\ns_mov_b64 exec, 0xffff")
    p(f"buffer_store_dwordx4 v[8:11], v2, s[{S_WS}:{S_WS+3}], s{sT0} offen sc1\ns_mov_b64 exec, -1")
    L3 = newlbl("L_nn")
    p(f"s_or_b32 s{sT0}, s2, s{sW4}\ns_cmp_lg_u32 s{sT0}, 0\ns_cbranch_scc1 {L3}")
    p(f"s_waitcnt lgkmcnt(0)\ns_add_u32 s{sT3}, s{sT3}, 1\ns_or_b32 s{sT3}, s{sT3}, 1")
    p(f"v_mov_b32 v3, s{sT3}\nv_mov_b32 v4, {DBG_NONCE}\nv_mov_b32 v5, {WS_NONCE}\ns_mov_b64 exec, 1")
    p(f"buffer_store_dword v3, v4, s[{S_DBG}:{S_DBG+3}], 0 offen sc1\nbuffer_store_dword v3, v5, s[{S_WS}:{S_WS+3}], 0 offen sc1\ns_mov_b64 exec, -1")
    p(f"{L3}:")
    p(f"s_lshl_b32 s{sT0}, s2, 2\ns_add_u32 s{sT0}, s{sT0}, s{sW4}\ns_lshl_b32 s{sT0}, s{sT0}, 2\nv_mov_b32 v2, s{sT0}\nv_mov_b32 v3, 1")
    p("s_waitcnt vmcnt(0)")
    p(f"s_mov_b64 exec, 1\nbuffer_store_dword v3, v2, s[{S_DBG}:{S_DBG+3}], 0 offen sc1\ns_mov_b64 exec, -1")
    p(f"{L}:")

def get_nonce_issue(p):
    p(f"v_mov_b32 v58, {DBG_NONCE}\nbuffer_load_dword v59, v58, s[{S_DBG}:{S_DBG+3}], 0 offen sc1")

def get_nonce(p):
    L = newlbl("L_gn")
    p(f"s_mov_b32 s3, 0\n{L}:\ns_waitcnt vmcnt(0)\nv_readfirstlane_b32 s{sNONCE}, v59\ns_cmp_lg_u32 s{sNONCE}, 0\ns_cbranch_scc1 {L}x")
    p(f"s_add_u32 s3, s3, 1\ns_cmp_gt_u32 s3, {SPIN}\ns_cbranch_scc1 {L}x")
    p(f"buffer_load_dword v59, v58, s[{S_DBG}:{S_DBG+3}], 0 offen sc1\ns_branch {L}\n{L}x:")
    p(f"v_mov_b32 v2, {L_NONCE}\nv_mov_b32 v3, s{sNONCE}\nds_write_b32 v2, v3")

def A_stats_issue(p):
    p(f"s_lshl_b32 s{sT0}, s{sROLE}, 3\ns_add_u32 s{sT0}, s{sT0}, s{sJ}\ns_lshl_b32 s{sT0}, s{sT0}, 3\ns_lshl_b32 s{sT1}, s{sW4}, 1\ns_add_u32 s{sT0}, s{sT0}, s{sT1}")
    p(f"s_lshl_b32 s{sT1}, s{sI}, 7\ns_add_u32 s{sZ}, s{sT0}, s{sT1}\ns_lshl_b32 s{sT0}, s{sZ}, 10")
    p(f"v_lshlrev_b32 v2, 4, v1")
    p(f"buffer_load_dwordx4 v[40:43], v2, s[{S_X}:{S_X+3}], s{sT0} offen\nbuffer_load_dwordx4 v[44:47], v2, s[{S_X}:{S_X+3}], s{sT0} offen offset:1024")

def A_prefetch_setup(p):
    p(f"s_cmp_eq_u32 s{sW4}, 0\ns_cselect_b32 s96, s{KQKV}, s{KW1}\ns_cselect_b32 s97, s{KQKV+1}, s{KW1+1}\ns_mov_b32 s{sT0}, 1835008\ns_mov_b32 s{sT1}, 1572864\ns_cselect_b32 s98, s{sT1}, s{sT0}\ns_mov_b32 s{sT2}, 56\ns_mov_b32 s{sT3}, 48\ns_cselect_b32 s{sT2}, s{sT3}, s{sT2}")
    p(f"s_cmp_eq_u32 s{sW4}, 2\ns_cselect_b32 s96, s{KW2}, s96\ns_cselect_b32 s97, s{KW2+1}, s97")
    p(f"s_cmp_eq_u32 s{sW4}, 3\ns_cselect_b32 s96, s{KWO}, s96\ns_cselect_b32 s97, s{KWO+1}, s97\ns_mov_b32 s{sT0}, 524288\ns_cselect_b32 s98, s{sT0}, s98\ns_mov_b32 s{sT3}, 16\ns_cselect_b32 s{sT2}, s{sT3}, s{sT2}")
    p(f"s_mov_b32 s99, 0x20000\ns_mul_i32 s{sT2}, s{sT2}, s2\ns_lshl_b32 s{sPA}, s{sT2}, 7")

def A_stats_compute(p):
    p("s_waitcnt vmcnt(0)")
    get_nonce_issue(p)
    for r in range(2):
        for d in range(4):
            x = 40 + 4*r + d
            p(f"v_lshlrev_b32 v48, 16, v{x}\nv_and_b32 v49, 0xffff0000, v{x}")
            if d == 0:
                p(f"v_add_f32 v{50+2*r}, v48, v49\nv_mul_f32 v{51+2*r}, v48, v48\nv_fmac_f32 v{51+2*r}, v49, v49")
            else:
                p(f"v_add_f32 v{50+2*r}, v{50+2*r}, v48\nv_fmac_f32 v{51+2*r}, v48, v48\nv_add_f32 v{50+2*r}, v{50+2*r}, v49\nv_fmac_f32 v{51+2*r}, v49, v49")
    for ctl in ("row_shr:1", "row_shr:2", "row_shr:4", "row_shr:8"):
        for v in range(50, 54): p(f"v_add_f32_dpp v{v}, v{v}, v{v} {ctl} row_mask:0xf bank_mask:0xf bound_ctrl:0")
    for v in range(50, 54): p(f"v_add_f32_dpp v{v}, v{v}, v{v} row_bcast:15 row_mask:0xa bank_mask:0xf")
    for v in range(50, 54): p(f"v_add_f32_dpp v{v}, v{v}, v{v} row_bcast:31 row_mask:0xc bank_mask:0xf")
    for r in range(2):
        s, q = 50 + 2*r, 51 + 2*r
        p(f"v_mul_f32 v{s}, {fhex(1.0/512)}, v{s}\nv_mul_f32 v{q}, {fhex(1.0/512)}, v{q}")
        p(f"v_fma_f32 v{q}, -v{s}, v{s}, v{q}\nv_max_f32 v{q}, 0, v{q}\nv_add_f32 v{q}, {fhex(1e-5)}, v{q}")
        p(f"v_rsq_f32 v{q}, v{q}")
        p(f"v_mul_f32 v{54+2*r}, {fhex(LOG2E)}, v{q}")
        p(f"v_mul_f32 v{55+2*r}, v{54+2*r}, v{s}\nv_sub_f32 v{55+2*r}, 0, v{55+2*r}")
    get_nonce(p)
    p(f"v_mov_b32 v60, v56\nv_mov_b32 v61, v57\nv_mov_b32 v56, s{sNONCE}\nv_mov_b32 v57, s{sNONCE}\nv_mov_b32 v62, s{sNONCE}\nv_mov_b32 v63, s{sNONCE}")
    p(f"s_lshl_b32 s{sT0}, s{sZ}, 4\ns_add_u32 s{sT0}, s{sT0}, {WS_STG}\nv_mov_b32 v2, 0")
    p(f"s_mov_b32 exec_lo, 0\ns_mov_b32 exec_hi, 0x80000000")
    p(f"buffer_store_dwordx4 v[54:57], v2, s[{S_WS}:{S_WS+3}], s{sT0} offen sc1\nbuffer_store_dwordx4 v[60:63], v2, s[{S_WS}:{S_WS+3}], s{sT0} offen offset:16 sc1")
    p(f"s_mov_b64 exec, -1")

def A_setup(p, role):
    A = AR
    p(f"s_and_b32 s{sT0}, s{sW4}, 1\ns_lshr_b32 s{sT1}, s{sW4}, 1")
    p(f"v_and_b32 v2, 31, v1\nv_lshrrev_b32 v3, 5, v1")
    p(f"v_lshrrev_b32 v4, 1, v2\nv_and_b32 v4, 7, v4\nv_xor_b32 v4, v4, v3\nv_lshlrev_b32 v4, 4, v4")
    p(f"v_lshlrev_b32 v5, 7, v2\nv_add_u32 v4, v4, v5\ns_lshl_b32 s{sT2}, s{sT0}, 13\nv_add_u32 v4, s{sT2}, v4")
    for pp in range(4):
        p(f"v_xor_b32 v{A.AX+pp}, {pp*32}, v4\nv_add_u32 v{A.AX2+pp}, 65536, v{A.AX+pp}")
    p(f"v_lshrrev_b32 v2, 5, v1\nv_lshlrev_b32 v2, 3, v2\nv_and_b32 v3, 15, v1\nv_lshrrev_b32 v4, 2, v3\nv_add_u32 v2, v2, v4\nv_lshlrev_b32 v2, 7, v2")
    p(f"v_lshrrev_b32 v4, 3, v3\nv_lshlrev_b32 v4, 6, v4\nv_add_u32 v2, v2, v4")
    p(f"v_lshrrev_b32 v4, 4, v1\nv_and_b32 v4, 1, v4\nv_lshlrev_b32 v4, 5, v4\nv_add_u32 v2, v2, v4\nv_and_b32 v4, 3, v3\nv_lshlrev_b32 v4, 3, v4\nv_add_u32 v2, v2, v4")
    if role == 0:
        p(f"s_lshl_b32 s{sT2}, s{sT0}, 6\nv_xor_b32 v2, s{sT2}, v2\ns_lshl_b32 s{sT2}, s{sT1}, 13\ns_add_u32 s{sT2}, s{sT2}, 16384")
        p(f"v_add_u32 v{A.AW}, s{sT2}, v2\nv_xor_b32 v{A.AW+1}, 64, v{A.AW}")
    else:
        p(f"s_lshl_b32 s{sT2}, s{sT1}, 6\nv_xor_b32 v2, s{sT2}, v2")
        p(f"v_add_u32 v{A.AW}, 16384, v2\nv_add_u32 v{A.AW+1}, {16384+8192}, v2")
    p(f"v_add_u32 v{A.AW2}, 65536, v{A.AW}\nv_add_u32 v{A.AW2+1}, 65536, v{A.AW+1}")
    make_sel(p, A.SEL, 2, 3)
    p(f"s_cmp_ge_u32 s{sI}, 8\ns_cselect_b32 s{sT2}, -1, 0")
    for k in range(4):
        p(f"v_and_b32 v{A.SEL2+k}, s{sT2}, v{A.SEL+k}")
    p(f"s_not_b32 s{sT2}, s{sT2}")
    for k in range(4):
        p(f"v_and_b32 v{A.SEL+k}, s{sT2}, v{A.SEL+k}")
    p(f"v_mov_b32 v2, {L_CNT}\nv_mov_b32 v3, 0\nds_write_b32 v2, v3\nds_write_b32 v2, v3 offset:4")
    p(f"v_mov_b32 v2, {L_LF}\nv_mov_b32 v4, 0\nv_mov_b32 v5, 0\nv_mov_b32 v6, 0\nv_mov_b32 v7, 0\nds_write_b128 v2, v[4:7]\nds_write_b128 v2, v[4:7] offset:16")

def poll_check(p, reg, expect, addr_reg, srd_):
    L = newlbl("L_pc")
    p(f"v_cmp_ne_u32 vcc, {expect}, v{reg}\ns_cbranch_vccz {L}x")
    p(f"s_mov_b32 s3, 0\n{L}:\ns_add_u32 s3, s3, 1\ns_cmp_gt_u32 s3, {SPIN}\ns_cbranch_scc1 {L}x")
    p(f"buffer_load_dword v{reg}, v{addr_reg}, s[{srd_}:{srd_+3}], 0 offen sc1\ns_waitcnt vmcnt(0)\nv_cmp_ne_u32 vcc, {expect}, v{reg}\ns_cbranch_vccnz {L}\n{L}x:")

def w2_touch(p, dst):
    p(f"s_lshl_b32 s{sT2}, s{sC}, 7\ns_lshr_b32 s{sT1}, s2, 3\ns_and_b32 s{sT1}, s{sT1}, 7")
    p(f"s_mul_i32 s{sT3}, s{sT1}, 224\ns_mul_i32 s{sT4}, s{sW4}, 56\ns_add_u32 s{sT3}, s{sT3}, s{sT4}\ns_lshl_b32 s{sT3}, s{sT3}, 10\ns_add_u32 s{sT3}, s{sT3}, s{sT2}")
    p(f"v_min_u32 v2, 55, v1\nv_lshlrev_b32 v2, 10, v2\nbuffer_load_dword v{dst}, v2, s[{S_W2}:{S_W2+3}], s{sT3} offen")
    p(f"s_lshl_b32 s{sT3}, s{sT1}, 6\ns_lshl_b32 s{sT4}, s{sW4}, 4\ns_add_u32 s{sT3}, s{sT3}, s{sT4}\ns_lshl_b32 s{sT3}, s{sT3}, 10\ns_add_u32 s{sT3}, s{sT3}, s{sT2}")
    p(f"v_and_b32 v2, 15, v1\nv_lshlrev_b32 v2, 10, v2\ns_mov_b64 exec, 0xffff\nbuffer_load_dword v{dst}, v2, s[{S_WO}:{S_WO+3}], s{sT3} offen\ns_mov_b64 exec, -1")

def w2_touch_piece(p, dst, piece, npieces):
    nw = 56 // npieces; no = 16 // npieces
    p(f"s_lshl_b32 s{sT2}, s{sC}, 7\ns_lshr_b32 s{sT1}, s2, 3\ns_and_b32 s{sT1}, s{sT1}, 7")
    p(f"s_mul_i32 s{sT3}, s{sT1}, 224\ns_mul_i32 s{sT4}, s{sW4}, 56\ns_add_u32 s{sT3}, s{sT3}, s{sT4}\ns_add_u32 s{sT3}, s{sT3}, {piece*nw}\ns_lshl_b32 s{sT3}, s{sT3}, 10\ns_add_u32 s{sT3}, s{sT3}, s{sT2}")
    p(f"v_lshlrev_b32 v2, 10, v1\ns_mov_b64 exec, {hex((1 << nw) - 1)}\nbuffer_load_dword v{dst}, v2, s[{S_W2}:{S_W2+3}], s{sT3} offen")
    p(f"s_lshl_b32 s{sT3}, s{sT1}, 6\ns_lshl_b32 s{sT4}, s{sW4}, 4\ns_add_u32 s{sT3}, s{sT3}, s{sT4}\ns_add_u32 s{sT3}, s{sT3}, {piece*no}\ns_lshl_b32 s{sT3}, s{sT3}, 10\ns_add_u32 s{sT3}, s{sT3}, s{sT2}")
    p(f"s_mov_b64 exec, {hex((1 << no) - 1)}\nbuffer_load_dword v{dst}, v2, s[{S_WO}:{S_WO+3}], s{sT3} offen\ns_mov_b64 exec, -1")

def smem_warm(p):
    n = int(OPT.get("smw", 1))
    p(f"s_mul_i32 s{sT0}, s2, 56\ns_mul_i32 s{sT1}, s{sW4}, 14\ns_add_u32 s{sT0}, s{sT0}, s{sT1}\ns_lshl_b32 s{sT0}, s{sT0}, 7")
    p(f"s_add_u32 s94, s{KW2}, s{sT0}\ns_addc_u32 s95, s{KW2+1}, 0")
    for i in range(14):
        for h in range(n): p(f"s_load_dword s76, s[94:95], {i*128 + h*64}")
    p(f"s_lshl_b32 s{sT0}, s2, 4\ns_lshl_b32 s{sT1}, s{sW4}, 2\ns_add_u32 s{sT0}, s{sT0}, s{sT1}\ns_lshl_b32 s{sT0}, s{sT0}, 7")
    p(f"s_add_u32 s98, s{KWO}, s{sT0}\ns_addc_u32 s99, s{KWO+1}, 0")
    for i in range(4):
        for h in range(n): p(f"s_load_dword s76, s[98:99], {i*128 + h*64}")

def w2_touch_split(p, dst, which):
    p(f"s_lshl_b32 s{sT2}, s{sC}, 7\ns_lshr_b32 s{sT1}, s2, 3\ns_and_b32 s{sT1}, s{sT1}, 7\ns_mul_i32 s{sT4}, s{sW4}, 448")
    if which == 0:
        p(f"s_lshl_b32 s{sT3}, s{sT1}, 5\nv_and_b32 v2, 31, v1\nv_add_u32 v2, s{sT3}, v2\nv_add_u32 v3, 192, v2\nv_cmp_gt_u32 vcc, 128, v2\nv_cndmask_b32 v2, v3, v2, vcc")
        p(f"v_add_u32 v2, s{sT4}, v2\nv_lshlrev_b32 v2, 10, v2\ns_mov_b32 exec_hi, 0\nbuffer_load_dword v{dst}, v2, s[{S_W2}:{S_W2+3}], s{sT2} offen\ns_mov_b32 exec_hi, -1")
    else:
        p(f"s_mul_i32 s{sT3}, s{sT1}, 24\ns_add_u32 s{sT3}, s{sT3}, s{sT4}\ns_add_u32 s{sT3}, s{sT3}, 128\ns_lshl_b32 s{sT3}, s{sT3}, 10\ns_add_u32 s{sT3}, s{sT3}, s{sT2}")
        p(f"v_lshlrev_b32 v2, 10, v1\ns_mov_b64 exec, 0xffffff\nbuffer_load_dword v{dst}, v2, s[{S_W2}:{S_W2+3}], s{sT3} offen")
        p(f"s_lshl_b32 s{sT3}, s{sW4}, 7\ns_lshl_b32 s{sT4}, s{sT1}, 4\ns_add_u32 s{sT3}, s{sT3}, s{sT4}\ns_lshl_b32 s{sT3}, s{sT3}, 10\ns_add_u32 s{sT3}, s{sT3}, s{sT2}")
        p(f"s_mov_b64 exec, 0xffff\nbuffer_load_dword v{dst}, v2, s[{S_WO}:{S_WO+3}], s{sT3} offen\ns_mov_b64 exec, -1")

def mall_warm(p, dst):
    L = newlbl("L_mw")
    p(f"s_cmp_ge_u32 s{sW4}, 2\ns_cbranch_scc1 {L}a")
    p(f"s_mul_i32 s{sT0}, s2, 56\ns_mul_i32 s{sT1}, s{sW4}, 28\ns_add_u32 s{sT0}, s{sT0}, s{sT1}\ns_lshl_b32 s{sT0}, s{sT0}, 7\nv_min_u32 v2, 27, v1\nv_lshlrev_b32 v2, 7, v2")
    p(f"s_mov_b32 exec_hi, 0\nbuffer_load_dword v{dst}, v2, s[{S_W2}:{S_W2+3}], s{sT0} offen\ns_mov_b32 exec_hi, -1\ns_branch {L}")
    p(f"{L}a:\ns_cmp_lg_u32 s{sW4}, 2\ns_cbranch_scc1 {L}")
    p(f"s_lshl_b32 s{sT0}, s2, 11\nv_lshlrev_b32 v2, 7, v1\ns_mov_b64 exec, 0xffff\nbuffer_load_dword v{dst}, v2, s[{S_WO}:{S_WO+3}], s{sT0} offen\ns_mov_b64 exec, -1")
    p(f"{L}:")

def wb_touch(p, dst):
    p(f"s_and_b32 s{sT0}, s{sI}, 7\ns_lshl_b32 s{sT0}, s{sT0}, 6\ns_lshl_b32 s{sT1}, s{sW4}, 4\ns_add_u32 s{sT0}, s{sT0}, s{sT1}\ns_mul_i32 s{sT0}, s{sT0}, s{sRS}")
    p(f"s_lshl_b32 s{sT1}, s{sCOLB}, 1\ns_and_b32 s{sT1}, s{sT1}, 0xffffff80\ns_add_u32 s{sT0}, s{sT0}, s{sT1}")
    p(f"v_lshrrev_b32 v2, 1, v1\nv_and_b32 v2, 15, v2\nv_mul_lo_u32 v2, v2, s{sRS}\nv_and_b32 v3, 1, v1\nv_lshlrev_b32 v3, 7, v3\nv_add_u32 v2, v2, v3")
    p(f"s_mov_b32 exec_hi, 0\nbuffer_load_dword v{dst}, v2, s[{S_W}:{S_W+3}], s{sT0} offen\ns_mov_b32 exec_hi, -1")

def A_phaseA(p, role):
    A = AR
    nsm = 1 if role == 0 else 2
    def reads(k):
        s_, pp = k // 4, k % 4
        slot = s_ % 4; b = k % 3
        ax = (A.AX2 if slot >= 2 else A.AX) + pp
        aw = (A.AW2 if slot >= 2 else A.AW)
        so = (slot & 1) * SLOT
        r = []
        for be in range(2):
            for u in range(2):
                r.append(f"ds_read_b64_tr_b16 v[{A.WF+8*b+4*be+2*u}:{A.WF+8*b+4*be+2*u+1}], v{aw+be} offset:{so + pp*2048 + u*512}")
        for tt in range(2):
            r.append(f"ds_read_b128 v[{A.XF+8*b+4*tt}:{A.XF+8*b+4*tt+3}], v{ax} offset:{so + tt*4096}")
        if OPT.get("noAreads"): r = ["s_nop 0"] * 6
        return r
    def mfmas(k):
        b = k % 3; m = []
        if OPT.get("noAmfma"): return ["s_nop 0"] * 4
        for tt in range(2):
            for be in range(2):
                acc = A.ACC + 32*tt + 16*be
                c = "0" if k == 0 else f"v[{acc}:{acc+15}]"
                w = f"v[{A.WF+8*b+4*be}:{A.WF+8*b+4*be+3}]"; x = f"v[{A.XF+8*b+4*tt}:{A.XF+8*b+4*tt+3}]"
                m.append(f"v_mfma_f32_32x32x16_bf16 v[{acc}:{acc+15}], {w}, {x}, {c}" if role == 0 else f"v_mfma_f32_32x32x16_bf16 v[{acc}:{acc+15}], {x}, {w}, {c}")
        if k < 4:
            sel = A.SEL if k < 2 else A.SEL2
            for be in range(nsm):
                c = "0" if k == 0 else f"v[{A.CS+4*be}:{A.CS+4*be+3}]"
                m.append(f"v_mfma_f32_16x16x32_bf16 v[{A.CS+4*be}:{A.CS+4*be+3}], v[{A.WF+8*b+4*be}:{A.WF+8*b+4*be+3}], v[{sel}:{sel+3}], {c}")
        return m
    p("s_waitcnt lgkmcnt(0)")
    stamp(p, "A:pre0")
    p("s_barrier")
    stamp(p, "A:post0")
    for r in reads(0) + reads(1): p(r)
    for k in range(32):
        m = mfmas(k)
        bar = (k + 2) % 4 == 0 and k + 2 < 32
        p(f"s_waitcnt lgkmcnt({0 if (bar or k >= 30) else 6})")
        if k in (4, 8, 16, 24): stamp(p, f"A:k{k}")
        p(m[0])
        if k == int(OPT.get("mwk", -1)): mall_warm(p, A.PF)
        if k == int(OPT.get("wbk", 4)) and not OPT.get("ntWB"): wb_touch(p, A.PF)
        if OPT.get("w2ks"):
            ks = [int(x) for x in OPT["w2ks"].split(",")]
            if k in ks: w2_touch_piece(p, A.PF, ks.index(k), len(ks))
        elif OPT.get("w2split"):
            if k == int(OPT.get("w2k", 28)): w2_touch_split(p, A.PF, 0)
        elif k == int(OPT.get("w2k", 16)) and not OPT.get("ntW2") and not OPT.get("w2ch"): w2_touch(p, A.PF)
        if k == 5:
            p(f"v_and_b32 v2, 15, v1\nv_lshrrev_b32 v3, 4, v1\nv_cmp_gt_u32 vcc, 2, v2")
            p(f"v_lshlrev_b32 v2, 6, v2\nv_lshlrev_b32 v3, 4, v3\nv_add_u32 v2, v2, v3")
            if role == 0: p(f"s_lshl_b32 s{sT0}, s{sW4}, 7")
            else:         p(f"s_lshr_b32 s{sT0}, s{sW4}, 1\ns_lshl_b32 s{sT0}, s{sT0}, 7")
            p(f"s_add_u32 s{sT0}, s{sT0}, {L_CSPL}\nv_add_u32 v2, s{sT0}, v2")
            p(f"s_and_saveexec_b64 s[{sTMP}:{sTMP+1}], vcc")
            for be in range(nsm):
                p(f"ds_write_b128 v2, v[{A.CS+4*be}:{A.CS+4*be+3}] offset:{be*256}")
            p(f"s_mov_b64 exec, s[{sTMP}:{sTMP+1}]")
        if k + 2 < 32:
            if bar: p("s_barrier")
            rr = reads(k + 2)
            rest = m[1:]
            ri = 0
            for mm in rest:
                for _ in range(2):
                    if ri < len(rr): p(rr[ri]); ri += 1
                p(mm)
            while ri < len(rr): p(rr[ri]); ri += 1
        else:
            for mm in m[1:]: p(mm)

def A_epi_F(p, fill):
    p("L_Aepi0:")
    A = AR; E = A.E
    E = 80
    RS, NMR, CSV, T, OUT, VA = E, E+2, E+4, E+36, E+52, E+60
    stamp(p, "A:pre8")
    p("s_barrier")
    stamp(p, "A:post8")
    p(f"s_and_b32 s{sT0}, s{sW4}, 1\ns_lshr_b32 s{sT1}, s{sW4}, 1")
    p(f"v_and_b32 v2, 31, v1\nv_lshlrev_b32 v2, 2, v2\ns_lshl_b32 s{sT2}, s{sT0}, 8\ns_add_u32 s{sT2}, s{sT2}, {L_RS}\nv_add_u32 v2, s{sT2}, v2")
    for tt in range(2):
        p(f"ds_read_b32 v{RS+tt}, v2 offset:{tt*128}\nds_read_b32 v{NMR+tt}, v2 offset:{512+tt*128}")
    p(f"v_lshrrev_b32 v3, 5, v1\nv_lshlrev_b32 v3, 4, v3\ns_lshl_b32 s{sT2}, s{sT1}, 8\ns_add_u32 s{sT2}, s{sT2}, {L_CSA}\nv_add_u32 v3, s{sT2}, v3")
    p(f"s_lshl_b32 s{sT2}, s{sT0}, 7\nv_xor_b32 v{VA}, s{sT2}, v3\nv_xor_b32 v{VA+1}, 128, v{VA}")
    for be in range(2):
        for q in range(4):
            p(f"ds_read_b128 v[{CSV+16*be+4*q}:{CSV+16*be+4*q+3}], v{VA+be} offset:{q*32}")
    p(f"v_lshlrev_b32 v{VA+2}, 4, v1")
    p(f"s_lshl_b32 s{sT2}, s{sI}, 2\ns_lshl_b32 s{sT3}, s{sT0}, 1\ns_add_u32 s{sT2}, s{sT2}, s{sT3}\ns_mul_i32 s{sT2}, s{sT2}, 112")
    p(f"s_lshr_b32 s{sT3}, s{sCOLA}, 4\ns_lshl_b32 s{sT4}, s{sT1}, 2\ns_add_u32 s{sT3}, s{sT3}, s{sT4}\ns_add_u32 s{sT2}, s{sT2}, s{sT3}")
    p(f"s_lshl_b32 s{sHB}, s{sT2}, 10\ns_add_u32 s{sHB}, s{sHB}, {WS_H}")
    p(f"s_lshl_b32 s{sT5}, s{sT0}, 11\ns_add_u32 s{sTMP}, s{sHB}, s{sT5}\ns_xor_b32 s{sT5}, s{sT5}, 2048\ns_add_u32 s{sTMP+1}, s{sHB}, s{sT5}")
    p("s_waitcnt lgkmcnt(0)")
    if OPT.get("prioAe"): p(f"s_setprio {OPT['prioAe']}")
    stamp(p, "A:epi_start")
    def fa_addr(base):
        return (f"s_lshl_b32 s{sT2}, s{sI}, 1\ns_and_b32 s{sT3}, s{sW4}, 1\ns_add_u32 s{sT2}, s{sT2}, s{sT3}\ns_lshl_b32 s{sT2}, s{sT2}, 7\n"
                f"s_lshl_b32 s{sT3}, s{sJ}, 1\ns_lshr_b32 s{sT4}, s{sW4}, 1\ns_add_u32 s{sT3}, s{sT3}, s{sT4}\ns_lshl_b32 s{sT3}, s{sT3}, 2\n"
                f"s_add_u32 s{sT0}, s{sT2}, s{sT3}\ns_add_u32 s{sT0}, s{sT0}, {base}")
    ch = 0
    nops_after4 = 0
    for be in range(2):
        for qp in range(2):
            for tt in range(2):
                acc = A.ACC + 32*tt + 16*be + 8*qp
                o = OUT + 4*(ch & 1)
                silu_chunk(p, acc, CSV + 16*be + 8*qp, RS+tt, NMR+tt, T, o)
                if ch in (1, 3, 5, 7): stamp(p, f"A:ch{ch}")
                if ch == int(OPT.get("fa1ch", 6)):
                    p(f"s_waitcnt vmcnt({nops_after4})")
                    store_flag(p, fa_addr(WS_FA))
                    stamp(p, "A:FA1set")
                p(f"s_add_u32 s{sT2}, s{sTMP+be}, {tt*112*1024 + qp*1024}")
                p(f"buffer_store_dwordx4 v[{o}:{o+3}], v{VA+2}, s[{S_WS}:{S_WS+3}], s{sT2} offen sc1")
                if ch >= 4: nops_after4 += 1
                if OPT.get("w2ch") and ch == int(OPT["w2ch"]):
                    w2_touch(p, A.PF)
                    if ch >= 3: nops_after4 += 2
                fi = ch - (8 - len(fill) - 1)
                if fill and 0 <= fi < len(fill) and ch < 7:
                    p(fill[fi])
                    if ch >= 3: nops_after4 += 2
                ch += 1
                pass
    p(fa_addr(WS_FA2))
    p(f"s_mov_b32 s{sHB}, s{sT0}")

def A_epi_Q(p, fill):
    p("L_Aepi1:")
    A = AR; E = A.E
    ST = E; CSK, CSVv = E+32, E+33; T = E+34; PK = E+42; VV = E+58; Z = E+74; D2 = E+76; VA = E+92
    stamp(p, "A:pre8")
    p("s_barrier")
    stamp(p, "A:post8")
    p(f"s_and_b32 s{sT0}, s{sW4}, 1\ns_lshr_b32 s{sT1}, s{sW4}, 1")
    p(f"v_and_b32 v2, 31, v1\nv_lshlrev_b32 v2, 2, v2\ns_lshl_b32 s{sT2}, s{sT1}, 7\ns_add_u32 s{sT2}, s{sT2}, {L_CSA}\nv_add_u32 v2, s{sT2}, v2")
    p(f"ds_read_b32 v{CSK}, v2\nds_read_b32 v{CSVv}, v2 offset:256")
    p(f"v_lshrrev_b32 v3, 5, v1\nv_lshlrev_b32 v3, 4, v3\ns_lshl_b32 s{sT2}, s{sT0}, 8\ns_add_u32 s{sT2}, s{sT2}, {L_RS}\nv_add_u32 v{VA}, s{sT2}, v3")
    p(f"v_mov_b32 v{Z}, 0")
    def streads(g):
        tt, hf = g >> 1, g & 1
        b = ST + 16*(g & 1)
        for q2 in range(2):
            off = (32*tt + 8*(2*hf+q2)) * 4
            p(f"ds_read_b128 v[{b+4*q2}:{b+4*q2+3}], v{VA} offset:{off}\nds_read_b128 v[{b+8+4*q2}:{b+8+4*q2+3}], v{VA} offset:{off+512}")
    streads(0)
    nf = 0
    for g in range(4):
        tt, hf = g >> 1, g & 1
        if g < 3: streads(g + 1); p("s_waitcnt lgkmcnt(4)")
        else: p("s_waitcnt lgkmcnt(0)")
        RSV = ST + 16*(g & 1); NMV = RSV + 8
        k = A.ACC + 32*tt + 8*hf; v = A.ACC + 32*tt + 16 + 8*hf
        for e in range(8): p(f"v_mul_f32 v{T+e}, v{NMV+e}, v{CSVv}")
        for e in range(8): p(f"v_fma_f32 v{v+e}, v{v+e}, v{RSV+e}, v{T+e}")
        for e in range(4): p(f"v_cvt_pk_bf16_f32 v{VV+8*tt+4*hf+e}, v{v+2*e}, v{v+2*e+1}")
        if nf < len(fill): p(fill[nf]); nf += 1
        if OPT.get("w2ch") and not OPT.get("w2qlate") and g == min(3, int(OPT["w2ch"]) // 2): w2_touch(p, A.PF)
        for e in range(8): p(f"v_mul_f32 v{T+e}, v{NMV+e}, v{CSK}")
        for e in range(8): p(f"v_fma_f32 v{k+e}, v{k+e}, v{RSV+e}, v{T+e}")
        phi_elems(p, k, 8, T)
        for e in range(8): p(f"v_add_f32 v{Z}, v{Z}, v{k+e}")
        for e in range(4): p(f"v_cvt_pk_bf16_f32 v{PK+8*tt+4*hf+e}, v{k+2*e}, v{k+2*e+1}")
        c = "0" if g == 0 else f"v[{D2}:{D2+15}]"
        p(f"v_mfma_f32_32x32x16_bf16 v[{D2}:{D2+15}], v[{PK+8*tt+4*hf}:{PK+8*tt+4*hf+3}], v[{VV+8*tt+4*hf}:{VV+8*tt+4*hf+3}], {c}")
        if nf < len(fill): p(fill[nf]); nf += 1
        pass
    p(f"v_mov_b32 v{T}, v{Z}")
    p(f"v_permlane32_swap_b32 v{T}, v{Z}")
    p(f"v_add_f32 v{Z}, v{Z}, v{T}")
    p(f"s_mov_b32 s{sMASKH}, 0xffff0000\ns_mov_b32 s{sMASKH+1}, 0xffff0000")
    for r in range(8): p(f"v_cndmask_b32 v{T+r}, v{D2+r}, v{D2+8+r}, s[{sMASKH}:{sMASKH+1}]")
    p(f"s_lshl_b32 s{sT2}, s{sJ}, 1\ns_lshr_b32 s{sT1}, s{sW4}, 1\ns_add_u32 s{sZ}, s{sT2}, s{sT1}\ns_lshl_b32 s{sT2}, s{sZ}, 12\ns_add_u32 s{sHB}, s{sT2}, {WS_KVZ}")
    p(f"v_lshlrev_b32 v{VA+1}, 2, v1")
    for r in range(8):
        p(f"buffer_atomic_add_f32 v{T+r}, v{VA+1}, s[{S_WS}:{S_WS+3}], s{sHB} offen offset:{r*256}")
    p(f"v_lshrrev_b32 v2, 3, v1\nv_and_b32 v2, 1, v2\nv_lshlrev_b32 v2, 2, v2\nv_and_b32 v3, 3, v1\nv_add_u32 v2, v2, v3\nv_lshlrev_b32 v2, 8, v2")
    p(f"v_lshrrev_b32 v3, 4, v1\nv_and_b32 v3, 1, v3\nv_lshlrev_b32 v3, 1, v3\nv_lshrrev_b32 v4, 2, v1\nv_and_b32 v4, 1, v4\nv_add_u32 v3, v3, v4\nv_lshlrev_b32 v3, 2, v3")
    p(f"v_add_u32 v2, v2, v3")
    p(f"s_mov_b32 exec_hi, 0")
    p(f"buffer_atomic_add_f32 v{Z}, v2, s[{S_WS}:{S_WS+3}], s{sHB} offen offset:2048")
    p(f"s_mov_b32 exec_hi, -1")
    while nf < len(fill): p(fill[nf]); nf += 1
    p(f"s_lshl_b32 s{sT0}, s{sZ}, 7\ns_add_u32 s{sT0}, s{sT0}, {WS_C2}\nv_mov_b32 v2, 0\nv_mov_b32 v3, 1")
    p("s_waitcnt vmcnt(0)")
    p(f"s_mov_b64 exec, 1\nbuffer_atomic_add v3, v2, s[{S_WS}:{S_WS+3}], s{sT0} offen sc1\ns_mov_b64 exec, -1")
    if OPT.get("w2qlate"): w2_touch(p, A.PF)

class P2:
    ACCF = 16; ACCS = 80; AF = 144; BF = 200
    T = 216; XR = 240; VL16 = 250; VW2 = 251; VBR = 252; VX = 254; VW2B = 249; VBR2 = 236; VTMPB = 248
DA = DB = 6; NA = 7; NST = 36
L_REDF = 0; L_REDS = 49152

def p2_setup(p):
    P = P2
    p(f"s_and_b32 s{sT0}, s2, 7\ns_lshr_b32 s{sT1}, s2, 3")
    if OPT.get("map2", "512x256") == "512x256":
        p(f"s_lshr_b32 s{sT2}, s{sT0}, 1\ns_lshl_b32 s{sT2}, s{sT2}, 3\ns_and_b32 s{sT3}, s{sT1}, 7\ns_add_u32 s{sT2i}, s{sT2}, s{sT3}")
        p(f"s_and_b32 s{sT2}, s{sT0}, 1\ns_lshl_b32 s{sT2}, s{sT2}, 2\ns_lshr_b32 s{sT3}, s{sT1}, 3\ns_add_u32 s{sC}, s{sT2}, s{sT3}")
    else:
        p(f"s_lshl_b32 s{sT2}, s{sT0}, 2\ns_and_b32 s{sT3}, s{sT1}, 3\ns_add_u32 s{sT2i}, s{sT2}, s{sT3}\ns_lshr_b32 s{sC}, s{sT1}, 2")
    p(f"s_lshr_b32 s{sT0}, s{sW4}, 1\ns_lshl_b32 s{sT1}, s{sT2i}, 1")
    p(f"s_add_u32 s{sT2}, s{sT1}, s{sT0}\ns_xor_b32 s{sT3}, s{sT2}, 1")
    p(f"s_mul_i32 s{sT4}, s{sW4}, 28")
    for (d, src) in ((sAH, sT2), (sAH1, sT3)):
        p(f"s_mul_i32 s{sT5}, s{src}, 112\ns_add_u32 s{sT5}, s{sT5}, s{sT4}\ns_lshl_b32 s{sT5}, s{sT5}, 10\ns_add_u32 s{d}, s{sT5}, {WS_H}")
    p(f"s_lshl_b32 s{sT4}, s{sW4}, 3")
    for (d, src) in ((sAO, sT2), (sAO1, sT3)):
        p(f"s_lshl_b32 s{sT5}, s{src}, 5\ns_add_u32 s{sT5}, s{sT5}, s{sT4}\ns_lshl_b32 s{sT5}, s{sT5}, 10\ns_add_u32 s{d}, s{sT5}, {WS_O}")
    p(f"s_lshl_b32 s{sT0}, s{sC}, 7\ns_mul_i32 s{sT1}, s{sW4}, {28*16*1024}\ns_add_u32 s{sBW}, s{sT0}, s{sT1}")
    p(f"s_lshl_b32 s{sT1}, s{sW4}, 17\ns_add_u32 s{sBO}, s{sT0}, s{sT1}")
    p(f"s_mul_i32 s{sLB}, s{sW4}, {NS*2048}\ns_add_u32 s{sLB}, s{sLB}, {L_P2}")
    p(f"v_lshlrev_b32 v{P.VL16}, 4, v1")
    p(f"v_lshrrev_b32 v2, 3, v1\nv_lshlrev_b32 v2, 10, v2\nv_and_b32 v3, 7, v1\nv_lshrrev_b32 v4, 4, v1\nv_and_b32 v4, 1, v4\nv_lshlrev_b32 v4, 2, v4\nv_xor_b32 v3, v3, v4\nv_lshlrev_b32 v3, 4, v3\nv_add_u32 v{P.VW2}, v2, v3\nv_add_u32 v{P.VW2B}, 7168, v{P.VW2}")
    p(f"v_lshrrev_b32 v2, 5, v1\nv_lshlrev_b32 v2, 2, v2\nv_and_b32 v3, 15, v1\nv_lshrrev_b32 v4, 2, v3\nv_add_u32 v2, v2, v4\nv_lshlrev_b32 v2, 7, v2")
    p(f"v_lshrrev_b32 v4, 3, v3\nv_lshlrev_b32 v4, 6, v4\nv_add_u32 v2, v2, v4")
    p(f"v_lshrrev_b32 v4, 4, v1\nv_and_b32 v4, 1, v4\nv_lshlrev_b32 v4, 5, v4\nv_add_u32 v2, v2, v4\nv_and_b32 v4, 3, v3\nv_lshlrev_b32 v4, 3, v4\nv_add_u32 v2, v2, v4")
    p(f"s_and_b32 s{sT0}, s{sW4}, 1\ns_lshl_b32 s{sT0}, s{sT0}, 6\nv_xor_b32 v2, s{sT0}, v2\nv_add_u32 v{P.VBR}, s{sLB}, v2\nv_xor_b32 v{P.VBR+1}, 64, v{P.VBR}")
    p(f"s_mul_i32 s{sLB2}, s{sW4}, 12288\ns_add_u32 s{sLB2}, s{sLB2}, 49152")
    p(f"v_mov_b32 v{P.VTMPB}, v2")
    p(f"s_and_b32 s{sBB2}, s{sT2i}, 1\ns_lshl_b32 s{sBB2}, s{sBB2}, 1")
    p(f"s_and_b32 s{sROTH}, s{sC}, 3")
    p(calc_p0(0)); p(calc_rb(0)); p(calc_ra(0))
    p(f"v_and_b32 v2, 31, v1\nv_lshlrev_b32 v2, 10, v2\nv_lshrrev_b32 v3, 5, v1\nv_lshlrev_b32 v3, 4, v3\nv_add_u32 v{P.VX}, v2, v3")

def xres_soff():
    return (f"s_lshl_b32 s{sT0}, s{sT2i}, 6\ns_lshr_b32 s{sT1}, s{sW4}, 1\ns_lshl_b32 s{sT1}, s{sT1}, 5\ns_add_u32 s{sT0}, s{sT0}, s{sT1}\ns_lshl_b32 s{sT0}, s{sT0}, 10\n"
            f"s_lshl_b32 s{sT1}, s{sC}, 7\ns_add_u32 s{sT0}, s{sT0}, s{sT1}\ns_and_b32 s{sT1}, s{sW4}, 1\ns_lshl_b32 s{sT1}, s{sT1}, 6\ns_add_u32 s{sT0}, s{sT0}, s{sT1}")
def xres_load():
    P = P2
    return xres_soff() + "\n" + "\n".join(f"buffer_load_dwordx4 v[{P.XR+4*qp}:{P.XR+4*qp+3}], v{P.VX}, s[{S_X}:{S_X+3}], s{sT0} offen offset:{qp*32}" for qp in range(2))

def parts_list():
    if OPT.get("sfirst"): return [(0, 8, 2, 0), (8, 8, 2, 1), (16, 8, 2, 3), (24, 12, 3, 2)]
    return [(0, 8, 2, 0), (8, 8, 2, 1), (16, 12, 3, 2), (28, 8, 2, 3)]
def step_info(n):
    for (f, cnt, sb, kind) in parts_list():
        if f <= n < f + cnt: return kind, (n - f) // sb, (n - f) % sb
def is_s(n): return step_info(n)[0] == 3
def first_of(kind): return [f for (f, c, sb, k_) in parts_list() if k_ == kind][0]
sRA = 46
sRB = 73
RBREG = [73, 74, 75, 97]
sP0L = [58, 59, 60, 61]
sP0S = [76, 77, 78, 79]
def P0regs(part): return sP0S if part == 0 else sP0L
def calc_p0(part):
    o = []
    sP0 = P0regs(part)
    for u in range(4):
        d = sP0[u]
        o.append(f"s_add_u32 s{d}, s{sROTH}, {u}\ns_and_b32 s{d}, s{d}, 3" if OPT.get("rot") else f"s_mov_b32 s{d}, {u}")
        if part < 2:
            x = f"s_mov_b32 s{sT4}, s{sBB2}" if part == 0 else f"s_xor_b32 s{sT4}, s{sBB2}, 2"
            o.append(f"s_and_b32 s{sT3}, s{d}, 1\ns_lshl_b32 s{sT3}, s{sT3}, 2\ns_and_b32 s{d}, s{d}, 2\ns_mul_i32 s{d}, s{d}, 10\ns_add_u32 s{d}, s{d}, s{sT3}\n{x}\ns_add_u32 s{d}, s{d}, s{sT4}")
        elif part == 2:
            o.append(f"s_mul_i32 s{d}, s{d}, 3\ns_add_u32 s{d}, s{d}, 8")
        else:
            o.append(f"s_lshl_b32 s{d}, s{d}, 1")
    return "\n".join(o)
def calc_rb(part):
    base = sBO if part == 3 else sBW
    sP0 = P0regs(part)
    return "\n".join(f"s_lshl_b32 s{RBREG[u]}, s{sP0[u]}, 14\ns_add_u32 s{RBREG[u]}, s{RBREG[u]}, s{base}" for u in range(4))
def calc_ra(part):
    base = sAO if part == 3 else sAH
    sP0 = P0regs(part)
    o = []
    for u in range(4):
        o.append(f"s_lshl_b32 s{sT3}, s{sP0[u]}, 10\ns_add_u32 s{sRA+2*u}, s{sT3}, s{base}\ns_add_u32 s{sRA+2*u+1}, s{sT3}, s{base+1}")
    return "\n".join(o)
sROTH = 98
sLB2 = 96
NDEEP = 0
LD0 = 17
NLD = 0
def b_slot(n):
    if NLD == 0 or n < LD0: return sLB, (n % NS) * 2048
    if n < LD0 + NLD: return sLB2, (n - LD0) * 2048
    return sLB, ((n - NLD) % NS) * 2048
def fB(n, split=False):
    P = P2
    sb, so = b_slot(n)
    part, u, e = step_info(n)
    srd_ = S_WO if part == 3 else S_W2
    pre = ""
    if u == 0 and e == 0 and part > 0: pre = calc_p0(part) + "\n" + calc_rb(part) + "\n"
    if e == 0: soff = f"s{RBREG[u]}"; add = ""
    else: soff = f"s{sT0}"; add = f"s_add_u32 s{sT0}, s{RBREG[u]}, {e*16384}\n"
    a = f"{pre}s_add_u32 m0, s{sb}, {so}\n{add}buffer_load_dwordx4 v{P.VW2}, s[{srd_}:{srd_+3}], {soff} offen lds"
    b = f"buffer_load_dwordx4 v{P.VW2B}, s[{srd_}:{srd_+3}], {soff} offen offset:1024 lds"
    return (a, b) if split else a + "\n" + b

def fA(n, split=False):
    P = P2
    buf = P.AF + 8 * (n % NA)
    part, u, e = step_info(n)
    out = []
    for tau in range(2):
        pre = (calc_ra(part) + "\n") if (u == 0 and e == 0 and part > 0 and tau == 0) else ""
        out.append(f"{pre}buffer_load_dwordx4 v[{buf+4*tau}:{buf+4*tau+3}], v{P.VL16}, s[{S_WS}:{S_WS+3}], s{sRA+2*u+tau} offen offset:{e*1024} sc1")
    return out if split else "\n".join(out)

def p2_reads(n):
    P = P2
    sb, so = b_slot(n); buf = P.BF + 8 * (n & 1)
    vb = P.VBR if sb == sLB else P.VBR2
    return [f"ds_read_b64_tr_b16 v[{buf+4*be+2*u}:{buf+4*be+2*u+1}], v{vb+be} offset:{so + u*1024}" for be in range(2) for u in range(2)]

def f_mfmas(n):
    P = P2
    acc0 = P.ACCS if is_s(n) else P.ACCF
    first = n in (0, first_of(3))
    a = P.AF + 8 * (n % NA); b = P.BF + 8 * (n & 1)
    m = []
    for tau in range(2):
        for be in range(2):
            acc = acc0 + 16 * (2*tau + be)
            c = "0" if first else f"v[{acc}:{acc+15}]"
            m.append(f"v_mfma_f32_32x32x16_bf16 v[{acc}:{acc+15}], v[{b+4*be}:{b+4*be+3}], v[{a+4*tau}:{a+4*tau+3}], {c}")
    return m

def fa1_issue(p):
    p(f"s_lshl_b32 s{sT3}, s{sT2i}, 7\ns_lshl_b32 s{sT4}, s{sW4}, 4\ns_add_u32 s{sT3}, s{sT3}, s{sT4}\ns_add_u32 s{sT3}, s{sT3}, {WS_FA}")
    p(f"s_add_u32 s94, s{sWSP}, s{sT3}\ns_addc_u32 s95, s{sWSP+1}, 0")
    p(f"s_load_dwordx4 s[96:99], s[94:95], 0 glc")

def fa1_check(p):
    L = newlbl("L_f1")
    p(f"s_mov_b32 s3, 0\n{L}:\ns_waitcnt lgkmcnt(0)")
    for q in range(4): p(f"s_xor_b32 s{96+q}, s{96+q}, s{sNONCE}")
    p(f"s_or_b32 s96, s96, s97\ns_or_b32 s98, s98, s99\ns_or_b32 s96, s96, s98\ns_cmp_eq_u32 s96, 0\ns_cbranch_scc1 {L}x")
    p(f"s_add_u32 s3, s3, 1\ns_cmp_gt_u32 s3, {SPIN}\ns_cbranch_scc1 {L}x")
    p(f"s_load_dwordx4 s[96:99], s[94:95], 0 glc\ns_branch {L}\n{L}x:")

def relay_poll(p, base, kind, wave, first_issued=False):
    L = newlbl("L_rp")
    p(f"s_cmp_lg_u32 s{sW4}, {wave}\ns_cbranch_scc1 {L}e")
    if not first_issued:
        p(f"s_lshl_b32 s{sT3}, s{sT2i}, 7\ns_add_u32 s{sT3}, s{sT3}, {base}\ns_add_u32 s94, s{sWSP}, s{sT3}\ns_addc_u32 s95, s{sWSP+1}, 0")
        p(f"s_mov_b32 s3, 0\n{L}:\ns_load_dwordx16 s[76:91], s[94:95], 0 glc\ns_waitcnt lgkmcnt(0)")
    else:
        p(f"s_mov_b32 s3, 0\ns_branch {L}w\n{L}:\ns_load_dwordx16 s[76:91], s[94:95], 0 glc\n{L}w:\ns_waitcnt lgkmcnt(0)")
    for q in range(16): p(f"s_xor_b32 s{76+q}, s{76+q}, s{sNONCE}")
    for st in (8, 4, 2, 1):
        for q in range(st): p(f"s_or_b32 s{76+q}, s{76+q}, s{76+q+st}")
    p(f"s_cmp_eq_u32 s76, 0\ns_cbranch_scc1 {L}x\ns_sleep {OPT.get('rsleep', 2)}\ns_add_u32 s3, s3, 1\ns_cmp_gt_u32 s3, {SPIN}\ns_cbranch_scc0 {L}\n{L}x:")
    p(f"v_mov_b32 v2, {L_LF + 4*kind}\nv_mov_b32 v3, 1\nds_write_b32 v2, v3\n{L}e:")

def relay_issue(p, base, wave):
    L = newlbl("L_ri")
    p(f"s_cmp_lg_u32 s{sW4}, {wave}\ns_cbranch_scc1 {L}")
    p(f"s_lshl_b32 s{sT3}, s{sT2i}, 7\ns_add_u32 s{sT3}, s{sT3}, {base}\ns_add_u32 s94, s{sWSP}, s{sT3}\ns_addc_u32 s95, s{sWSP+1}, 0")
    p(f"s_load_dwordx16 s[76:91], s[94:95], 0 glc\n{L}:")

def relay_check(p, kind, vreg):
    L = newlbl("L_rc")
    p(f"v_readfirstlane_b32 s{sT3}, v{vreg}\ns_cmp_lg_u32 s{sT3}, 0\ns_cbranch_scc1 {L}x")
    p(f"s_mov_b32 s3, 0\nv_mov_b32 v2, {L_LF + 4*kind}\n{L}:\nds_read_b32 v3, v2\ns_waitcnt lgkmcnt(0)\nv_readfirstlane_b32 s{sT3}, v3\ns_cmp_lg_u32 s{sT3}, 0\ns_cbranch_scc1 {L}x")
    p(f"s_sleep 1\ns_add_u32 s3, s3, 1\ns_cmp_gt_u32 s3, {SPIN*8}\ns_cbranch_scc0 {L}\n{L}x:")

def lds_cnt_wait(p, addr, n):
    L = newlbl("L_cw")
    p(f"v_mov_b32 v2, {addr}\ns_mov_b32 s3, 0\n{L}:\nds_read_b32 v3, v2\ns_waitcnt lgkmcnt(0)\nv_readfirstlane_b32 s{sT3}, v3\ns_cmp_ge_u32 s{sT3}, {n}\ns_cbranch_scc1 {L}x")
    p(f"s_sleep 1\ns_add_u32 s3, s3, 1\ns_cmp_gt_u32 s3, {SPIN*8}\ns_cbranch_scc0 {L}\n{L}x:")

def lds_cnt_inc_nowait(p, addr):
    p(f"v_mov_b32 v2, {addr}\nv_mov_b32 v3, 1\ns_mov_b64 exec, 1\nds_add_u32 v2, v3\ns_mov_b64 exec, -1")

def lds_cnt_inc(p, addr):
    p(f"v_mov_b32 v2, {addr}\nv_mov_b32 v3, 1\ns_waitcnt lgkmcnt(0)\ns_mov_b64 exec, 1\nds_add_u32 v2, v3\ns_mov_b64 exec, -1")

def red_write(p, acc0, base):
    P = P2
    for dl in range(1, 4):
        p(f"s_xor_b32 s{sT0}, s{sW4}, {dl}\ns_mul_i32 s{sT0}, s{sT0}, 12288\ns_add_u32 s{sT0}, s{sT0}, {base + (dl-1)*4096}")
        p(f"v_add_u32 v{P.T+dl}, s{sT0}, v{P.VL16}")
        for q in range(4):
            r = acc0 + 16*dl + 4*q
            p(f"ds_write_b128 v{P.T+dl}, v[{r}:{r+3}] offset:{q*1024}")

def red_read(p, base, T):
    P = P2
    p(f"s_mul_i32 s{sT0}, s{sW4}, 12288\ns_add_u32 s{sT0}, s{sT0}, {base}\nv_add_u32 v{P.T}, s{sT0}, v{P.VL16}")
    for sl in range(3):
        for q in range(4):
            p(f"ds_read_b128 v[{T+16*sl+4*q}:{T+16*sl+4*q+3}], v{P.T} offset:{sl*4096 + q*1024}")

VLF = 239
VTD = 238
def h_touch(p, kind):
    nq = 2 if kind != 2 else 3
    p(f"s_and_b32 s{sT0}, s{sC}, 3")
    if kind < 3:
        p(f"s_mul_i32 s{sT0}, s{sT0}, 28\ns_lshl_b32 s{sT1}, s{sT2i}, 1\ns_mul_i32 s{sT1}, s{sT1}, 112\ns_add_u32 s{sT0}, s{sT0}, s{sT1}\ns_lshl_b32 s{sT0}, s{sT0}, 10\ns_add_u32 s{sT0}, s{sT0}, {WS_H}")
        tile_stride = 112 * 1024
    else:
        p(f"s_lshl_b32 s{sT0}, s{sT0}, 3\ns_lshl_b32 s{sT1}, s{sT2i}, 6\ns_add_u32 s{sT0}, s{sT0}, s{sT1}\ns_lshl_b32 s{sT0}, s{sT0}, 10\ns_add_u32 s{sT0}, s{sT0}, {WS_O}")
        tile_stride = 32 * 1024
    p(f"v_and_b32 v2, 7, v1\nv_lshlrev_b32 v2, 7, v2\nv_lshrrev_b32 v3, 3, v1\nv_and_b32 v3, 1, v3\ns_mov_b32 s{sT1}, {tile_stride}\nv_mul_lo_u32 v3, v3, s{sT1}\nv_add_u32 v2, v2, v3\nv_lshrrev_b32 v3, 4, v1")
    if kind in (0, 1):
        x = "" if kind == 0 else f"\ns_xor_b32 s{sT2}, s{sT2}, 2"
        p(f"s_lshr_b32 s{sT1}, s{sW4}, 1\ns_mul_i32 s{sT1}, s{sT1}, 20\ns_and_b32 s{sT2}, s{sW4}, 1\ns_lshl_b32 s{sT2}, s{sT2}, 2\ns_add_u32 s{sT1}, s{sT1}, s{sT2}\ns_mov_b32 s{sT2}, s{sBB2}{x}\ns_add_u32 s{sT1}, s{sT1}, s{sT2}")
    elif kind == 2:
        p(f"s_mul_i32 s{sT1}, s{sW4}, 3\ns_add_u32 s{sT1}, s{sT1}, 8")
    else:
        p(f"s_lshl_b32 s{sT1}, s{sW4}, 1")
    p(f"s_lshl_b32 s{sT1}, s{sT1}, 10\ns_add_u32 s{sT0}, s{sT0}, s{sT1}\nv_lshlrev_b32 v3, 10, v3\nv_add_u32 v2, v2, v3")
    mask = "0xffffffff" if nq == 2 else "0xffffffffffff"
    if nq == 2: p("s_mov_b32 exec_lo, -1\ns_mov_b32 exec_hi, 0")
    else:       p("s_mov_b32 exec_lo, -1\ns_mov_b32 exec_hi, 0xffff")
    p(f"buffer_load_dword v{VTD}, v2, s[{S_WS}:{S_WS+3}], s{sT0} offen sc1\ns_mov_b64 exec, -1")

def phase2(p):
    P = P2
    N = NST
    LEAD = int(OPT.get("lead", 3))
    touch = not OPT.get("notouch") and not OPT.get("ntH")
    ops = []
    BL = 6
    def wait_for(tag):
        last = max(i for i, t in enumerate(ops) if t == tag)
        return len(ops) - 1 - last
    def wait_both(n):
        w = wait_for(f"A{n}")
        if f"B{n}" in ops: w = min(w, wait_for(f"B{n}"))
        return w
    p("L_P2loop:")
    if OPT.get("prioAe"): p("s_setprio 0")
    stamp(p, "P2:start")
    if OPT.get("w2split") == "100": w2_touch_split(p, 255, 1); ops += ["t", "t"]
    if OPT.get("asyncfa"): relay_issue(p, WS_FA, 0)
    if OPT.get("nofillepi"):
        for n in range(DB): p(fB(n)); ops += [f"B{n}"] * 2
        p(xres_load()); ops += ["x"] * 2
    p(f"v_add_u32 v{P.VBR2}, s{sLB2}, v{P.VTMPB}\nv_xor_b32 v{P.VBR2+1}, 64, v{P.VBR2}")
    relay_poll(p, WS_FA, 0, 0, first_issued=bool(OPT.get("asyncfa")))
    if OPT.get("poll2"):
        L2 = newlbl("L_p2")
        p(f"s_cmp_lg_u32 s{sW4}, 3\ns_cbranch_scc1 {L2}\ns_sleep {OPT['poll2']}\n{L2}:")
        relay_poll(p, WS_FA, 0, 3)
    p(f"v_mov_b32 v2, {L_LF}\nds_read_b32 v{VLF}, v2\ns_waitcnt lgkmcnt(0)")
    relay_check(p, 0, VLF)
    stamp(p, "P2:FA1")
    if touch: h_touch(p, 0); ops += ["t"]
    for n in range(DA): p(fA(n)); ops += [f"A{n}"] * 2
    if NDEEP:
        lds_cnt_wait(p, L_CNT, 4)
        for n in range(DB, NS + NDEEP): p(fB(n)); ops += [f"B{n}"] * 2
        stamp(p, "P2:deep")
    p(f"s_waitcnt vmcnt({len(ops)})")
    L = newlbl("L_fa2")
    p(f"s_cmp_lg_u32 s{sROLE}, 0\ns_cbranch_scc1 {L}")
    store_flag(p, f"s_mov_b32 s{sT0}, s{sHB}")
    p(f"{L}:")
    stamp(p, "P2:drain")
    p(f"s_waitcnt vmcnt({wait_both(0)})")
    for r in p2_reads(0): p(r)
    parts = {8: (1, WS_FA2, 1, 1), first_of(2): (2, WS_FB, 2, 2), first_of(3): (3, WS_FO, 3, 3)}
    chk_at = {}; poll_at = {}
    for nn, v in parts.items():
        c = max(0, nn - DA - LEAD); chk_at[c] = v; poll_at[max(0, c - 2)] = v
    for n in range(N):
        m = f_mfmas(n)
        if n > 0: p(f"s_waitcnt vmcnt({wait_for(f'A{n}')}) lgkmcnt(0)")
        else:     p("s_waitcnt lgkmcnt(0)")
        if n in (0, 4, 8, 12, 16, 20, 24, 28, 32, 35): stamp(p, f"P2:n{n}")
        p(m[0])
        if n + 1 < N:
            if f"B{n+1}" in ops and wait_for(f"B{n+1}") < wait_for(f"A{n}"):
                p(f"s_waitcnt vmcnt({wait_for(f'B{n+1}')})")
            for r in p2_reads(n + 1): p(r)
            if (n + 1) in chk_at and (n + 1) not in poll_at:
                p(f"v_mov_b32 v2, {L_LF + 4*chk_at[n+1][0]}\nds_read_b32 v{VLF}, v2")
        if OPT.get("w2split") and n == int(OPT["w2split"]) - 1:
            w2_touch_split(p, 255, 1); ops += ["t", "t"]
        if n in poll_at:
            kind, fl, wv, tk = poll_at[n]; relay_poll(p, fl, kind, wv)
        if n in chk_at:
            kind, fl, wv, tk = chk_at[n]
            if n in poll_at or n == 0:
                p(f"v_mov_b32 v2, {L_LF + 4*kind}\nds_read_b32 v{VLF}, v2\ns_waitcnt lgkmcnt(0)")
            stamp(p, f"P2:pre{kind}"); relay_check(p, kind, VLF); stamp(p, f"P2:chk{kind}")
            if touch: h_touch(p, tk); ops += ["t"]
        vm = []
        todo = []
        if NLD and n == LD0 - DB:
            lds_cnt_wait(p, L_CNT, 4)
            todo = list(range(LD0, LD0 + NLD))
        elif NLD and LD0 <= n + DB < LD0 + NLD: todo = []
        elif n + DB < N: todo = [n + DB]
        for nb_ in todo:
            a_, b_ = fB(nb_, True); vm += [a_, b_]; ops += [f"B{nb_}"] * 2
        if n + DA < N:
            vm += fA(n + DA, True); ops += [f"A{n+DA}"] * 2
        rest = m[1:]
        for i_ in range(max(len(vm), len(rest))):
            if i_ < len(vm): p(vm[i_])
            if i_ < len(rest): p(rest[i_])
        if not OPT.get("sfirst"):
            if n == 28:
                lds_cnt_wait(p, L_CNT, 4)
                red_write(p, P.ACCF, L_REDF)
                lds_cnt_inc(p, L_CF)
            if n == 32:
                lds_cnt_wait(p, L_CF, 4)
                red_read(p, L_REDF, P.ACCF + 16)
            if n == 33:
                a = P.ACCF
                for sl in range(3):
                    for e in range(16): p(f"v_add_f32 v{a+e}, v{a+e}, v{a+16+16*sl+e}")
                TT = a + 16
                for e in range(16): p(f"v_exp_f32 v{TT+e}, -v{a+e}")
                for e in range(16): p(f"v_add_f32 v{TT+e}, 1.0, v{TT+e}")
                for e in range(16): p(f"v_rcp_f32 v{TT+e}, v{TT+e}")
                for e in range(16): p(f"v_mul_f32 v{a+e}, v{a+e}, v{TT+e}")
        else:
            if n == 25:
                lds_cnt_wait(p, L_CNT, 4)
                red_write(p, P.ACCS, L_REDF)
                lds_cnt_inc(p, L_CS2)
            if n == 29:
                lds_cnt_wait(p, L_CS2, 4)
                red_read(p, L_REDF, P.ACCS + 16)
            if n == 30:
                a = P.ACCS
                for sl in range(3):
                    for e in range(16): p(f"v_add_f32 v{a+e}, v{a+e}, v{a+16+16*sl+e}")

def final_epilogue_sfirst(p):
    p("L_FINAL:")
    P = P2
    stamp(p, "F:start")
    red_write(p, P.ACCF, L_REDS)
    lds_cnt_inc(p, L_CF)
    stamp(p, "F:written")
    TT = P.AF
    for qp in range(2):
        x = P.XR + 4*qp
        p(f"v_permlane32_swap_b32 v{x}, v{x+2}\nv_permlane32_swap_b32 v{x+1}, v{x+3}")
    XU = P.ACCS + 16
    for qp in range(2):
        x = P.XR + 4*qp
        for d in range(4):
            t = XU + 8*qp + 2*d
            p(f"v_lshlrev_b32 v{t}, 16, v{x+d}\nv_and_b32 v{t+1}, 0xffff0000, v{x+d}")
    p(f"s_mov_b32 s{sT1}, {fhex(LN2*LN2)}")
    for e in range(16): p(f"v_mul_f32 v{P.ACCS+e}, s{sT1}, v{P.ACCS+e}")
    lds_cnt_wait(p, L_CF, 4)
    stamp(p, "F:sync")
    red_read(p, L_REDS, TT)
    a = P.ACCF; s = P.ACCS
    p(xres_soff())
    for sl in range(3):
        p(f"s_waitcnt lgkmcnt({8-4*sl})")
        for e in range(16): p(f"v_add_f32 v{a+e}, v{a+e}, v{TT+16*sl+e}")
    for e in range(16): p(f"v_exp_f32 v{TT+e}, -v{a+e}")
    for e in range(16): p(f"v_mul_f32 v{a+e}, v{a+e}, v{s+e}")
    for e in range(16): p(f"v_add_f32 v{TT+e}, 1.0, v{TT+e}")
    for e in range(16): p(f"v_rcp_f32 v{TT+e}, v{TT+e}")
    for qp in range(2):
        x = P.XR + 4*qp
        for d in range(8):
            e = 8*qp + d
            p(f"v_fma_f32 v{XU+e}, v{a+e}, v{TT+e}, v{XU+e}")
        for d in range(4):
            t = XU + 8*qp + 2*d
            p(f"v_cvt_pk_bf16_f32 v{x+d}, v{t}, v{t+1}")
        p(f"v_permlane32_swap_b32 v{x}, v{x+2}\nv_permlane32_swap_b32 v{x+1}, v{x+3}")
        p(f"buffer_store_dwordx4 v[{x}:{x+3}], v{P.VX}, s[{S_OUT}:{S_OUT+3}], s{sT0} offen offset:{qp*32} {OPT.get('outfl', '').replace('_', ' ')}")

def final_epilogue(p):
    if OPT.get("sfirst"): return final_epilogue_sfirst(p)
    p("L_FINAL:")
    P = P2
    stamp(p, "F:start")
    red_write(p, P.ACCS, L_REDS)
    lds_cnt_inc(p, L_CS2)
    stamp(p, "F:written")
    TT = P.AF
    for qp in range(2):
        x = P.XR + 4*qp
        p(f"v_permlane32_swap_b32 v{x}, v{x+2}\nv_permlane32_swap_b32 v{x+1}, v{x+3}")
    XU = P.AF + 48
    lds_cnt_wait(p, L_CS2, 4)
    stamp(p, "F:sync")
    red_read(p, L_REDS, TT)
    a = P.ACCF; s = P.ACCS
    p(xres_soff())
    p(f"s_mov_b32 s{sT1}, {fhex(LN2*LN2)}")
    for sl in range(3):
        p(f"s_waitcnt lgkmcnt({8-4*sl})")
        for e in range(16): p(f"v_add_f32 v{s+e}, v{s+e}, v{TT+16*sl+e}")
    for e in range(16): p(f"v_mul_f32 v{a+e}, v{a+e}, v{s+e}")
    for qp in range(2):
        x = P.XR + 4*qp
        for d in range(4):
            e0 = 8*qp + 2*d
            t = TT + 2*d
            p(f"v_lshlrev_b32 v{t}, 16, v{x+d}\nv_and_b32 v{t+1}, 0xffff0000, v{x+d}")
        for d in range(4):
            e0 = 8*qp + 2*d
            t = TT + 2*d
            p(f"v_fma_f32 v{t}, v{a+e0}, s{sT1}, v{t}\nv_fma_f32 v{t+1}, v{a+e0+1}, s{sT1}, v{t+1}")
        for d in range(4):
            t = TT + 2*d
            p(f"v_cvt_pk_bf16_f32 v{x+d}, v{t}, v{t+1}")
        p(f"v_permlane32_swap_b32 v{x}, v{x+2}\nv_permlane32_swap_b32 v{x+1}, v{x+3}")
        p(f"buffer_store_dwordx4 v[{x}:{x+3}], v{P.VX}, s[{S_OUT}:{S_OUT+3}], s{sT0} offen offset:{qp*32} {OPT.get('outfl', '').replace('_', ' ')}")

def fused():
    p = Prog()
    if STAMPS["on"]: p("s_memrealtime s[100:101]\ns_memtime s[96:97]")
    if OPT.get("dbgtime"): p("s_memrealtime s[100:101]\ns_memtime s[96:97]")
    prologue(p)
    if OPT.get("dbgtime"): p("s_mov_b32 s101, s96")
    if STAMPS["on"]: p(f"v_mov_b32 v{VSTAMP}, 0\nv_writelane_b32 v{VSTAMP}, s96, 0\nv_writelane_b32 v{VSTAMP}, s100, 62")
    p(f"s_cmp_ge_u32 s{sW8}, 4\ns_cbranch_scc0 L_A")
    p(f"s_cmp_eq_u32 s{sROLE}, 0\ns_cbranch_scc0 L_BQ")
    for role in (0, 1):
        if role == 1: p("L_BQ:")
        stamp_reset(1, f"B{role}")
        B_setup(p, role)
        ops = B_phaseA(p, role)
        B_phaseB(p, role, ops)
        if role == 0:
            B_epi_F(p)
        else:
            PQ = B_epi_Q(p); stamp(p, "B:epiQ"); o_stage(p, PQ)
        stamp(p, "B:end"); stamp_dump(p)
        p("s_endpgm")
        p(f"L_Bend{role}:")
    p("L_A:")
    prologue2(p)
    A_stats_issue(p)
    if OPT.get("smw"): smem_warm(p)
    zero_ctrl_(p)
    p2_setup(p)
    fill = [fB(n) for n in range(DB)] + [xres_load()]
    if OPT.get("nofillepi"): fill = []
    p(f"s_cmp_eq_u32 s{sROLE}, 0\ns_cbranch_scc0 L_AQ")
    stamp_reset(1, "A0")
    A_setup(p, 0); A_stats_compute(p); A_phaseA(p, 0); A_epi_F(p, fill)
    p("s_branch L_P2")
    p("L_AQ:")
    stamp_reset(1, "A1")
    A_setup(p, 1); A_stats_compute(p); A_phaseA(p, 1); A_epi_Q(p, fill)
    p("L_P2:")
    stamp_reset(30, "P2")
    phase2(p)
    final_epilogue(p)
    stamp(p, "F:end"); stamp_dump(p)
    if OPT.get("dbgtime"):
        p("s_memrealtime s[76:77]\ns_memtime s[78:79]\ns_waitcnt lgkmcnt(0)")
        p("s_sub_u32 s76, s76, s100\ns_sub_u32 s78, s78, s101")
        p(f"s_cmp_lg_u32 s{sW4}, 0\ns_cbranch_scc1 L_end\ns_and_b32 s3, s2, 127\ns_cmp_lg_u32 s3, 0\ns_cbranch_scc1 L_end")
        p("s_lshr_b32 s3, s2, 7\ns_lshl_b32 s3, s3, 3\nv_mov_b32 v2, s3\nv_mov_b32 v4, s76\nv_mov_b32 v5, s78\ns_mov_b64 exec, 1")
        p(f"buffer_store_dwordx2 v[4:5], v2, s[{S_DBG}:{S_DBG+3}], 0 offen sc1\ns_mov_b64 exec, -1")
    p("L_end:\ns_endpgm")
    p.fix_hazards()
    e = p.check_waits("fused2")
    return p

def B_phaseA_(p, role):
    B_phaseA(p, role)

def zero_ctrl_(p):
    zero_ctrl(p)

def build(path):
    hdr = open("cdna_kernels/" + NAME + ".s.ref").read().split("\n")
    top = [l for l in hdr if l.startswith(";") and "@launch" not in l and "Override" not in l and "grid=" not in l]
    kn = NAME + "_kernel"
    o = top + [f"; @launch grid=(256,1,1) block=(512,1,1) lds={LDS_BYTES}", '.amdgcn_target "amdgcn-amd-amdhsa--gfx950"\n.text', kernel_header(kn)]
    _lbl[0] = 0
    o.append(fused().text())
    o.append('.section .rodata,"a"\n.p2align 6')
    o.append(kernel_desc(kn, 256, 102, 256))
    open(path, "w").write("\n".join(o) + "\n")

if __name__ == "__main__":
    for a in sys.argv[2:]:
        if a == "diag": STAMPS["on"] = True
        elif "=" in a:
            k_, v_ = a.split("="); OPT[k_] = v_
    if "DA" in OPT: DA = int(OPT["DA"])
    if "ld" in OPT: NLD = int(OPT["ld"])
    build(sys.argv[1])
    if STAMPS["on"]:
        import json
        json.dump(STAMPS["names"], open(sys.argv[1] + ".names", "w"))
```
